```python
import torch

def _softmax(x, axis=-1):
    return torch.softmax(x, dim=axis)
def _gelu(x):
    return torch.nn.functional.gelu(x, approximate="tanh")
def _silu(x):
    return torch.nn.functional.silu(x)
def _sigmoid(x):
    return torch.sigmoid(x)
def _layernorm(x, axis=-1, eps=1e-5):
    m = x.mean(dim=axis, keepdim=True)
    v = x.var(dim=axis, keepdim=True, unbiased=False)
    return (x - m) / torch.sqrt(v + eps)
def _scatter_add(tgt, idx, src, axis=0):
    return tgt.clone().index_add_(axis, idx, src)
def _segment_sum(src, seg, n):
    out = torch.zeros((n,) + src.shape[1:], dtype=src.dtype)
    return out.index_add_(0, seg, src)
def _pad(x, pw):
    flat = tuple(v for pair in reversed(pw) for v in pair)
    return torch.nn.functional.pad(x, flat)

kernel_name = 'parallel_sum__grouped_kv_mqa__glu_gated_bilinear__prompt'

def setup_inputs():

    _w = (lambda a: (lambda t: t.to(torch.bfloat16) if t.is_floating_point() else t)(torch.as_tensor(a)))
    def _A_setup():
        B, S, D, H = 1, 2048, 640, 32
        Dh = D // H
        return {
            "x": _w((lambda *s: torch.randn(*s, dtype=torch.bfloat16) * 0.05)(B, S, D)),
            "wq": _w((lambda *s: torch.randn(*s, dtype=torch.bfloat16) * 0.05)(D, H * Dh)),
            "wk": _w((lambda *s: torch.randn(*s, dtype=torch.bfloat16) * 0.05)(D, Dh)),
            "wv": _w((lambda *s: torch.randn(*s, dtype=torch.bfloat16) * 0.05)(D, Dh)),
            "wo": _w((lambda *s: torch.randn(*s, dtype=torch.bfloat16) * 0.05)(H * Dh, D)),
        }
    _A_in = _A_setup()

    def _B_setup():
        B, S, D, F = 1, 2048, 640, 1536
        return {
            "x": _w((lambda *s: torch.randn(*s, dtype=torch.bfloat16) * 0.05)(B, S, D)),
            "w_gate": _w((lambda *s: torch.randn(*s, dtype=torch.bfloat16) * 0.8)(D, F) * (D ** -0.5)),
            "w_up": _w((lambda *s: torch.randn(*s, dtype=torch.bfloat16) * 0.8)(D, F) * (D ** -0.5)),
            "w_down": _w((lambda *s: torch.randn(*s, dtype=torch.bfloat16) * 0.8)(F, D) * (F ** -0.5)),
        }
    _B_in = _B_setup()

    return {
        "A_x": _A_in["x"],
        "A_wq": _A_in["wq"],
        "A_wk": _A_in["wk"],
        "A_wv": _A_in["wv"],
        "A_wo": _A_in["wo"],
        "B_x": _B_in["x"],
        "B_w_gate": _B_in["w_gate"],
        "B_w_up": _B_in["w_up"],
        "B_w_down": _B_in["w_down"],
    }

def reference(A_x, A_wq, A_wk, A_wv, A_wo, B_x, B_w_gate, B_w_up, B_w_down):
    def _A_ref(x, wq, wk, wv, wo):
        B, S, D = x.shape
        H = 32
        Dh = D // H
        q = (lambda x, *d: x.permute(*d))((x @ wq).reshape(B, S, H, Dh), 0, 2, 1, 3)
        k = x @ wk
        v = x @ wv
        scores = torch.einsum("bhqd,bkd->bhqk", q, k) * (Dh ** -0.5)
        p = _softmax(scores, axis=-1)
        o = torch.einsum("bhqk,bkd->bhqd", p, v)
        return (lambda x, *d: x.permute(*d))(o, 0, 2, 1, 3).reshape(B, S, H * Dh) @ wo

    def _B_ref(x, w_gate, w_up, w_down):
        g = torch.einsum("bsd,df->bsf", x, w_gate)
        u = torch.einsum("bsd,df->bsf", x, w_up)
        h = g * u
        return torch.einsum("bsf,fd->bsd", h, w_down)

    x = A_x
    xn = _layernorm(x, axis=-1)
    return x + _A_ref(xn, A_wq, A_wk, A_wv, A_wo) + _B_ref(xn, B_w_gate, B_w_up, B_w_down)
```

```python
class Asm:
    def __init__(self):
        self.lines = []
        self.vm = []
        self.lg = []
        self.uid = 0
        self.done = set()
    def __call__(self, s):
        for l in s.strip("\n").split("\n"):
            self.lines.append("    " + l.strip())
    def label(self, l):
        self.lines.append(l + ":")
    def raw(self, l):
        self.lines.append(l)
    def newlabel(self, base):
        self.uid += 1
        return f"L_{base}_{self.uid}"
    def comment(self, c):
        self.lines.append("    ; " + c)
    def vmem(self, s, tag=None):
        self(s); self.vm.append(tag); self.done.add(tag)
    def lds(self, s, tag=None):
        self(s); self.lg.append(tag); self.done.add(tag)
    def _n_after(self, lst, tags):
        if not isinstance(tags, list): tags = [tags]
        idx = [i for i, t in enumerate(lst) if t in tags]
        if not idx:
            assert all(t in self.done for t in tags), f"wait on unknown tag {tags}"
            return None
        return len(lst) - 1 - max(idx)
    def wait(self, vm=None, lg=None):
        parts = []
        if vm is not None:
            n = 0 if vm == 'all' else self._n_after(self.vm, vm)
            if n is not None:
                assert n <= 63, n
                parts.append(f"vmcnt({n})")
                self.vm = self.vm[len(self.vm) - n:] if n else []
        if lg is not None:
            n = 0 if lg == 'all' else self._n_after(self.lg, lg)
            if n is not None:
                n2 = min(n, 15)
                parts.append(f"lgkmcnt({n2})")
                self.lg = self.lg[len(self.lg) - n2:] if n2 else []
        if parts:
            self("s_waitcnt " + " ".join(parts))
    def text(self):
        return "\n".join(self.lines) + "\n"

def vr(b, n=1):
    return f"v{b}" if n == 1 else f"v[{b}:{b+n-1}]"
def sr(b, n=1):
    return f"s{b}" if n == 1 else f"s[{b}:{b+n-1}]"

def kdesc(name, vgpr, sgpr=102, extra=""):
    acc = (vgpr + 3) // 4 * 4
    return f""".amdhsa_kernel {name}
  .amdhsa_next_free_vgpr {vgpr}
  .amdhsa_next_free_sgpr {sgpr}
  .amdhsa_accum_offset {acc}
  .amdhsa_group_segment_fixed_size 0
  .amdhsa_kernarg_size 96
  .amdhsa_user_sgpr_count 2
  .amdhsa_user_sgpr_kernarg_segment_ptr 1
  .amdhsa_system_sgpr_workgroup_id_x 1
{extra}.end_amdhsa_kernel
"""
```

```python
import sys
from asmlib import *
import k1
HEAD = open("parallel_sum__grouped_kv_mqa__glu_gated_bilinear__prompt.s.ref").read().split("; Override launch")[0]
def compose(kernels):
    s = HEAD
    for n, t, d, g, b, l in kernels:
        if len(kernels) == 1 and n.startswith("parallel_sum"): s += f"; @launch grid=({g},1,1) block=({b},1,1) lds={l}\n"
        else: s += f"; @launch kernel={n} grid=({g},1,1) block=({b},1,1) lds={l}\n"
    s += '.amdgcn_target "amdgcn-amd-amdhsa--gfx950"\n.text\n'
    done = set()
    for n, t, d, g, b, l in kernels:
        if n in done: continue
        done.add(n); s += t
    s += '.section .rodata,"a"\n'
    done = set()
    for n, t, d, g, b, l in kernels:
        if n in done: continue
        done.add(n); s += ".p2align 6\n" + d
    return s
if __name__ == "__main__":
    t, d = k1.gen_k1()
    open(sys.argv[1], "w").write(compose([("k1_kernel", t, d, 256, 512, k1.K1_LDS)]))
```

```python
from asmlib import *
import math, struct
def f32hex(x): return struct.unpack("<I", struct.pack("<f", x))[0]
WS_KV = 0x280000;  KV_BYTES = 64 * 3072
WS_H  = 0x300000;  H_BYTES = 64 * 96 * 1024
WS_O  = 0x900000;  O_BYTES = 64 * 40 * 1024
WS_FL = 0xC00000;  FL_BYTES = 0x10000
FL_KV = 0; FL_H = 0x4000; FL_O = 0x8000
BIG = 0x40000000
L_FLAGA = 0; L_FLAGG = 16; L_CNTKV = 32; L_TAG = 36; L_KVOK = 40
L_XN = 256; XNT = 80 * 528
L_R1 = L_XN + 2 * XNT
KVSLOT = 12288
L_R2 = L_R1 + 3 * KVSLOT
L_WK = 110592; L_WV = L_WK + 26624
WSLOT = 3200; WRING = 3 * WSLOT
DSLOT = 5120; DRING = 4 * DSLOT
LDS_TOTAL = 163840
QSCALE = (20 ** -0.5) * math.log2(math.e)
P_X, P_WQ, P_WK, P_WV, P_WO, P_BX, P_WG, P_WU, P_WD, P_OUT, P_DBG, P_WS = [64 + 2 * i for i in range(12)]
SPIN = 0x40000

def srd(a, d, p, nbytes, add=0):
    if add:
        a(f"s_add_u32 s{d}, s{p}, {add}"); a(f"s_addc_u32 s{d+1}, s{p+1}, 0")
    else:
        a(f"s_mov_b32 s{d}, s{p}"); a(f"s_mov_b32 s{d+1}, s{p+1}")
    a(f"s_mov_b32 s{d+2}, {nbytes}"); a(f"s_mov_b32 s{d+3}, 0x00020000")

def poll_lds(a, vF, vFaddr, need, tag, issue=True):
    ok = a.newlabel("pok"); lp = a.newlabel("plp")
    if issue: a.lds(f"ds_read_b32 v{vF}, v{vFaddr}", tag)
    a.wait(lg=tag)
    a(f"v_cmp_gt_u32 vcc, {need}, v{vF}")
    a("s_cmp_eq_u64 vcc, 0")
    a(f"s_cbranch_scc1 {ok}")
    a(f"s_mov_b32 s63, {SPIN}")
    a.label(lp)
    a("s_sleep 1")
    a(f"ds_read_b32 v{vF}, v{vFaddr}")
    a("s_waitcnt lgkmcnt(0)")
    a("s_sub_u32 s63, s63, 1")
    a(f"s_cbranch_scc1 {ok}")
    a(f"v_cmp_gt_u32 vcc, {need}, v{vF}")
    a("s_cmp_eq_u64 vcc, 0")
    a(f"s_cbranch_scc0 {lp}")
    a.label(ok)

def set_flag(a, vtmp, vaddr, val, off=0):
    a("s_mov_b64 exec, 1")
    a(f"v_mov_b32 v{vtmp}, {val}")
    a.lds(f"ds_write_b32 v{vaddr}, v{vtmp}" + (f" offset:{off}" if off else ""), "fw")
    a("s_mov_b64 exec, -1")

def poll_global(a, vdst, n, vaddr, srdn, soffs, stag, sleep=6):
    ok = a.newlabel("gok"); lp = a.newlabel("glp")
    a(f"s_mov_b32 s63, {SPIN // 16}")
    a.label(lp)
    for i in range(n):
        a(f"buffer_load_dword v{vdst+i}, v{vaddr}, s[{srdn}:{srdn+3}], {soffs} offen offset:{i*1024} sc1")
    a("s_waitcnt vmcnt(0)")
    for i in range(n):
        a(f"v_xor_b32 v{vdst+i}, {stag}, v{vdst+i}")
    for i in range(1, n):
        a(f"v_or_b32 v{vdst}, v{vdst}, v{vdst+i}")
    a(f"v_cmp_ne_u32 vcc, 0, v{vdst}")
    a("s_cmp_eq_u64 vcc, 0")
    a(f"s_cbranch_scc1 {ok}")
    a(f"s_sleep {sleep}")
    a("s_sub_u32 s63, s63, 1")
    a(f"s_cbranch_scc0 {lp}")
    a.label(ok)
    a.vm = []

def get_tag(a, vT, vZ):
    ok = a.newlabel("tok"); lp = a.newlabel("tlp")
    a(f"s_mov_b32 s63, {SPIN}")
    a.label(lp)
    a(f"ds_read_b32 v{vT}, v{vZ} offset:{L_TAG}")
    a("s_waitcnt lgkmcnt(0)")
    a(f"v_readfirstlane_b32 s62, v{vT}")
    a("s_cmp_lg_u32 s62, 0")
    a(f"s_cbranch_scc1 {ok}")
    a("s_sleep 1")
    a("s_sub_u32 s63, s63, 1")
    a(f"s_cbranch_scc0 {lp}")
    a.label(ok)
    a.lg = []

def gen(name, st=None, xmap="8x4", endstamp=False):
    a = Asm()
    S_ = (lambda i, cyc=False: st(a, i, cyc)) if st else (lambda i, cyc=False: None)
    a.raw(f".globl {name}\n.p2align 8\n.type {name},@function")
    a.label(name)
    a("s_cmp_ge_u32 s2, 256")
    a("s_cbranch_scc1 L_end")
    if st: st.init(a); S_(0)
    a("s_load_dwordx16 s[64:79], s[0:1], 0")
    a("s_load_dwordx8 s[80:87], s[0:1], 64")
    LANE, L16, TA, TB, ZERO = 1, 2, 3, 4, 5
    a("v_lshrrev_b32 v3, 6, v0")
    a(f"v_and_b32 v{LANE}, 63, v0")
    a("v_readfirstlane_b32 s6, v3")
    a(f"v_lshlrev_b32 v{L16}, 4, v{LANE}")
    a(f"v_mov_b32 v{ZERO}, 0")
    if xmap == "8x4":
        a("s_bfe_u32 s4, s2, 0x20001")
        a("s_lshl_b32 s4, s4, 3")
        a("s_lshr_b32 s7, s2, 5")
        a("s_add_u32 s4, s4, s7")
        a("s_and_b32 s5, s2, 1")
        a("s_lshl_b32 s5, s5, 2")
        a("s_bfe_u32 s7, s2, 0x20003")
        a("s_add_u32 s5, s5, s7")
        NSH = 8
    elif xmap == "4x8":
        a("s_and_b32 s4, s2, 7"); a("s_lshl_b32 s4, s4, 2"); a("s_lshr_b32 s7, s2, 6"); a("s_add_u32 s4, s4, s7")
        a("s_bfe_u32 s5, s2, 0x30003")
        NSH = 4
    a("s_and_b32 s3, s6, 3")
    a(f"v_lshrrev_b32 v{TA}, 3, v{LANE}")
    a(f"v_mul_u32_u24 v{TA}, 1280, v{TA}")
    a(f"v_and_b32 v{TB}, 7, v{LANE}")
    a(f"v_lshl_add_u32 v6, v{TB}, 4, v{TA}")
    a("s_lshl_b32 s7, s4, 3")
    a("s_add_u32 s7, s7, s6")
    a("s_mul_i32 s7, s7, 10240")
    a("s_waitcnt lgkmcnt(0)")
    a("s_or_b32 s9, s2, s6")
    a("s_cmp_lg_u32 s9, 0")
    a("s_cbranch_scc1 L_notagpub")
    a("s_memrealtime s[60:61]")
    srd(a, 56, P_DBG, 256)
    a("s_waitcnt lgkmcnt(0)")
    a("s_or_b32 s60, s60, 1")
    a("v_mov_b32 v8, s60")
    a("s_mov_b64 exec, 1")
    a(f"buffer_store_dword v8, v{ZERO}, s[56:59], 0 offen sc1")
    a("s_mov_b64 exec, -1")
    a.label("L_notagpub")
    srd(a, 8, P_X, 2048 * 1280)
    X = 16; U = 64
    for i in range(10):
        a.vmem(f"buffer_load_dwordx4 {vr(X+4*i,4)}, v6, s[8:11], s7 offen offset:{128*i}", ("x", i))
    a(f"v_lshlrev_b32 v7, 2, v{LANE}")
    a("s_cmp_lg_u32 s6, 0")
    a("s_cbranch_scc1 L_nozero")
    a(f"ds_write_b32 v7, v{ZERO}")
    a.label("L_nozero")
    a("s_cmp_ge_u32 s6, 4")
    a("s_cbranch_scc1 L_g_pre")
    WQO = 9
    srd(a, 12, P_WQ, 640 * 1280)
    a(f"v_mul_u32_u24 v{TA}, 171, v{LANE}")
    a(f"v_lshrrev_b32 v{TA}, 9, v{TA}")
    a(f"v_mul_u32_u24 v{TB}, 3, v{TA}")
    a(f"v_sub_u32 v{TB}, v{LANE}, v{TB}")
    a(f"v_mul_u32_u24 v{TA}, 1280, v{TA}")
    a(f"v_lshl_add_u32 v{WQO}, v{TB}, 4, v{TA}")
    a("s_lshl_b32 s24, s5, 2")
    a("s_add_u32 s24, s24, s3")
    a("s_mul_i32 s25, s24, 40")
    a("s_mul_i32 s26, s3, 6144")
    a(f"s_add_u32 s26, s26, {L_R1}")
    a("s_mov_b64 s[28:29], 0xffffffffffff") if False else (a("s_mov_b32 s28, -1"), a("s_mov_b32 s29, 0xffff"))
    a("s_mov_b64 exec, s[28:29]")
    sv_vm = list(a.vm)
    def wq_dma(ks, toggle=True):
        if toggle: a("s_mov_b64 exec, s[28:29]")
        a(f"s_add_u32 m0, s26, {(ks%8)*768}")
        a("s_nop 0")
        a.vmem(f"buffer_load_dwordx4 v{WQO}, s[12:15], s25 offen lds", ("wq", ks))
        a("s_add_u32 s25, s25, 20480")
        if toggle: a("s_mov_b64 exec, -1")
    for ks in range(8): wq_dma(ks, False)
    a("s_mov_b64 exec, -1")
    R = 640 // NSH // 4
    a(f"s_and_b32 s30, s4, {NSH-1}")
    a("s_lshl_b32 s30, s30, 2")
    a("s_add_u32 s30, s30, s3")
    a(f"s_mul_i32 s30, s30, {R*1280}")
    a("s_mul_i32 s31, s5, 160")
    a("s_add_u32 s30, s30, s31")
    a(f"v_lshrrev_b32 v{TA}, 1, v{LANE}")
    a(f"v_min_u32 v{TA}, {R-1}, v{TA}")
    a(f"v_mul_u32_u24 v{TA}, 1280, v{TA}")
    a(f"v_and_b32 v{TB}, 1, v{LANE}")
    a(f"v_mul_u32_u24 v{TB}, 156, v{TB}")
    a(f"v_add_u32 v{TA}, v{TA}, v{TB}")
    for i in range((R + 31) // 32):
        a.vmem(f"buffer_load_dword v10, v{TA}, s[12:15], s30 offen", "warm")
        if i + 1 < (R + 31) // 32: a("s_add_u32 s30, s30, 40960")
    vm_a = list(a.vm)
    a("s_branch L_ln")
    a.label("L_g_pre")
    a.vm = list(sv_vm)
    a("s_cmp_ge_u32 s3, 2")
    a(f"s_cselect_b32 s12, s{P_WV}, s{P_WK}")
    a(f"s_cselect_b32 s13, s{P_WV+1}, s{P_WK+1}")
    a("s_mov_b32 s14, 25600"); a("s_mov_b32 s15, 0x00020000")
    a(f"s_cselect_b32 s24, {L_WV-L_WK}, 0")
    a(f"s_add_u32 s24, s24, {L_WK}")
    a("s_and_b32 s25, s3, 1")
    a("s_lshl_b32 s25, s25, 10")
    a("s_add_u32 s24, s24, s25")
    for j in range(13):
        a(f"s_add_u32 m0, s24, {j*2048}")
        a("s_nop 0")
        a.vmem(f"buffer_load_dwordx4 v{L16}, s[12:15], s25 offen lds", "wkv")
        a("s_add_u32 s25, s25, 2048")
    srd(a, 16, P_WG, 640 * 3072)
    srd(a, 20, P_WU, 640 * 3072)
    a(f"s_and_b32 s30, s4, {NSH-1}")
    a("s_lshl_b32 s30, s30, 2")
    a("s_add_u32 s30, s30, s3")
    a(f"s_mul_i32 s30, s30, {R*3072}")
    a("s_mul_i32 s31, s5, 384")
    a("s_add_u32 s30, s30, s31")
    a(f"v_mul_u32_u24 v{TA}, 171, v{LANE}")
    a(f"v_lshrrev_b32 v{TA}, 9, v{TA}")
    a(f"v_mul_u32_u24 v{TB}, 3, v{TA}")
    a(f"v_sub_u32 v{TB}, v{LANE}, v{TB}")
    a(f"v_min_u32 v{TA}, 19, v{TA}")
    a(f"v_mul_u32_u24 v{TA}, 3072, v{TA}")
    a(f"v_lshl_add_u32 v{TA}, v{TB}, 7, v{TA}")
    registers_warm = []
    for i in range(R // 20):
        a.vmem(f"buffer_load_dword v10, v{TA}, s[16:19], s30 offen", "warm")
        a.vmem(f"buffer_load_dword v10, v{TA}, s[20:23], s30 offen", "warm")
        if i + 1 < R // 20: a("s_add_u32 s30, s30, 61440")
    vm_g = list(a.vm)
    a.label("L_ln")
    na, ng = len(vm_a) - len(sv_vm), len(vm_g) - len(sv_vm)
    a.vm = list(sv_vm) + ["other"] * min(na, ng)
    a.done.add("other")
    SUM, SQ = 12, 14
    for i in range(10):
        a.wait(vm=("x", i))
        if i == 0: S_(1)
        for d in range(4):
            a(f"v_lshlrev_b32 v{U+8*i+2*d}, 16, v{X+4*i+d}")
            a(f"v_and_b32 v{U+8*i+2*d+1}, 0xffff0000, v{X+4*i+d}")
        for d in range(4):
            p = vr(U + 8 * i + 2 * d, 2)
            if i == 0 and d == 0:
                a(f"v_pk_mul_f32 {vr(SQ,2)}, {p}, {p}")
                a(f"v_mov_b32 v{SUM}, v{U}"); a(f"v_mov_b32 v{SUM+1}, v{U+1}")
            else:
                a(f"v_pk_add_f32 {vr(SUM,2)}, {vr(SUM,2)}, {p}")
                a(f"v_pk_fma_f32 {vr(SQ,2)}, {p}, {p}, {vr(SQ,2)}")
    srd(a, 88, P_DBG, 256)
    a("s_cmp_lg_u32 s6, 4")
    a("s_cbranch_scc1 L_notagld")
    a(f"buffer_load_dword v11, v{ZERO}, s[88:91], 0 offen sc1")
    a.label("L_notagld")
    a(f"v_add_f32 v{SUM}, v{SUM}, v{SUM+1}")
    a(f"v_add_f32 v{SQ}, v{SQ}, v{SQ+1}")
    a("s_nop 0")
    for ctl in ("quad_perm:[1,0,3,2]", "quad_perm:[2,3,0,1]", "row_half_mirror"):
        a(f"v_add_f32_dpp v{SUM}, v{SUM}, v{SUM} {ctl} row_mask:0xf bank_mask:0xf")
        a(f"v_add_f32_dpp v{SQ}, v{SQ}, v{SQ} {ctl} row_mask:0xf bank_mask:0xf")
        a("s_nop 0")
    a(f"v_mul_f32 v{SUM}, 0x{f32hex(1.0/640):08x}, v{SUM}")
    a(f"v_mul_f32 v{SQ}, 0x{f32hex(1.0/640):08x}, v{SQ}")
    a(f"v_fma_f32 v{SQ}, -v{SUM}, v{SUM}, v{SQ}")
    a(f"v_max_f32 v{SQ}, 0, v{SQ}")
    a(f"v_add_f32 v{SQ}, 0x{f32hex(1e-5):08x}, v{SQ}")
    a(f"v_rsq_f32 v{SQ}, v{SQ}")
    a("s_lshr_b32 s30, s6, 2")
    a(f"s_mul_i32 s30, s30, {XNT}")
    a("s_lshl_b32 s31, s3, 7")
    a("s_add_u32 s30, s30, s31")
    a(f"s_add_u32 s30, s30, {L_XN}")
    a(f"v_mul_f32 v{SUM}, v{SUM}, v{SQ}")
    a(f"v_mov_b32 v{SQ+1}, v{SQ}")
    a(f"v_sub_f32 v{SUM}, 0, v{SUM}")
    a(f"v_and_b32 v{TA}, 7, v{LANE}")
    a(f"v_mov_b32 v{SUM+1}, v{SUM}")
    a(f"v_mul_u32_u24 v{TA}, 528, v{TA}")
    a(f"v_lshrrev_b32 v{TB}, 3, v{LANE}")
    a(f"v_lshl_add_u32 v{TA}, v{TB}, 4, v{TA}")
    a(f"v_add_u32 v{TA}, s30, v{TA}")
    for i in range(10):
        for d in range(4):
            p = vr(U + 8 * i + 2 * d, 2)
            a(f"v_pk_fma_f32 {p}, {p}, {vr(SQ,2)}, {vr(SUM,2)}")
        for d in range(4):
            a(f"v_cvt_pk_bf16_f32 v{X+4*i+d}, v{U+8*i+2*d}, v{U+8*i+2*d+1}")
        a.lds(f"ds_write_b128 v{TA}, {vr(X+4*i,4)} offset:{i*4224}", "xw")
    a("s_cmp_ge_u32 s6, 4")
    a("s_cbranch_scc1 L_g_role")
    a.vm = vm_a[len(sv_vm):]
    a.wait(lg="all")
    a("s_barrier")
    S_(2)
    a("s_setprio 2")
    FAD, FWA, FV, AK1, AK2, AV, BK2, BV, WQA, SC2, XA0, XA1 = 6, 7, 8, 10, 11, 12, 13, 14, 15, 16, 17, 18
    PT = 20
    QA = [24, 28]; QB = [32, 34]
    K1f = [36, 40]; K2f = [44, 46]
    Vf = [[48, 52], [56, 60]]
    P = [64, 72]
    S = [80, 96]; O = [112, 128]; NEG = [144, 160]
    QACC = [176, 192]; QF = 208
    srd(a, 16, P_WS, KV_BYTES, WS_KV)
    srd(a, 20, P_WS, O_BYTES, WS_O)
    srd(a, 56, P_WS, FL_BYTES, WS_FL)
    a(f"v_and_b32 v{TA}, 3, v{LANE}")
    a(f"v_lshlrev_b32 v{FAD}, 2, v{TA}")
    a("s_lshl_b32 s30, s3, 2")
    a(f"v_mov_b32 v{FWA}, s30")
    a(f"v_lshrrev_b32 v{TB}, 5, v{LANE}")
    a(f"v_bfe_u32 v{WQA}, v{LANE}, 2, 2")
    a(f"v_lshl_add_u32 v{WQA}, v{TB}, 3, v{WQA}")
    a(f"v_mul_u32_u24 v{WQA}, 48, v{WQA}")
    a(f"v_mul_u32_u24 v{XA0}, 528, v{TB}")
    a(f"v_and_b32 v{TB}, 1, v{LANE}")
    a(f"v_lshlrev_b32 v{TB}, 4, v{TB}")
    a(f"v_bfe_u32 v{TA}, v{LANE}, 1, 1")
    a(f"v_lshl_add_u32 v{TB}, v{TA}, 3, v{TB}")
    a(f"v_and_b32 v{TA}, 16, v{LANE}")
    a(f"v_cmp_eq_u32 vcc, 0, v{TA}")
    a(f"v_mov_b32 v{TA}, 32")
    a("s_nop 0")
    a(f"v_cndmask_b32 v{TB}, v{TA}, v{TB}, vcc")
    a(f"v_add3_u32 v{WQA}, v{WQA}, v{TB}, s26")
    a(f"v_and_b32 v{TA}, 31, v{LANE}")
    a(f"v_lshl_add_u32 v{XA0}, v{TA}, 4, v{XA0}")
    a(f"v_add_u32 v{XA0}, {L_XN}, v{XA0}")
    a(f"v_add_u32 v{XA1}, {XNT}, v{XA0}")
    for t in range(2):
        for i in range(16): a(f"v_mov_b32 v{QACC[t]+i}, 0")
    def qreads(ks):
        b = QF + (ks % 3) * 12
        a.wait(vm=("wq", ks))
        for hf in range(2):
            a.lds(f"ds_read_b64_tr_b16 {vr(b+2*hf,2)}, v{WQA} offset:{(ks%8)*768+hf*192}", ("qa", ks))
        a.lds(f"ds_read_b128 {vr(b+4,4)}, v{XA0} offset:{ks*1056}", ("qa", ks))
        a.lds(f"ds_read_b128 {vr(b+8,4)}, v{XA1} offset:{ks*1056}", ("qa", ks))
    qreads(0); qreads(1)
    for ks in range(40):
        if ks + 2 < 40: qreads(ks + 2)
        a.wait(lg=("qa", ks))
        b = QF + (ks % 3) * 12
        a(f"v_mfma_f32_32x32x16_bf16 {vr(QACC[0],16)}, {vr(b,4)}, {vr(b+4,4)}, {vr(QACC[0],16)}")
        if ks + 8 < 40: wq_dma(ks + 8)
        a(f"v_mfma_f32_32x32x16_bf16 {vr(QACC[1],16)}, {vr(b,4)}, {vr(b+8,4)}, {vr(QACC[1],16)}")
    S_(3)
    set_flag(a, FV, FWA, 1)
    a(f"v_and_b32 v{TA}, 31, v{LANE}")
    a(f"v_lshlrev_b32 v{BK2}, 3, v{TA}")
    a(f"v_add_u32 v{BK2}, 1024, v{BK2}")
    a(f"v_min_u32 v{TA}, 21, v{TA}")
    a(f"v_lshlrev_b32 v{TA}, 4, v{TA}")
    a(f"v_lshrrev_b32 v{TB}, 5, v{LANE}")
    a(f"v_mul_u32_u24 v{TB}, 384, v{TB}")
    a(f"v_add_u32 v{BV}, v{TA}, v{TB}")
    a(f"v_add_u32 v{BV}, 1280, v{BV}")
    a(f"v_cmp_gt_u32 vcc, 32, v{LANE}")
    a(f"v_mov_b32 v{TA}, 0x{f32hex(QSCALE):08x}")
    a(f"s_mov_b32 s31, 0x{f32hex(QSCALE):08x}")
    a(f"v_cndmask_b32 v{SC2}, 0, v{TA}, vcc")
    for i in range(8):
        a(f"v_mov_b32 v{P[1]+i}, 0"); a(f"v_mov_b32 v{Vf[1][0]+i}, 0")
    for i in range(32): a(f"v_mov_b32 v{O[0]+i}, 0")
    a(f"v_add_u32 v{AK1}, {L_R1}, v{L16}")
    a(f"v_add_u32 v{AK2}, {L_R1}, v{BK2}")
    a(f"v_add_u32 v{AV}, {L_R1}, v{BV}")
    for t in range(2):
        for i in range(8): a(f"v_mul_f32 v{QACC[t]+i}, s31, v{QACC[t]+i}")
        for i in range(8, 12): a(f"v_mul_f32 v{QACC[t]+i}, v{SC2}, v{QACC[t]+i}")
        for i in range(4): a(f"v_cvt_pk_bf16_f32 v{QA[t]+i}, v{QACC[t]+2*i}, v{QACC[t]+2*i+1}")
        for i in range(2): a(f"v_cvt_pk_bf16_f32 v{QB[t]+i}, v{QACC[t]+8+2*i}, v{QACC[t]+9+2*i}")
    get_tag(a, FV, ZERO)
    a("s_cmp_lg_u32 s3, 0")
    a("s_cbranch_scc1 L_a_kvwait")
    poll_global(a, PT, 4, L16, 56, FL_KV, "s62")
    set_flag(a, FV, ZERO, 1, off=L_KVOK)
    a.label("L_a_kvwait")
    a(f"v_mov_b32 v{TA}, {L_KVOK}")
    poll_lds(a, FV, TA, 1, "fl")
    poll_lds(a, FV, FAD, 1, "fl")
    S_(4)
    a.wait(vm="all")
    a("s_bfe_u32 s28, s2, 0x40003")
    a(f"s_mul_i32 s28, s28, {KVSLOT}")
    a("s_mul_i32 s29, s3, 3072")
    a("s_add_u32 s28, s28, s29")
    a(f"s_add_u32 s29, s29, {L_R1}")
    def kv_dma(tag, m0src):
        a(f"s_mov_b32 m0, {m0src}")
        a(f"s_add_u32 s27, s28, {KVSLOT - KV_BYTES & 0xffffffff}")
        for i in range(3):
            a.vmem(f"buffer_load_dwordx4 v{L16}, s[16:19], s28 offen offset:{i*1024} sc1 lds", tag)
        a(f"s_add_u32 s28, s28, {KVSLOT}")
        a(f"s_cmp_ge_u32 s28, {KV_BYTES}")
        a("s_cselect_b32 s28, s27, s28")
    kv_dma(("kv", 0), "s29")
    a(f"s_add_u32 s32, s29, {KVSLOT}")
    kv_dma(("kv", 1), "s32")
    a.wait(vm=("kv", 0))
    set_flag(a, FV, FWA, 2)
    poll_lds(a, FV, FAD, 2, "fl")
    def kread(buf, t, tag):
        a.lds(f"ds_read_b128 {vr(K1f[buf],4)}, v{AK1} offset:{t*3072}", tag)
        a.lds(f"ds_read_b64 {vr(K2f[buf],2)}, v{AK2} offset:{t*3072}", tag)
    def vread(buf, t, tag):
        a.lds(f"ds_read_b128 {vr(Vf[buf][0],4)}, v{AV} offset:{t*3072}", tag)
        a.lds(f"ds_read_b128 {vr(Vf[buf][1],4)}, v{AV} offset:{t*3072+768}", tag)
    kread(0, 0, "k0"); kread(1, 1, "rd"); vread(0, 0, "rd")
    a.wait(lg="k0")
    for t in range(2):
        a(f"v_mfma_f32_32x32x16_bf16 {vr(S[t],16)}, {vr(K1f[0],4)}, {vr(QA[t],4)}, 0")
        a(f"v_mfma_f32_32x32x8_bf16 {vr(S[t],16)}, {vr(K2f[0],2)}, {vr(QB[t],2)}, {vr(S[t],16)}")
    a("s_nop 7"); a("s_nop 3")
    def rowmax(t, dst, init):
        s = S[t]
        if init:
            a(f"v_max3_f32 v{dst}, v{s}, v{s+1}, v{s+2}")
            for i in range(3, 15, 2): a(f"v_max3_f32 v{dst}, v{dst}, v{s+i}, v{s+i+1}")
            a(f"v_max_f32 v{dst}, v{dst}, v{s+15}")
        else:
            for i in range(0, 16, 2): a(f"v_max3_f32 v{dst}, v{dst}, v{s+i}, v{s+i+1}")
    def make_neg(t, m):
        a(f"v_mov_b32 v{TB}, v{m}")
        a("s_nop 1")
        a(f"v_permlane32_swap_b32 v{m}, v{TB}")
        a("s_nop 1")
        a(f"v_max_f32 v{m}, v{m}, v{TB}")
        for i in range(16): a(f"v_sub_f32 v{NEG[t]+i}, 0, v{m}")
    for t in range(2):
        rowmax(t, TA, True); make_neg(t, TA)
    a("s_nop 1")
    a(f"v_mfma_f32_32x32x16_bf16 {vr(S[0],16)}, {vr(K1f[0],4)}, {vr(QA[0],4)}, {vr(NEG[0],16)}")
    a(f"v_mfma_f32_32x32x8_bf16 {vr(S[0],16)}, {vr(K2f[0],2)}, {vr(QB[0],2)}, {vr(S[0],16)}")
    a("s_mov_b32 s34, 3")
    a(f"s_mov_b32 s35, {L_R1 + KVSLOT}")
    a(f"s_add_u32 s32, s29, {2*KVSLOT}")
    a(f"s_add_u32 s33, s29, {3*KVSLOT}")
    a("s_nop 7")
    a.vm = [("kv", "c+1")] * 3; a.done.add(("kv", "c+1"))
    a.lg = ["rd"] * 4
    top_vm, top_lg = list(a.vm), list(a.lg)
    S_(5); S_(10, True)
    a.raw(".p2align 6")
    a.label("L_a_loop")
    for sl in range(8):
        kt, aa = sl // 2, sl % 2
        if sl == 2:
            a.wait(vm=("kv", "c+1"))
            set_flag(a, FV, FWA, "s34")
        if sl == 4:
            a.lds(f"ds_read_b32 v{FV}, v{FAD}", "fl")
        if aa == 1:
            a.wait(lg="rd")
            if sl == 5:
                poll_lds(a, FV, FAD, "s34", "fl", issue=False)
                a(f"v_add_u32 v{AK1}, s35, v{L16}")
                a(f"v_add_u32 v{AK2}, s35, v{BK2}")
            if sl == 7:
                a(f"v_add_u32 v{AV}, s35, v{BV}")
            kread(kt % 2, (kt + 2) % 4, "rd")
            vread((kt + 1) % 2, (kt + 1) % 4, "rd")
            if sl == 5:
                kv_dma(("kv", "c+2"), "s32")
                a(f"s_add_u32 s32, s32, {KVSLOT}")
                a("s_cmp_ge_u32 s32, s33")
                a("s_cselect_b32 s32, s29, s32")
            if sl == 7:
                a(f"s_add_u32 s35, s35, {KVSLOT}")
                a(f"s_cmp_ge_u32 s35, {L_R2}")
                a(f"s_cselect_b32 s35, {L_R1}, s35")
                a("s_add_u32 s34, s34, 1")
        kb = (kt if aa == 0 else kt + 1) % 2
        vb = (kt if aa == 1 else kt - 1) % 2
        o = 1 - aa
        s, p = S[aa], P[aa]
        e = lambda r: a(f"v_exp_f32 v{s+r}, v{s+r}")
        c = lambda i: a(f"v_cvt_pk_bf16_f32 v{p+i}, v{s+2*i}, v{s+2*i+1}")
        a(f"v_mfma_f32_32x32x16_bf16 {vr(S[o],16)}, {vr(K1f[kb],4)}, {vr(QA[o],4)}, {vr(NEG[o],16)}")
        e(0); e(1); e(2); e(3)
        a(f"v_mfma_f32_32x32x8_bf16 {vr(S[o],16)}, {vr(K2f[kb],2)}, {vr(QB[o],2)}, {vr(S[o],16)}")
        e(4); e(5); c(0); e(6); e(7); c(1)
        a(f"v_mfma_f32_32x32x16_bf16 {vr(O[o],16)}, {vr(Vf[vb][0],4)}, {vr(P[o],4)}, {vr(O[o],16)}")
        e(8); e(9); c(2); e(10); e(11); c(3)
        a(f"v_mfma_f32_32x32x16_bf16 {vr(O[o],16)}, {vr(Vf[vb][1],4)}, {vr(P[o]+4,4)}, {vr(O[o],16)}")
        e(12); e(13); c(4); e(14); e(15); c(5); c(6); c(7)
    a("s_cmp_lt_u32 s34, 19")
    a("s_cbranch_scc1 L_a_loop")
    assert [("kv", "c+1") if t == ("kv", "c+2") else t for t in a.vm] == top_vm, (a.vm, top_vm)
    assert a.lg == top_lg, (a.lg, top_lg)
    a("s_nop 0")
    a(f"v_mfma_f32_32x32x16_bf16 {vr(O[1],16)}, {vr(Vf[1][0],4)}, {vr(P[1],4)}, {vr(O[1],16)}")
    a(f"v_mfma_f32_32x32x16_bf16 {vr(O[1],16)}, {vr(Vf[1][1],4)}, {vr(P[1]+4,4)}, {vr(O[1],16)}")
    if st:
        S_(6); S_(11, True); a("s_sub_u32 s54, s55, s54"); a("s_mov_b32 s55, 0")
    a("s_lshl_b32 s36, s4, 1")
    a("s_mul_i32 s36, s36, 40960")
    a("s_lshr_b32 s37, s24, 3")
    a("s_mul_i32 s37, s37, 10240")
    a("s_add_u32 s36, s36, s37")
    a("s_and_b32 s37, s24, 7")
    a("s_lshl_b32 s38, s37, 10")
    a("s_add_u32 s38, s38, s36")
    a("s_lshr_b32 s39, s37, 1")
    a("s_lshl_b32 s39, s39, 9")
    a("s_and_b32 s37, s37, 1")
    a("s_lshl_b32 s37, s37, 3")
    a("s_add_u32 s39, s39, s37")
    a("s_add_u32 s39, s39, s36")
    a("s_add_u32 s39, s39, 8192")
    a("s_add_u32 s40, s38, 40960")
    a("s_add_u32 s41, s39, 40960")
    a(f"v_add_f32_e64 v{TA}, |v{O[0]}|, |v{O[1]}|")
    for i in range(1, 12):
        a(f"v_add_f32_e64 v{TA}, v{TA}, |v{O[0]+i}|")
        a(f"v_add_f32_e64 v{TA}, v{TA}, |v{O[1]+i}|")
    a(f"s_mov_b32 s42, 0x{f32hex(2.0**100):08x}")
    a(f"v_cmp_ngt_f32 vcc, s42, v{TA}")
    a("s_cmp_eq_u64 vcc, 0")
    a("s_cbranch_scc0 L_a_fallback")
    a.label("L_a_norm")
    a(f"v_mov_b32 v{PT}, {BIG}")
    a(f"v_cmp_gt_u32 vcc, 32, v{LANE}")
    for t in range(2):
        a(f"v_mov_b32 v{TA}, v{O[t]+8}")
        a(f"v_mov_b32 v{TB}, v{O[t]+8}")
        if t == 0: a(f"v_cndmask_b32 v{PT}, v{PT}, v{L16}, vcc"); a("s_nop 0")
        else: a("s_nop 1")
        a(f"v_permlane32_swap_b32 v{TA}, v{TB}")
        a("s_nop 1")
        a(f"v_rcp_f32 v{TB}, v{TB}")
        a("s_nop 0")
        for i in range(12): a(f"v_mul_f32 v{O[t]+i}, v{O[t]+i}, v{TB}")
        for i in range(6): a(f"v_cvt_pk_bf16_f32 v{S[t]+i}, v{O[t]+2*i}, v{O[t]+2*i+1}")
        a(f"buffer_store_dwordx4 {vr(S[t],4)}, v{L16}, s[20:23], s{38+2*t} offen sc1")
        a(f"buffer_store_dwordx2 {vr(S[t]+4,2)}, v{PT}, s[20:23], s{39+2*t} offen sc1")
    a("s_lshl_b32 s36, s4, 5")
    a("s_add_u32 s36, s36, s24")
    a("s_lshl_b32 s36, s36, 4")
    a(f"s_add_u32 s36, s36, {FL_O}")
    a(f"v_mov_b32 v{TA}, s62")
    a("s_waitcnt vmcnt(0)")
    a("s_mov_b64 exec, 1")
    a(f"buffer_store_dword v{TA}, v{ZERO}, s[56:59], s36 offen sc1")
    a("s_mov_b64 exec, -1")
    if st:
        a("s_waitcnt vmcnt(0)"); S_(9); st.flush(a, P_WS, 6, 20)
    a("s_endpgm")
    a.label("L_a_fallback")
    a("s_waitcnt vmcnt(0) lgkmcnt(0)")
    M = [PT + 1, PT + 2]
    a(f"v_mov_b32 v{M[0]}, 0xff800000"); a(f"v_mov_b32 v{M[1]}, 0xff800000")
    a("s_mov_b32 s43, 0")
    a.label("L_a_fb1")
    a(f"buffer_load_dwordx4 {vr(K1f[0],4)}, v{L16}, s[16:19], s43 offen sc1")
    a(f"buffer_load_dwordx2 {vr(K2f[0],2)}, v{BK2}, s[16:19], s43 offen sc1")
    a("s_waitcnt vmcnt(0)")
    for t in range(2):
        a(f"v_mfma_f32_32x32x16_bf16 {vr(S[t],16)}, {vr(K1f[0],4)}, {vr(QA[t],4)}, 0")
        a(f"v_mfma_f32_32x32x8_bf16 {vr(S[t],16)}, {vr(K2f[0],2)}, {vr(QB[t],2)}, {vr(S[t],16)}")
    a("s_nop 7"); a("s_nop 7")
    for t in range(2): rowmax(t, M[t], False)
    a("s_add_u32 s43, s43, 3072")
    a(f"s_cmp_lt_u32 s43, {KV_BYTES}")
    a("s_cbranch_scc1 L_a_fb1")
    for t in range(2): make_neg(t, M[t])
    for i in range(32): a(f"v_mov_b32 v{O[0]+i}, 0")
    a("s_mov_b32 s43, 0")
    a.label("L_a_fb2")
    a(f"buffer_load_dwordx4 {vr(K1f[0],4)}, v{L16}, s[16:19], s43 offen sc1")
    a(f"buffer_load_dwordx2 {vr(K2f[0],2)}, v{BK2}, s[16:19], s43 offen sc1")
    a(f"buffer_load_dwordx4 {vr(Vf[0][0],4)}, v{BV}, s[16:19], s43 offen sc1")
    a(f"buffer_load_dwordx4 {vr(Vf[0][1],4)}, v{BV}, s[16:19], s43 offen offset:768 sc1")
    a("s_waitcnt vmcnt(0)")
    for t in range(2):
        a(f"v_mfma_f32_32x32x16_bf16 {vr(S[t],16)}, {vr(K1f[0],4)}, {vr(QA[t],4)}, {vr(NEG[t],16)}")
        a(f"v_mfma_f32_32x32x8_bf16 {vr(S[t],16)}, {vr(K2f[0],2)}, {vr(QB[t],2)}, {vr(S[t],16)}")
    a("s_nop 7"); a("s_nop 7")
    for t in range(2):
        for r in range(16): a(f"v_exp_f32 v{S[t]+r}, v{S[t]+r}")
        a("s_nop 0")
        for i in range(8): a(f"v_cvt_pk_bf16_f32 v{P[t]+i}, v{S[t]+2*i}, v{S[t]+2*i+1}")
        a("s_nop 1")
        a(f"v_mfma_f32_32x32x16_bf16 {vr(O[t],16)}, {vr(Vf[0][0],4)}, {vr(P[t],4)}, {vr(O[t],16)}")
        a(f"v_mfma_f32_32x32x16_bf16 {vr(O[t],16)}, {vr(Vf[0][1],4)}, {vr(P[t]+4,4)}, {vr(O[t],16)}")
    a("s_add_u32 s43, s43, 3072")
    a(f"s_cmp_lt_u32 s43, {KV_BYTES}")
    a("s_cbranch_scc1 L_a_fb2")
    a("s_nop 7"); a("s_nop 7")
    a("s_branch L_a_norm")
    a.label("L_g_role")
    a.vm = vm_g[len(sv_vm):]
    a.lg = ["xw"] * 10
    import grole
    grole.gen_g(a, S_, st, globals(), dict(LANE=LANE, L16=L16, TA=TA, TB=TB, ZERO=ZERO, NSH=NSH, endstamp=endstamp))
    a.label("L_end")
    a("s_endpgm")
    return a.text(), kdesc(name, 256, 102)
```

```python
from asmlib import *

def gen_g(a, S_, st, G, R):
    globals().update({k: v for k, v in G.items() if k.isupper() or k in ("srd", "poll_lds", "set_flag", "poll_global", "get_tag", "f32hex")})
    LANE, L16, TA, TB, ZERO = R["LANE"], R["L16"], R["TA"], R["TB"], R["ZERO"]
    TAG = 11
    a.wait(vm="wkv", lg="all")
    a("s_barrier")
    S_(2)
    FAD, FWA, FV = 6, 7, 8
    a(f"v_and_b32 v{TA}, 3, v{LANE}")
    a(f"v_lshlrev_b32 v{FAD}, 2, v{TA}")
    a(f"v_add_u32 v{FAD}, {L_FLAGG}, v{FAD}")
    a("s_lshl_b32 s30, s3, 2")
    a(f"s_add_u32 s30, s30, {L_FLAGG}")
    a(f"v_mov_b32 v{FWA}, s30")
    GQ, WA, XA, J = 12, 13, 14, 15
    a(f"v_lshrrev_b32 v{GQ}, 4, v{LANE}")
    a(f"v_bfe_u32 v{WA}, v{LANE}, 2, 2")
    a(f"v_lshl_add_u32 v{WA}, v{GQ}, 3, v{WA}")
    a(f"v_mul_u32_u24 v{WA}, 40, v{WA}")
    a(f"v_lshlrev_b32 v{TA}, 3, v{TA}")
    a("s_cmp_ge_u32 s3, 2")
    a("s_cselect_b32 s24, 0, -1")
    a("s_cselect_b32 s25, 32, 0")
    a("s_bitcmp1_b32 s3, 0")
    a(f"s_cselect_b32 s26, {L_WV-L_WK}, 0")
    a(f"s_add_u32 s26, s26, {L_WK}")
    a("s_add_u32 s25, s25, s26")
    a(f"v_and_b32 v{TA}, s24, v{TA}")
    a(f"v_add3_u32 v{WA}, v{WA}, v{TA}, s25")
    a("s_lshr_b32 s26, s5, 2")
    a(f"s_mul_i32 s26, s26, {XNT}")
    a("s_and_b32 s27, s5, 3")
    a("s_lshl_b32 s27, s27, 7")
    a("s_add_u32 s26, s26, s27")
    a(f"s_add_u32 s26, s26, {L_XN}")
    a(f"v_and_b32 v{TA}, 7, v{LANE}")
    a(f"v_mul_u32_u24 v{XA}, 528, v{GQ}")
    a(f"v_lshl_add_u32 v{XA}, v{TA}, 4, v{XA}")
    a(f"v_add_u32 v{XA}, s26, v{XA}")
    KA = 16
    for i in range(4): a(f"v_mov_b32 v{KA+i}, 0")
    GS = 4
    def reads(g):
        for s in range(g * GS, g * GS + GS):
            b = 64 + ((g % 2) * GS + s % GS) * 8
            a.lds(f"ds_read_b64_tr_b16 v[{b}:{b+1}], v{WA} offset:{s*1280}", ("g", g))
            a.lds(f"ds_read_b64_tr_b16 v[{b+2}:{b+3}], v{WA} offset:{s*1280+160}", ("g", g))
            a.lds(f"ds_read_b128 v[{b+4}:{b+7}], v{XA} offset:{s*2112}", ("g", g))
    srd(a, 24, P_WS, KV_BYTES, WS_KV)
    srd(a, 56, P_WS, FL_BYTES, WS_FL)
    a("s_lshl_b32 s28, s4, 3")
    a("s_add_u32 s28, s28, s5")
    a("s_lshr_b32 s29, s28, 2")
    a("s_mul_i32 s29, s29, 3072")
    a("s_bfe_u32 s30, s28, 0x10001")
    a("s_and_b32 s31, s28, 1")
    a(f"v_and_b32 v{J}, 15, v{LANE}")
    a(f"v_mov_b32 v9, {BIG}")
    a("s_bitcmp1_b32 s3, 0")
    a("s_cbranch_scc1 L_g_v")
    sv = (list(a.vm), list(a.lg))
    for role in ("k", "v"):
        if role == "v":
            a.label("L_g_v"); a.vm, a.lg = list(sv[0]), list(sv[1])
        reads(0)
        for g in range(5):
            a.wait(lg=("g", g))
            if g + 1 < 5: reads(g + 1)
            for s in range(GS):
                b = 64 + ((g % 2) * GS + s) * 8
                if role == "k": a(f"v_mfma_f32_16x16x32_bf16 {vr(KA,4)}, v[{b}:{b+3}], v[{b+4}:{b+7}], {vr(KA,4)}")
                else: a(f"v_mfma_f32_16x16x32_bf16 {vr(KA,4)}, v[{b+4}:{b+7}], v[{b}:{b+3}], {vr(KA,4)}")
        set_flag(a, FV, FWA, 1)
        if role == "k":
            a("s_lshl_b32 s32, s30, 4"); a("s_lshl_b32 s33, s31, 2"); a("s_add_u32 s32, s32, s33")
            a(f"v_lshrrev_b32 v21, 2, v{J}")
            a("v_lshlrev_b32 v21, 3, v21")
            a(f"v_and_b32 v22, 3, v{J}")
            a("v_add3_u32 v21, v21, v22, s32")
            a(f"v_lshrrev_b32 v22, 1, v{GQ}")
            a("v_lshlrev_b32 v22, 9, v22")
            a("v_lshl_add_u32 v22, v21, 4, v22")
            a(f"v_and_b32 v23, 1, v{GQ}")
            a("v_lshl_add_u32 v22, v23, 3, v22")
            a("v_lshlrev_b32 v23, 3, v21")
            a("v_add_u32 v23, 1024, v23")
            a(f"v_cmp_eq_u32 vcc, 0, v{GQ}")
            a("s_nop 1")
            a("v_cndmask_b32 v23, v9, v23, vcc")
            a("s_cmp_ge_u32 s3, 2")
            a("s_cselect_b64 vcc, -1, 0")
            a("v_cndmask_b32 v22, v22, v23, vcc")
            a(f"v_cmp_gt_u32 vcc, 8, v{J}")
            a(f"v_cvt_pk_bf16_f32 v24, v{KA}, v{KA+1}")
            a(f"v_cvt_pk_bf16_f32 v25, v{KA+2}, v{KA+3}")
            a("v_cndmask_b32 v22, v9, v22, vcc")
            a("s_branch L_g_kvst")
        else:
            a("s_mul_i32 s32, s30, 768"); a("s_mul_i32 s33, s31, 384"); a("s_add_u32 s32, s32, s33"); a("s_add_u32 s32, s32, 1280")
            a(f"v_and_b32 v21, 3, v{J}")
            a(f"v_bfe_u32 v22, v{J}, 2, 1")
            a("v_lshl_add_u32 v21, v22, 3, v21")
            a(f"v_bfe_u32 v22, v{J}, 3, 1")
            a("v_lshl_add_u32 v21, v22, 2, v21")
            a(f"v_add_u32 v22, 16, v{J}")
            a("s_cmp_ge_u32 s3, 2")
            a("s_cselect_b64 vcc, -1, 0")
            a("s_cselect_b32 s33, 6, 16")
            a("s_cselect_b32 s34, 4, 99")
            a("s_cselect_b32 s35, 5, 99")
            a("v_cndmask_b32 v21, v21, v22, vcc")
            a("v_lshlrev_b32 v21, 4, v21")
            a(f"v_lshl_add_u32 v21, v{GQ}, 3, v21")
            a("v_add_u32 v21, s32, v21")
            a(f"v_cmp_gt_u32 vcc, s33, v{J}")
            a(f"v_cvt_pk_bf16_f32 v24, v{KA}, v{KA+1}")
            a(f"v_cvt_pk_bf16_f32 v25, v{KA+2}, v{KA+3}")
            a("v_cndmask_b32 v21, v9, v21, vcc")
            a(f"v_cmp_gt_u32 vcc, 2, v{GQ}")
            a("v_mov_b32 v26, 0x3f803f80")
            a("s_nop 0")
            a("v_cndmask_b32 v22, v9, v21, vcc")
            a(f"v_cmp_eq_u32 vcc, s34, v{J}")
            a("s_nop 1")
            a("v_cndmask_b32 v24, v24, v26, vcc")
            a("v_cndmask_b32 v25, v25, v26, vcc")
            a(f"v_cmp_eq_u32 vcc, s35, v{J}")
            a("s_nop 1")
            a(f"v_cndmask_b32 v24, v24, v{ZERO}, vcc")
            a(f"v_cndmask_b32 v25, v25, v{ZERO}, vcc")
    a.label("L_g_kvst")
    a.vmem("buffer_store_dwordx2 v[24:25], v22, s[24:27], s29 offen sc1", "kvst")
    WO0, WO1, WT, XA0, XA1 = 12, 13, 14, 15, 9
    a(f"v_mul_u32_u24 v{TA}, 43, v{LANE}")
    a(f"v_lshrrev_b32 v{TA}, 8, v{TA}")
    a(f"v_mul_u32_u24 v{TB}, 6, v{TA}")
    a(f"v_sub_u32 v{TB}, v{LANE}, v{TB}")
    a(f"v_mul_u32_u24 v{TA}, 3072, v{TA}")
    a(f"v_lshl_add_u32 v{WO0}, v{TB}, 4, v{TA}")
    a(f"v_add_u32 v{WO1}, 64, v{LANE}")
    a(f"v_mul_u32_u24 v{TA}, 43, v{WO1}")
    a(f"v_lshrrev_b32 v{TA}, 8, v{TA}")
    a(f"v_mul_u32_u24 v{TB}, 6, v{TA}")
    a(f"v_sub_u32 v{TB}, v{WO1}, v{TB}")
    a(f"v_mul_u32_u24 v{TA}, 3072, v{TA}")
    a(f"v_lshl_add_u32 v{WO1}, v{TB}, 4, v{TA}")
    a(f"v_subrev_u32 v{WO1}, 1024, v{WO1}")
    a("s_mul_i32 s32, s5, 384")
    a("s_mul_i32 s33, s3, 96")
    a("s_add_u32 s32, s32, s33")
    a(f"s_mul_i32 s33, s3, {WRING}")
    a(f"s_add_u32 s33, s33, {L_R2}")
    a("s_mov_b32 s34, -1"); a("s_mov_b32 s35, 0")
    def w_dma(k):
        sl = (k % 3) * WSLOT
        a(f"s_add_u32 m0, s33, {sl}")
        a("s_nop 0")
        a.vmem(f"buffer_load_dwordx4 v{WO0}, s[16:19], s32 offen lds", ("w", k))
        a("s_mov_b64 exec, s[34:35]")
        a.vmem(f"buffer_load_dwordx4 v{WO1}, s[16:19], s32 offen offset:1024 lds", ("w", k))
        a(f"s_add_u32 m0, s33, {sl+1664}")
        a("s_nop 0")
        a.vmem(f"buffer_load_dwordx4 v{WO1}, s[20:23], s32 offen offset:1024 lds", ("w", k))
        a("s_mov_b64 exec, -1")
        a.vmem(f"buffer_load_dwordx4 v{WO0}, s[20:23], s32 offen lds", ("w", k))
        a("s_add_u32 s32, s32, 49152")
    poll_lds(a, FV, FAD, 1, "fl")
    for k in range(3): w_dma(k)
    a(f"v_lshrrev_b32 v{TB}, 5, v{LANE}")
    a(f"v_bfe_u32 v{WT}, v{LANE}, 2, 2")
    a(f"v_lshl_add_u32 v{WT}, v{TB}, 3, v{WT}")
    a(f"v_mul_u32_u24 v{WT}, 96, v{WT}")
    a(f"v_mul_u32_u24 v{XA0}, 528, v{TB}")
    a(f"v_and_b32 v{TB}, 1, v{LANE}")
    a(f"v_lshl_add_u32 v{WT}, v{TB}, 4, v{WT}")
    a(f"v_bfe_u32 v{TB}, v{LANE}, 1, 1")
    a(f"v_lshl_add_u32 v{WT}, v{TB}, 3, v{WT}")
    a(f"v_bfe_u32 v{TB}, v{LANE}, 4, 1")
    a(f"v_mul_u32_u24 v{TB}, 1664, v{TB}")
    a(f"v_add3_u32 v{WT}, v{WT}, v{TB}, s33")
    a(f"v_and_b32 v{TA}, 31, v{LANE}")
    a(f"v_lshl_add_u32 v{XA0}, v{TA}, 4, v{XA0}")
    a(f"v_add_u32 v{XA0}, {L_XN}, v{XA0}")
    a(f"v_add_u32 v{XA1}, {XNT}, v{XA0}")
    a.wait(vm="kvst")
    a("s_cmp_lg_u32 s3, 0")
    a("s_cbranch_scc1 L_g_notag")
    a(f"s_mov_b32 s63, {SPIN // 16}")
    a.label("L_g_tagchk")
    a(f"v_readfirstlane_b32 s62, v{TAG}")
    a("s_cmp_lg_u32 s62, 0")
    a("s_cbranch_scc1 L_g_tagok")
    a("s_sleep 4")
    a(f"buffer_load_dword v{TAG}, v{ZERO}, s[88:91], 0 offen sc1")
    a("s_waitcnt vmcnt(0)")
    a("s_sub_u32 s63, s63, 1")
    a("s_cbranch_scc0 L_g_tagchk")
    a.label("L_g_tagok")
    set_flag(a, FV, ZERO, "s62", off=L_TAG)
    a.label("L_g_notag")
    a("s_mov_b64 exec, 1")
    a(f"v_mov_b32 v{FV}, 1")
    a(f"ds_add_rtn_u32 v{FV}, v{ZERO}, v{FV} offset:{L_CNTKV}")
    a("s_mov_b64 exec, -1")
    get_tag(a, TA, ZERO)
    a(f"v_readfirstlane_b32 s36, v{FV}")
    a(f"v_mov_b32 v{TA}, s62")
    a("s_cmp_lg_u32 s36, 3")
    a("s_cbranch_scc1 L_g_nokvflag")
    a("s_lshl_b32 s36, s28, 4")
    a("s_mov_b64 exec, 1")
    a(f"buffer_store_dword v{TA}, v{ZERO}, s[56:59], s36 offen sc1")
    a("s_mov_b64 exec, -1")
    a.label("L_g_nokvflag")
    S_(3)
    ACC = [[16 + 16 * (3 * b + t) for t in range(3)] for b in range(2)]
    FR = 112
    for i in range(96): a(f"v_mov_b32 v{16+i}, 0")
    def f1reads(k):
        b = FR + (k % 2) * 20
        a.wait(vm=("w", k))
        a.lds(f"ds_read_b128 {vr(b,4)}, v{XA0} offset:{k*1056}", ("f", k))
        for t in range(3):
            for hf in range(2):
                a.lds(f"ds_read_b64_tr_b16 {vr(b+8+4*t+2*hf,2)}, v{WT} offset:{(k%3)*WSLOT+t*32+hf*384}", ("f", k))
        a.lds(f"ds_read_b128 {vr(b+4,4)}, v{XA1} offset:{k*1056}", ("f", k))
    f1reads(0)
    a.wait(lg=("f", 0))
    w_dma(3)
    for k in range(40):
        if k + 1 < 40: f1reads(k + 1)
        b = FR + (k % 2) * 20
        for t in range(3):
            a(f"v_mfma_f32_32x32x16_bf16 {vr(ACC[0][t],16)}, {vr(b+8+4*t,4)}, {vr(b,4)}, {vr(ACC[0][t],16)}")
        if k + 1 < 40: a.wait(lg=("f", k + 1))
        if k + 4 < 40: w_dma(k + 4)
        if k == 38: set_flag(a, FV, FWA, 2)
        for t in range(3):
            a(f"v_mfma_f32_32x32x16_bf16 {vr(ACC[1][t],16)}, {vr(b+8+4*t,4)}, {vr(b+4,4)}, {vr(ACC[1][t],16)}")
    S_(4)
    srd(a, 16, P_WD, 1536 * 1280)
    srd(a, 20, P_WO, 640 * 1280)
    srd(a, 24, P_WS, H_BYTES, WS_H)
    srd(a, 12, P_WS, O_BYTES, WS_O)
    DO = 232; DO2 = 237
    for i in range(5):
        a(f"v_add_u32 v{TA}, {64*i}, v{LANE}")
        a(f"v_mul_u32_u24 v{TB}, 205, v{TA}")
        a(f"v_lshrrev_b32 v{TB}, 12, v{TB}")
        a(f"v_mul_u32_u24 v{DO+i}, 20, v{TB}")
        a(f"v_sub_u32 v{TA}, v{TA}, v{DO+i}")
        a(f"v_lshlrev_b32 v{TA}, 4, v{TA}")
        if 0 < i < 4: a(f"v_subrev_u32 v{TA}, {1024*i}, v{TA}")
        a(f"v_mad_u32_u24 v{DO+i}, v{TB}, v{DO+5+4}, v{TA}") if False else None
        a(f"v_mul_u32_u24 v{DO+i}, 1280, v{TB}")
        a(f"v_add_u32 v{DO+i}, v{DO+i}, v{TA}")
        a(f"v_lshrrev_b32 v{TB}, 2, v{TB}")
        a(f"v_add_u32 v{TB}, 1, v{TB}")
        a(f"v_mul_u32_u24 v{TB}, 20480, v{TB}")
        a(f"v_add_u32 v{DO2+i}, v{DO+i}, v{TB}")
    a("s_lshl_b32 s36, s4, 1")
    a("s_mul_i32 s36, s36, 98304")
    a("s_mul_i32 s37, s5, 12288")
    a("s_add_u32 s36, s36, s37")
    a("s_mul_i32 s37, s3, 3072")
    a("s_add_u32 s36, s36, s37")
    a("s_add_u32 s37, s36, 98304")
    for b in range(2):
        for t in range(3):
            c = ACC[b][t]
            for r in range(8): a(f"v_mul_f32 v{c+r}, v{c+r}, v{c+8+r}")
            for i in range(4): a(f"v_cvt_pk_bf16_f32 v{c+8+i}, v{c+2*i}, v{c+2*i+1}")
            a.vmem(f"buffer_store_dwordx4 {vr(c+8,4)}, v{L16}, s[24:27], s{36+b} offen offset:{t*1024} sc1", "hst")
    a("s_and_b32 s38, s5, 3")
    a("s_mul_i32 s38, s38, 320")
    a("s_mul_i32 s39, s3, 491520")
    a("s_add_u32 s39, s39, s38")
    a("s_mul_i32 s40, s3, 204800")
    a("s_add_u32 s40, s40, s38")
    a("s_mov_b32 s41, s40")
    a(f"s_mul_i32 s33, s3, {DRING}")
    a(f"s_add_u32 s33, s33, {L_XN}")
    def d_dma(k):
        sl = (k % 4) * DSLOT
        if k < 24: sd, so, vo = "s[16:19]", "s39", DO
        elif k < 32: sd, so, vo = "s[20:23]", "s40", DO
        else: sd, so, vo = "s[20:23]", "s41", DO2
        a(f"s_add_u32 m0, s33, {sl}")
        a("s_nop 0")
        for i in range(4):
            a.vmem(f"buffer_load_dwordx4 v{vo+i}, {sd}, {so} offen offset:{i*1024} lds", ("d", k))
        a(f"s_add_u32 m0, s33, {sl+4096}")
        a("s_nop 0")
        a.vmem(f"buffer_load_dwordx4 v{vo+4}, {sd}, {so} offen lds", ("d", k))
        a(f"s_add_u32 {so}, {so}, {20480 if k < 24 else (25600 if k < 32 else 102400)}")
    poll_lds(a, FV, FAD, 2, "fl")
    a(f"v_subrev_u32 v{TA}, {L_FLAGG}, v{FAD}")
    poll_lds(a, FV, TA, 1, "fl")
    for k in range(4): d_dma(k)
    a.wait(vm="hst")
    a("s_lshl_b32 s42, s28, 2")
    a("s_add_u32 s42, s42, s3")
    a("s_lshl_b32 s42, s42, 4")
    a(f"s_add_u32 s42, s42, {FL_H}")
    a(f"v_mov_b32 v{TA}, s62")
    a("s_mov_b64 exec, 1")
    a.vmem(f"buffer_store_dword v{TA}, v{ZERO}, s[56:59], s42 offen sc1", "hfl")
    a("s_mov_b64 exec, -1")
    S_(5)
    DT, PA, OA = 12, 13, 14
    XR = 242
    a(f"v_lshrrev_b32 v{TB}, 5, v{LANE}")
    a(f"v_bfe_u32 v{DT}, v{LANE}, 2, 2")
    a(f"v_lshl_add_u32 v{DT}, v{TB}, 3, v{DT}")
    a(f"v_mul_u32_u24 v{DT}, 320, v{DT}")
    a(f"v_mul_u32_u24 v{OA}, 40, v{TB}")
    a(f"v_and_b32 v{TA}, 3, v{LANE}")
    a(f"v_bfe_u32 v{TB}, v{LANE}, 4, 1")
    a(f"v_lshl_add_u32 v{TA}, v{TB}, 2, v{TA}")
    a(f"v_mul_u32_u24 v{TA}, 40, v{TA}")
    a(f"v_add3_u32 v{DT}, v{DT}, v{TA}, s33")
    a(f"v_and_b32 v{TA}, 7, v{LANE}")
    a(f"v_lshlrev_b32 v{PA}, 4, v{TA}")
    a(f"v_and_b32 v{TA}, 31, v{LANE}")
    a(f"v_mul_u32_u24 v{TA}, 1280, v{TA}")
    a(f"v_add_u32 v{OA}, v{OA}, v{TA}")
    a("s_lshl_b32 s36, s4, 1")
    a("s_lshr_b32 s37, s5, 2")
    a("s_add_u32 s36, s36, s37")
    a("s_mul_i32 s43, s36, 40960")
    a("s_add_u32 s43, s43, s38")
    a("s_mul_i32 s37, s3, 80")
    a("s_add_u32 s43, s43, s37")
    a("s_mul_i32 s37, s36, 98304")
    a("s_mul_i32 s30, s3, 24576")
    a("s_add_u32 s37, s37, s30")
    a("s_mul_i32 s36, s36, 40960")
    a("s_mul_i32 s30, s3, 10240")
    a("s_add_u32 s36, s36, s30")
    a("s_lshl_b32 s30, s4, 9")
    a("s_lshl_b32 s31, s3, 7")
    a("s_add_u32 s30, s30, s31")
    a(f"s_add_u32 s31, s30, {FL_O}")
    a(f"s_add_u32 s30, s30, {FL_H}")
    DA = [16 + 16 * t for t in range(5)]; DF = 96; BF = 136
    for i in range(80): a(f"v_mov_b32 v{16+i}, 0")
    poll_global(a, FV, 1, PA, 56, "s30", "s62")
    S_(6)
    for k in range(24):
        if k % 4 == 0 and k: a("s_add_u32 s37, s37, 4096")
        a.vmem(f"buffer_load_dwordx4 {vr(BF+4*k,4)}, v{L16}, s[24:27], s37 offen offset:{(k%4)*1024} sc1", ("b", k))
    a.vmem(f"buffer_load_dwordx4 {vr(XR,4)}, v{OA}, s[8:11], s43 offen", "xr")
    a.vmem(f"buffer_load_dwordx4 {vr(XR+4,4)}, v{OA}, s[8:11], s43 offen offset:16", "xr")
    a.vmem(f"buffer_load_dwordx2 {vr(XR+8,2)}, v{OA}, s[8:11], s43 offen offset:32", "xr")
    def dreads(k):
        b = DF + (k % 2) * 20
        a.wait(vm=("d", k))
        for t in range(5):
            for hf in range(2):
                a.lds(f"ds_read_b64_tr_b16 {vr(b+4*t+2*hf,2)}, v{DT} offset:{(k%4)*DSLOT+t*8+hf*1280}", ("dr", k))
    dreads(0)
    a.wait(lg=("dr", 0))
    d_dma(4)
    NK = 34
    for k in range(NK):
        if k == 24:
            S_(7)
            poll_global(a, FV, 1, PA, 56, "s31", "s62", sleep=4)
            S_(8)
            for i in range(10):
                if i % 4 == 0 and i: a("s_add_u32 s36, s36, 4096")
                a.vmem(f"buffer_load_dwordx4 {vr(BF+4*i,4)}, v{L16}, s[12:15], s36 offen offset:{(i%4)*1024} sc1", ("b", 24 + i))
        if k + 1 < NK: dreads(k + 1)
        b = DF + (k % 2) * 20
        bf = BF + 4 * (k % 24)
        a.wait(vm=("b", k))
        for t in range(5):
            if t == 3:
                if k + 1 < NK: a.wait(lg=("dr", k + 1))
                if k + 5 < NK: d_dma(k + 5)
            a(f"v_mfma_f32_32x32x16_bf16 {vr(DA[t],16)}, {vr(b+4*t,4)}, {vr(bf,4)}, {vr(DA[t],16)}")
    srd(a, 16, P_OUT, 2048 * 1280)
    a(f"v_add_u32 v{TA}, s33, v{L16}")
    a("s_mul_i32 s30, s3, 5120")
    a(f"s_add_u32 s30, s30, {L_XN}")
    a(f"v_add_u32 v{DT}, s30, v{L16}")
    a(f"v_add_u32 v{PA}, {2*DRING}, v{DT}")
    a("s_nop 7"); a("s_nop 1")
    for t in range(5):
        for gq in range(4):
            a.lds(f"ds_write_b128 v{TA}, {vr(DA[t]+4*gq,4)} offset:{(gq*5+t)*1024}", "rw")
    a.wait(lg="all")
    set_flag(a, FV, FWA, 3)
    RS = 96
    a.wait(vm="xr")
    for i in range(10):
        a(f"v_lshlrev_b32 v{RS+2*i}, 16, v{XR+i}")
        a(f"v_and_b32 v{RS+2*i+1}, 0xffff0000, v{XR+i}")
    poll_lds(a, FV, FAD, 3, "fl")
    for w in range(4):
        for t in range(5):
            a.lds(f"ds_read_b128 {vr(16+20*w+4*t,4)}, v{DT if w < 2 else PA} offset:{(w%2)*DRING+t*1024}", ("rr", w))
    for w in range(4):
        a.wait(lg=("rr", w))
        for i in range(10):
            a(f"v_pk_add_f32 {vr(RS+2*i,2)}, {vr(RS+2*i,2)}, {vr(16+20*w+2*i,2)}")
    for i in range(10):
        a(f"v_cvt_pk_bf16_f32 v{120+i}, v{RS+2*i}, v{RS+2*i+1}")
    a(f"buffer_store_dwordx4 {vr(120,4)}, v{OA}, s[16:19], s43 offen")
    a(f"buffer_store_dwordx4 {vr(124,4)}, v{OA}, s[16:19], s43 offen offset:16")
    a(f"buffer_store_dwordx2 {vr(128,2)}, v{OA}, s[16:19], s43 offen offset:32")
    if st:
        a("s_waitcnt vmcnt(0)"); S_(9); st.flush(a, P_WS, 6, 20)
```

```python
from asmlib import *
WS_XN = 0x0;       XN_BYTES = 64 * 40 * 1024
WS_KV = 0x280000;  KV_BYTES = 64 * 3072
WS_H  = 0x300000;  H_BYTES = 64 * 96 * 1024
WS_O  = 0x900000;  O_BYTES = 64 * 40 * 1024
WS_DBG = 0x1000000
BIG = 0x40000000

def srd(a, d, base_lo, base_hi, nbytes, add=0):
    if add:
        a(f"s_add_u32 s{d}, s{base_lo}, {add}")
        a(f"s_addc_u32 s{d+1}, s{base_hi}, 0")
    else:
        a(f"s_mov_b32 s{d}, s{base_lo}")
        a(f"s_mov_b32 s{d+1}, s{base_hi}")
    a(f"s_mov_b32 s{d+2}, {nbytes}")
    a(f"s_mov_b32 s{d+3}, 0x00020000")

K1_LDS = 65536 + 8 * 1312

def gen_k1(name="k1_kernel", st=None):
    a = Asm()
    def fin():
        if st:
            st(a, 3); st.flush(a, 12, 3, 60)
        a("s_endpgm")
    a.raw(f".globl {name}\n.p2align 8\n.type {name},@function")
    a.label(name)
    a("s_cmp_ge_u32 s2, 256")
    a("s_cbranch_scc1 L_k1_end")
    if st: st.init(a); st(a, 0)
    a("s_load_dwordx2 s[4:5], s[0:1], 0")
    a("s_load_dwordx4 s[8:11], s[0:1], 16")
    a("s_load_dwordx2 s[12:13], s[0:1], 88")
    a("v_lshrrev_b32 v1, 6, v0")
    a("v_and_b32 v2, 63, v0")
    a("v_readfirstlane_b32 s3, v1")
    a("v_lshlrev_b32 v3, 4, v2")
    a(f"v_mov_b32 v5, {BIG}")
    a("v_add_u32 v4, 1024, v3")
    a("v_cmp_gt_u32 vcc, 16, v2")
    a("s_lshl_b32 s14, s2, 3")
    a("s_add_u32 s14, s14, s3")
    a("v_cndmask_b32 v4, v5, v4, vcc")
    a("s_mul_i32 s15, s14, 1280")
    a("s_waitcnt lgkmcnt(0)")
    srd(a, 16, 4, 5, 2048 * 1280)
    a.vmem("buffer_load_dwordx4 v[8:11], v3, s[16:19], s15 offen", "x")
    a.vmem("buffer_load_dwordx4 v[12:15], v4, s[16:19], s15 offen", "x")
    srd(a, 20, 8, 9, 25600)
    srd(a, 24, 10, 11, 25600)
    a("s_lshl_b32 s36, s3, 10")
    for i in range(4):
        a(f"s_add_u32 s37, s36, {i*8192}")
        a("s_mov_b32 m0, s37")
        a("s_nop 0")
        a.vmem("buffer_load_dwordx4 v3, s[20:23], s37 offen lds", "w")
        a(f"s_add_u32 m0, s37, 32768")
        a("s_nop 0")
        a.vmem("buffer_load_dwordx4 v3, s[24:27], s37 offen lds", "w")
    srd(a, 28, 12, 13, XN_BYTES, WS_XN)
    srd(a, 32, 12, 13, KV_BYTES, WS_KV)
    a("s_lshr_b32 s38, s14, 5")
    a("s_mul_i32 s38, s38, 40960")
    a("s_and_b32 s39, s14, 31")
    a("s_lshl_b32 s39, s39, 4")
    a("s_add_u32 s38, s38, s39")
    a("v_lshlrev_b32 v6, 9, v2")
    a("v_add_u32 v7, 0x8000, v6")
    a("v_cndmask_b32 v7, v5, v7, vcc")
    a("s_mul_i32 s40, s3, 1312")
    a("s_add_u32 s40, s40, 65536")
    a("v_add_u32 v48, s40, v3")
    a.wait(vm="x")
    if st: st(a, 1)
    for i in range(8):
        a(f"v_lshlrev_b32 v{16+2*i}, 16, v{8+i}")
        a(f"v_and_b32 v{17+2*i}, 0xffff0000, v{8+i}")
    a("v_add_f32 v32, v16, v17")
    a("v_mul_f32 v33, v16, v16")
    a("v_fmac_f32 v33, v17, v17")
    a("v_add_f32 v34, v18, v19")
    a("v_mul_f32 v35, v18, v18")
    a("v_fmac_f32 v35, v19, v19")
    for i in range(2, 8):
        s, q = (32, 33) if i % 2 == 0 else (34, 35)
        a(f"v_add_f32 v{s}, v{s}, v{16+2*i}")
        a(f"v_fmac_f32 v{q}, v{16+2*i}, v{16+2*i}")
        a(f"v_add_f32 v{s}, v{s}, v{17+2*i}")
        a(f"v_fmac_f32 v{q}, v{17+2*i}, v{17+2*i}")
    a("v_add_f32 v32, v32, v34")
    a("v_add_f32 v33, v33, v35")
    a("s_nop 0")
    for ctl in ("row_shr:1 row_mask:0xf bank_mask:0xf bound_ctrl:0", "row_shr:2 row_mask:0xf bank_mask:0xf bound_ctrl:0",
                "row_shr:4 row_mask:0xf bank_mask:0xf bound_ctrl:0", "row_shr:8 row_mask:0xf bank_mask:0xf bound_ctrl:0",
                "row_bcast:15 row_mask:0xa bank_mask:0xf", "row_bcast:31 row_mask:0xc bank_mask:0xf"):
        a(f"v_add_f32_dpp v32, v32, v32 {ctl}")
        a(f"v_add_f32_dpp v33, v33, v33 {ctl}")
        a("s_nop 0")
    a("v_readlane_b32 s41, v32, 63")
    a("v_readlane_b32 s42, v33, 63")
    a(f"v_mov_b32 v36, 0x{f32hex(1.0/640):08x}")
    a("s_nop 0")
    a("v_mul_f32 v37, s41, v36")
    a("v_mul_f32 v38, s42, v36")
    a("v_fma_f32 v38, -v37, v37, v38")
    a("v_max_f32 v38, 0, v38")
    a(f"v_add_f32 v38, 0x{f32hex(1e-5):08x}, v38")
    a("v_rsq_f32 v38, v38")
    a("s_nop 0")
    a("v_mul_f32 v39, v37, v38")
    for i in range(16):
        a(f"v_fma_f32 v{16+i}, v{16+i}, v38, -v39")
    for i in range(8):
        a(f"v_cvt_pk_bf16_f32 v{40+i}, v{16+2*i}, v{17+2*i}")
    a.vmem("buffer_store_dwordx4 v[40:43], v6, s[28:31], s38 offen", "st")
    a.vmem("buffer_store_dwordx4 v[44:47], v7, s[28:31], s38 offen", "st")
    a.lds("ds_write_b128 v48, v[40:43]")
    a("s_and_saveexec_b64 s[44:45], vcc")
    a.lds("ds_write_b128 v48, v[44:47] offset:1024")
    a("s_mov_b64 exec, s[44:45]")
    a.wait(vm="w", lg="all")
    a("s_barrier")
    if st: st(a, 2)
    a("s_cmp_ge_u32 s3, 4")
    a("s_cbranch_scc1 L_k1_fin")
    a("v_lshrrev_b32 v8, 4, v2")
    a("v_bfe_u32 v9, v2, 2, 2")
    a("v_lshl_add_u32 v9, v8, 3, v9")
    a("v_mul_u32_u24 v9, 40, v9")
    a("v_and_b32 v10, 3, v2")
    a("v_lshlrev_b32 v10, 3, v10")
    a("s_cmp_ge_u32 s3, 2")
    a("s_cselect_b32 s46, 0, -1")
    a("s_cselect_b32 s47, 32, 0")
    a("s_and_b32 s48, s3, 1")
    a("s_lshl_b32 s48, s48, 15")
    a("s_add_u32 s47, s47, s48")
    a("v_and_b32 v10, s46, v10")
    a("v_add3_u32 v9, v9, v10, s47")
    a("v_and_b32 v11, 7, v2")
    a("v_mul_u32_u24 v11, 1312, v11")
    a("v_lshlrev_b32 v12, 4, v8")
    a("v_add_u32 v11, v11, v12")
    a("v_add_u32 v11, 65536, v11")
    for i in range(4):
        a(f"v_mov_b32 v{16+i}, 0")
    G = 4
    def reads(g):
        for s in range(g * G, g * G + G):
            b = 64 + ((g % 2) * G + s % G) * 8
            a.lds(f"ds_read_b64_tr_b16 v[{b}:{b+1}], v9 offset:{s*1280}", ("g", g))
            a.lds(f"ds_read_b64_tr_b16 v[{b+2}:{b+3}], v9 offset:{s*1280+160}", ("g", g))
            a.lds(f"ds_read_b128 v[{b+4}:{b+7}], v11 offset:{s*64}", ("g", g))
    a("s_bitcmp1_b32 s3, 0")
    a("s_cbranch_scc1 L_k1_v")
    sv = (list(a.vm), list(a.lg))
    for role in ("k", "v"):
        if role == "v":
            a.label("L_k1_v")
            a.vm, a.lg = list(sv[0]), list(sv[1])
        reads(0)
        for g in range(5):
            a.wait(lg=("g", g))
            if g + 1 < 5: reads(g + 1)
            for s in range(G):
                b = 64 + ((g % 2) * G + s) * 8
                if role == "k":
                    a(f"v_mfma_f32_16x16x32_bf16 v[16:19], v[{b}:{b+3}], v[{b+4}:{b+7}], v[16:19]")
                else:
                    a(f"v_mfma_f32_16x16x32_bf16 v[16:19], v[{b+4}:{b+7}], v[{b}:{b+3}], v[16:19]")
        a("s_lshr_b32 s50, s2, 2")
        a("s_mul_i32 s50, s50, 3072")
        a("s_bfe_u32 s51, s2, 0x10001")
        a("s_and_b32 s52, s2, 1")
        a("v_and_b32 v20, 15, v2")
        if role == "k":
            a("s_lshl_b32 s53, s51, 4")
            a("s_lshl_b32 s54, s52, 2")
            a("s_add_u32 s53, s53, s54")
            a("v_lshrrev_b32 v21, 2, v20")
            a("v_lshlrev_b32 v21, 3, v21")
            a("v_and_b32 v22, 3, v20")
            a("v_add3_u32 v21, v21, v22, s53")
            a("v_lshrrev_b32 v22, 1, v8")
            a("v_lshlrev_b32 v22, 9, v22")
            a("v_lshl_add_u32 v22, v21, 4, v22")
            a("v_and_b32 v23, 1, v8")
            a("v_lshl_add_u32 v22, v23, 3, v22")
            a("v_lshlrev_b32 v23, 3, v21")
            a("v_add_u32 v23, 1024, v23")
            a("v_cmp_eq_u32 vcc, 0, v8")
            a("s_nop 1")
            a("v_cndmask_b32 v23, v5, v23, vcc")
            a("s_cmp_ge_u32 s3, 2")
            a("s_cselect_b64 vcc, -1, 0")
            a("v_cndmask_b32 v22, v22, v23, vcc")
            a("v_cmp_gt_u32 vcc, 8, v20")
            a("s_nop 1")
            a("v_cndmask_b32 v22, v5, v22, vcc")
            a("v_cvt_pk_bf16_f32 v24, v16, v17")
            a("v_cvt_pk_bf16_f32 v25, v18, v19")
            a("buffer_store_dwordx2 v[24:25], v22, s[32:35], s50 offen")
            a("s_branch L_k1_fin") if st else a("s_endpgm")
        else:
            a("s_mul_i32 s53, s51, 768")
            a("s_mul_i32 s54, s52, 384")
            a("s_add_u32 s53, s53, s54")
            a("s_add_u32 s53, s53, 1280")
            a("v_and_b32 v21, 3, v20")
            a("v_bfe_u32 v22, v20, 2, 1")
            a("v_lshl_add_u32 v21, v22, 3, v21")
            a("v_bfe_u32 v22, v20, 3, 1")
            a("v_lshl_add_u32 v21, v22, 2, v21")
            a("v_add_u32 v22, 16, v20")
            a("s_cmp_ge_u32 s3, 2")
            a("s_cselect_b64 vcc, -1, 0")
            a("s_cselect_b32 s55, 6, 16")
            a("s_cselect_b32 s56, 4, 99")
            a("s_cselect_b32 s57, 5, 99")
            a("v_cndmask_b32 v21, v21, v22, vcc")
            a("v_lshlrev_b32 v21, 4, v21")
            a("v_lshl_add_u32 v21, v8, 3, v21")
            a("v_add_u32 v21, s53, v21")
            a("v_cmp_gt_u32 vcc, s55, v20")
            a("s_nop 1")
            a("v_cndmask_b32 v21, v5, v21, vcc")
            a("v_cmp_gt_u32 vcc, 2, v8")
            a("s_nop 1")
            a("v_cndmask_b32 v21, v5, v21, vcc")
            a("v_cvt_pk_bf16_f32 v24, v16, v17")
            a("v_cvt_pk_bf16_f32 v25, v18, v19")
            a("v_mov_b32 v26, 0x3f803f80")
            a("v_cmp_eq_u32 vcc, s56, v20")
            a("s_nop 1")
            a("v_cndmask_b32 v24, v24, v26, vcc")
            a("v_cndmask_b32 v25, v25, v26, vcc")
            a("v_cmp_eq_u32 vcc, s57, v20")
            a("s_nop 1")
            a("v_cndmask_b32 v24, v24, 0, vcc") if False else None
            a("v_mov_b32 v26, 0")
            a("v_cndmask_b32 v24, v24, v26, vcc")
            a("v_cndmask_b32 v25, v25, v26, vcc")
            a("buffer_store_dwordx2 v[24:25], v21, s[32:35], s50 offen")
    a.label("L_k1_fin")
    if st: a("s_waitcnt vmcnt(0)")
    fin()
    a.label("L_k1_end")
    a("s_endpgm")
    return a.text(), kdesc(name, 128, 102 if st else 64)

import struct
def f32hex(x):
    return struct.unpack("<I", struct.pack("<f", x))[0]
```

```python
WS_DBG = 0x1000000
NST = 12
class Stamps:
    def __init__(self, kidx, enabled=True):
        self.kidx = kidx; self.on = enabled
    def init(self, a):
        if not self.on: return
        for i in range(NST): a(f"s_mov_b32 s{44+i}, 0")
    def __call__(self, a, i, cyc=False):
        if not self.on: return
        a("s_memrealtime s[100:101]" if not cyc else "s_memtime s[100:101]")
        a("s_waitcnt lgkmcnt(0)")
        a(f"s_mov_b32 s{44+i}, s100")
    def flush(self, a, ws_lo, wave_sgpr, vtmp):
        if not self.on: return
        a(f"s_add_u32 s92, s{ws_lo}, {WS_DBG + self.kidx * 0x40000}")
        a(f"s_addc_u32 s93, s{ws_lo+1}, 0")
        a("s_mov_b32 s94, 0x40000")
        a("s_mov_b32 s95, 0x00020000")
        a(f"v_mov_b32 v{vtmp}, 0")
        for i in range(NST):
            a(f"v_writelane_b32 v{vtmp}, s{44+i}, {i}")
        a(f"v_mbcnt_lo_u32_b32 v{vtmp+1}, -1, 0")
        a(f"v_mbcnt_hi_u32_b32 v{vtmp+1}, -1, v{vtmp+1}")
        a(f"v_lshlrev_b32 v{vtmp+1}, 2, v{vtmp+1}")
        a("s_lshl_b32 s96, s2, 3")
        a(f"s_add_u32 s96, s96, s{wave_sgpr}")
        a("s_lshl_b32 s96, s96, 6")
        a("s_mov_b64 exec, 0xffff")
        a(f"buffer_store_dword v{vtmp}, v{vtmp+1}, s[92:95], s96 offen")
        a("s_mov_b64 exec, -1")
```

```python
import sys
from build import compose
import fused
from stamps import Stamps
D = len(sys.argv) > 2 and sys.argv[2] == "diag"
NAME = "parallel_sum__grouped_kv_mqa__glu_gated_bilinear__prompt_kernel"
t, d = fused.gen(NAME, st=Stamps(0) if D else None, endstamp=(len(sys.argv) > 2 and sys.argv[2] == "end"))
open(sys.argv[1], "w").write(compose([(NAME, t, d, 256, 512, fused.LDS_TOTAL)]))
```

```python
from asmlib import *

def gen_g(a, S_, st, G, R):
    globals().update({k: v for k, v in G.items() if k.isupper() or k in ("srd", "poll_lds", "set_flag", "poll_global", "get_tag", "f32hex")})
    LANE, L16, TA, TB, ZERO = R["LANE"], R["L16"], R["TA"], R["TB"], R["ZERO"]
    TAG = 11
    a.wait(vm="wkv", lg="all")
    a("s_barrier")
    S_(2)
    FAD, FWA, FV = 6, 7, 8
    a(f"v_and_b32 v{TA}, 3, v{LANE}")
    a(f"v_lshlrev_b32 v{FAD}, 2, v{TA}")
    a(f"v_add_u32 v{FAD}, {L_FLAGG}, v{FAD}")
    a("s_lshl_b32 s30, s3, 2")
    a(f"s_add_u32 s30, s30, {L_FLAGG}")
    a(f"v_mov_b32 v{FWA}, s30")
    GQ, WA, XA, J = 12, 13, 14, 15
    a(f"v_lshrrev_b32 v{GQ}, 4, v{LANE}")
    a(f"v_bfe_u32 v{WA}, v{LANE}, 2, 2")
    a(f"v_lshl_add_u32 v{WA}, v{GQ}, 3, v{WA}")
    a(f"v_mul_u32_u24 v{WA}, 40, v{WA}")
    a(f"v_lshlrev_b32 v{TA}, 3, v{TA}")
    a("s_cmp_ge_u32 s3, 2")
    a("s_cselect_b32 s24, 0, -1")
    a("s_cselect_b32 s25, 32, 0")
    a("s_bitcmp1_b32 s3, 0")
    a(f"s_cselect_b32 s26, {L_WV-L_WK}, 0")
    a(f"s_add_u32 s26, s26, {L_WK}")
    a("s_add_u32 s25, s25, s26")
    a(f"v_and_b32 v{TA}, s24, v{TA}")
    a(f"v_add3_u32 v{WA}, v{WA}, v{TA}, s25")
    a("s_lshr_b32 s26, s5, 2")
    a(f"s_mul_i32 s26, s26, {XNT}")
    a("s_and_b32 s27, s5, 3")
    a("s_lshl_b32 s27, s27, 7")
    a("s_add_u32 s26, s26, s27")
    a(f"s_add_u32 s26, s26, {L_XN}")
    a(f"v_and_b32 v{TA}, 7, v{LANE}")
    a(f"v_mul_u32_u24 v{XA}, 528, v{GQ}")
    a(f"v_lshl_add_u32 v{XA}, v{TA}, 4, v{XA}")
    a(f"v_add_u32 v{XA}, s26, v{XA}")
    KA = 16
    for i in range(4): a(f"v_mov_b32 v{KA+i}, 0")
    GS = 4
    def reads(g):
        for s in range(g * GS, g * GS + GS):
            b = 64 + ((g % 2) * GS + s % GS) * 8
            a.lds(f"ds_read_b64_tr_b16 v[{b}:{b+1}], v{WA} offset:{s*1280}", ("g", g))
            a.lds(f"ds_read_b64_tr_b16 v[{b+2}:{b+3}], v{WA} offset:{s*1280+160}", ("g", g))
            a.lds(f"ds_read_b128 v[{b+4}:{b+7}], v{XA} offset:{s*2112}", ("g", g))
    srd(a, 24, P_WS, KV_BYTES, WS_KV)
    srd(a, 56, P_WS, FL_BYTES, WS_FL)
    a("s_lshl_b32 s28, s4, 3")
    a("s_add_u32 s28, s28, s5")
    a("s_lshr_b32 s29, s28, 2")
    a("s_mul_i32 s29, s29, 3072")
    a("s_bfe_u32 s30, s28, 0x10001")
    a("s_and_b32 s31, s28, 1")
    a(f"v_and_b32 v{J}, 15, v{LANE}")
    a(f"v_mov_b32 v9, {BIG}")
    a("s_bitcmp1_b32 s3, 0")
    a("s_cbranch_scc1 L_g_v")
    sv = (list(a.vm), list(a.lg))
    for role in ("k", "v"):
        if role == "v":
            a.label("L_g_v"); a.vm, a.lg = list(sv[0]), list(sv[1])
        reads(0)
        for g in range(5):
            a.wait(lg=("g", g))
            if g + 1 < 5: reads(g + 1)
            for s in range(GS):
                b = 64 + ((g % 2) * GS + s) * 8
                if role == "k": a(f"v_mfma_f32_16x16x32_bf16 {vr(KA,4)}, v[{b}:{b+3}], v[{b+4}:{b+7}], {vr(KA,4)}")
                else: a(f"v_mfma_f32_16x16x32_bf16 {vr(KA,4)}, v[{b+4}:{b+7}], v[{b}:{b+3}], {vr(KA,4)}")
        set_flag(a, FV, FWA, 1)
        if role == "k":
            a("s_lshl_b32 s32, s30, 4"); a("s_lshl_b32 s33, s31, 2"); a("s_add_u32 s32, s32, s33")
            a(f"v_lshrrev_b32 v21, 2, v{J}")
            a("v_lshlrev_b32 v21, 3, v21")
            a(f"v_and_b32 v22, 3, v{J}")
            a("v_add3_u32 v21, v21, v22, s32")
            a(f"v_lshrrev_b32 v22, 1, v{GQ}")
            a("v_lshlrev_b32 v22, 9, v22")
            a("v_lshl_add_u32 v22, v21, 4, v22")
            a(f"v_and_b32 v23, 1, v{GQ}")
            a("v_lshl_add_u32 v22, v23, 3, v22")
            a("v_lshlrev_b32 v23, 3, v21")
            a("v_add_u32 v23, 1024, v23")
            a(f"v_cmp_eq_u32 vcc, 0, v{GQ}")
            a("s_nop 1")
            a("v_cndmask_b32 v23, v9, v23, vcc")
            a("s_cmp_ge_u32 s3, 2")
            a("s_cselect_b64 vcc, -1, 0")
            a("v_cndmask_b32 v22, v22, v23, vcc")
            a(f"v_cmp_gt_u32 vcc, 8, v{J}")
            a(f"v_cvt_pk_bf16_f32 v24, v{KA}, v{KA+1}")
            a(f"v_cvt_pk_bf16_f32 v25, v{KA+2}, v{KA+3}")
            a("v_cndmask_b32 v22, v9, v22, vcc")
            a("s_branch L_g_kvst")
        else:
            a("s_mul_i32 s32, s30, 768"); a("s_mul_i32 s33, s31, 384"); a("s_add_u32 s32, s32, s33"); a("s_add_u32 s32, s32, 1280")
            a(f"v_and_b32 v21, 3, v{J}")
            a(f"v_bfe_u32 v22, v{J}, 2, 1")
            a("v_lshl_add_u32 v21, v22, 3, v21")
            a(f"v_bfe_u32 v22, v{J}, 3, 1")
            a("v_lshl_add_u32 v21, v22, 2, v21")
            a(f"v_add_u32 v22, 16, v{J}")
            a("s_cmp_ge_u32 s3, 2")
            a("s_cselect_b64 vcc, -1, 0")
            a("s_cselect_b32 s33, 6, 16")
            a("s_cselect_b32 s34, 4, 99")
            a("s_cselect_b32 s35, 5, 99")
            a("v_cndmask_b32 v21, v21, v22, vcc")
            a("v_lshlrev_b32 v21, 4, v21")
            a(f"v_lshl_add_u32 v21, v{GQ}, 3, v21")
            a("v_add_u32 v21, s32, v21")
            a(f"v_cmp_gt_u32 vcc, s33, v{J}")
            a(f"v_cvt_pk_bf16_f32 v24, v{KA}, v{KA+1}")
            a(f"v_cvt_pk_bf16_f32 v25, v{KA+2}, v{KA+3}")
            a("v_cndmask_b32 v21, v9, v21, vcc")
            a(f"v_cmp_gt_u32 vcc, 2, v{GQ}")
            a("v_mov_b32 v26, 0x3f803f80")
            a("s_nop 0")
            a("v_cndmask_b32 v22, v9, v21, vcc")
            a(f"v_cmp_eq_u32 vcc, s34, v{J}")
            a("s_nop 1")
            a("v_cndmask_b32 v24, v24, v26, vcc")
            a("v_cndmask_b32 v25, v25, v26, vcc")
            a(f"v_cmp_eq_u32 vcc, s35, v{J}")
            a("s_nop 1")
            a(f"v_cndmask_b32 v24, v24, v{ZERO}, vcc")
            a(f"v_cndmask_b32 v25, v25, v{ZERO}, vcc")
    a.label("L_g_kvst")
    a.vmem("buffer_store_dwordx2 v[24:25], v22, s[24:27], s29 offen sc1", "kvst")
    WO0, WO1, WT, XA0, XA1 = 12, 13, 14, 15, 9
    a(f"v_mul_u32_u24 v{TA}, 43, v{LANE}")
    a(f"v_lshrrev_b32 v{TA}, 8, v{TA}")
    a(f"v_mul_u32_u24 v{TB}, 6, v{TA}")
    a(f"v_sub_u32 v{TB}, v{LANE}, v{TB}")
    a(f"v_mul_u32_u24 v{TA}, 3072, v{TA}")
    a(f"v_lshl_add_u32 v{WO0}, v{TB}, 4, v{TA}")
    a(f"v_add_u32 v{WO1}, 64, v{LANE}")
    a(f"v_mul_u32_u24 v{TA}, 43, v{WO1}")
    a(f"v_lshrrev_b32 v{TA}, 8, v{TA}")
    a(f"v_mul_u32_u24 v{TB}, 6, v{TA}")
    a(f"v_sub_u32 v{TB}, v{WO1}, v{TB}")
    a(f"v_mul_u32_u24 v{TA}, 3072, v{TA}")
    a(f"v_lshl_add_u32 v{WO1}, v{TB}, 4, v{TA}")
    a(f"v_subrev_u32 v{WO1}, 1024, v{WO1}")
    a("s_mul_i32 s32, s5, 384")
    a("s_mul_i32 s33, s3, 96")
    a("s_add_u32 s32, s32, s33")
    a(f"s_mul_i32 s33, s3, {WRING}")
    a(f"s_add_u32 s33, s33, {L_R2}")
    a("s_mov_b32 s34, -1"); a("s_mov_b32 s35, 0")
    def w_dma(k):
        sl = (k % 3) * WSLOT
        a(f"s_add_u32 m0, s33, {sl}")
        a("s_nop 0")
        a.vmem(f"buffer_load_dwordx4 v{WO0}, s[16:19], s32 offen lds", ("w", k))
        a("s_mov_b64 exec, s[34:35]")
        a.vmem(f"buffer_load_dwordx4 v{WO1}, s[16:19], s32 offen offset:1024 lds", ("w", k))
        a(f"s_add_u32 m0, s33, {sl+1664}")
        a("s_nop 0")
        a.vmem(f"buffer_load_dwordx4 v{WO1}, s[20:23], s32 offen offset:1024 lds", ("w", k))
        a("s_mov_b64 exec, -1")
        a.vmem(f"buffer_load_dwordx4 v{WO0}, s[20:23], s32 offen lds", ("w", k))
        a("s_add_u32 s32, s32, 49152")
    poll_lds(a, FV, FAD, 1, "fl")
    for k in range(3): w_dma(k)
    a(f"v_lshrrev_b32 v{TB}, 5, v{LANE}")
    a(f"v_bfe_u32 v{WT}, v{LANE}, 2, 2")
    a(f"v_lshl_add_u32 v{WT}, v{TB}, 3, v{WT}")
    a(f"v_mul_u32_u24 v{WT}, 96, v{WT}")
    a(f"v_mul_u32_u24 v{XA0}, 528, v{TB}")
    a(f"v_and_b32 v{TB}, 1, v{LANE}")
    a(f"v_lshl_add_u32 v{WT}, v{TB}, 4, v{WT}")
    a(f"v_bfe_u32 v{TB}, v{LANE}, 1, 1")
    a(f"v_lshl_add_u32 v{WT}, v{TB}, 3, v{WT}")
    a(f"v_bfe_u32 v{TB}, v{LANE}, 4, 1")
    a(f"v_mul_u32_u24 v{TB}, 1664, v{TB}")
    a(f"v_add3_u32 v{WT}, v{WT}, v{TB}, s33")
    a(f"v_and_b32 v{TA}, 31, v{LANE}")
    a(f"v_lshl_add_u32 v{XA0}, v{TA}, 4, v{XA0}")
    a(f"v_add_u32 v{XA0}, {L_XN}, v{XA0}")
    a(f"v_add_u32 v{XA1}, {XNT}, v{XA0}")
    a.wait(vm="kvst")
    a("s_cmp_lg_u32 s3, 0")
    a("s_cbranch_scc1 L_g_notag")
    a(f"s_mov_b32 s63, {SPIN // 16}")
    a.label("L_g_tagchk")
    a(f"v_readfirstlane_b32 s62, v{TAG}")
    a("s_cmp_lg_u32 s62, 0")
    a("s_cbranch_scc1 L_g_tagok")
    a("s_sleep 4")
    a(f"buffer_load_dword v{TAG}, v{ZERO}, s[88:91], 0 offen sc1")
    a("s_waitcnt vmcnt(0)")
    a("s_sub_u32 s63, s63, 1")
    a("s_cbranch_scc0 L_g_tagchk")
    a.label("L_g_tagok")
    set_flag(a, FV, ZERO, "s62", off=L_TAG)
    a.label("L_g_notag")
    a("s_mov_b64 exec, 1")
    a(f"v_mov_b32 v{FV}, 1")
    a(f"ds_add_rtn_u32 v{FV}, v{ZERO}, v{FV} offset:{L_CNTKV}")
    a("s_mov_b64 exec, -1")
    get_tag(a, TA, ZERO)
    a(f"v_readfirstlane_b32 s36, v{FV}")
    a(f"v_mov_b32 v{TA}, s62")
    a("s_cmp_lg_u32 s36, 3")
    a("s_cbranch_scc1 L_g_nokvflag")
    a("s_lshl_b32 s36, s28, 4")
    a("s_mov_b64 exec, 1")
    a(f"buffer_store_dword v{TA}, v{ZERO}, s[56:59], s36 offen sc1")
    a("s_mov_b64 exec, -1")
    a.label("L_g_nokvflag")
    S_(3)
    ACC = [[16 + 16 * (3 * b + t) for t in range(3)] for b in range(2)]
    FR = 112
    for i in range(96): a(f"v_mov_b32 v{16+i}, 0")
    def f1reads(k):
        b = FR + (k % 2) * 20
        a.wait(vm=("w", k))
        a.lds(f"ds_read_b128 {vr(b,4)}, v{XA0} offset:{k*1056}", ("f", k))
        for t in range(3):
            for hf in range(2):
                a.lds(f"ds_read_b64_tr_b16 {vr(b+8+4*t+2*hf,2)}, v{WT} offset:{(k%3)*WSLOT+t*32+hf*384}", ("f", k))
        a.lds(f"ds_read_b128 {vr(b+4,4)}, v{XA1} offset:{k*1056}", ("f", k))
    f1reads(0)
    a.wait(lg=("f", 0))
    w_dma(3)
    for k in range(40):
        if k + 1 < 40: f1reads(k + 1)
        b = FR + (k % 2) * 20
        for t in range(3):
            a(f"v_mfma_f32_32x32x16_bf16 {vr(ACC[0][t],16)}, {vr(b+8+4*t,4)}, {vr(b,4)}, {vr(ACC[0][t],16)}")
        if k + 1 < 40: a.wait(lg=("f", k + 1))
        if k + 4 < 40: w_dma(k + 4)
        if k == 38: set_flag(a, FV, FWA, 2)
        for t in range(3):
            a(f"v_mfma_f32_32x32x16_bf16 {vr(ACC[1][t],16)}, {vr(b+8+4*t,4)}, {vr(b+4,4)}, {vr(ACC[1][t],16)}")
    S_(4)
    srd(a, 16, P_WD, 1536 * 1280)
    srd(a, 20, P_WO, 640 * 1280)
    srd(a, 24, P_WS, H_BYTES, WS_H)
    srd(a, 12, P_WS, O_BYTES, WS_O)
    DO = 232; DO2 = 237
    for i in range(5):
        a(f"v_add_u32 v{TA}, {64*i}, v{LANE}")
        a(f"v_mul_u32_u24 v{TB}, 205, v{TA}")
        a(f"v_lshrrev_b32 v{TB}, 12, v{TB}")
        a(f"v_mul_u32_u24 v{DO+i}, 20, v{TB}")
        a(f"v_sub_u32 v{TA}, v{TA}, v{DO+i}")
        a(f"v_lshlrev_b32 v{TA}, 4, v{TA}")
        if 0 < i < 4: a(f"v_subrev_u32 v{TA}, {1024*i}, v{TA}")
        a(f"v_mad_u32_u24 v{DO+i}, v{TB}, v{DO+5+4}, v{TA}") if False else None
        a(f"v_mul_u32_u24 v{DO+i}, 1280, v{TB}")
        a(f"v_add_u32 v{DO+i}, v{DO+i}, v{TA}")
        a(f"v_lshrrev_b32 v{TB}, 2, v{TB}")
        a(f"v_add_u32 v{TB}, 1, v{TB}")
        a(f"v_mul_u32_u24 v{TB}, 20480, v{TB}")
        a(f"v_add_u32 v{DO2+i}, v{DO+i}, v{TB}")
    a("s_lshl_b32 s36, s4, 1")
    a("s_mul_i32 s36, s36, 98304")
    a("s_mul_i32 s37, s5, 12288")
    a("s_add_u32 s36, s36, s37")
    a("s_mul_i32 s37, s3, 3072")
    a("s_add_u32 s36, s36, s37")
    a("s_add_u32 s37, s36, 98304")
    for b in range(2):
        for t in range(3):
            c = ACC[b][t]
            for r in range(8): a(f"v_mul_f32 v{c+r}, v{c+r}, v{c+8+r}")
            for i in range(4): a(f"v_cvt_pk_bf16_f32 v{c+8+i}, v{c+2*i}, v{c+2*i+1}")
            a.vmem(f"buffer_store_dwordx4 {vr(c+8,4)}, v{L16}, s[24:27], s{36+b} offen offset:{t*1024} sc1", "hst")
    a("s_and_b32 s38, s5, 3")
    a("s_mul_i32 s38, s38, 320")
    a("s_mul_i32 s39, s3, 491520")
    a("s_add_u32 s39, s39, s38")
    a("s_mul_i32 s40, s3, 204800")
    a("s_add_u32 s40, s40, s38")
    a("s_mov_b32 s41, s40")
    a(f"s_mul_i32 s33, s3, {DRING}")
    a(f"s_add_u32 s33, s33, {L_XN}")
    def d_dma(k):
        sl = (k % 4) * DSLOT
        if k < 24: sd, so, vo = "s[16:19]", "s39", DO
        elif k < 32: sd, so, vo = "s[20:23]", "s40", DO
        else: sd, so, vo = "s[20:23]", "s41", DO2
        a(f"s_add_u32 m0, s33, {sl}")
        a("s_nop 0")
        for i in range(4):
            a.vmem(f"buffer_load_dwordx4 v{vo+i}, {sd}, {so} offen offset:{i*1024} lds", ("d", k))
        a(f"s_add_u32 m0, s33, {sl+4096}")
        a("s_nop 0")
        a.vmem(f"buffer_load_dwordx4 v{vo+4}, {sd}, {so} offen lds", ("d", k))
        a(f"s_add_u32 {so}, {so}, {20480 if k < 24 else (25600 if k < 32 else 102400)}")
    poll_lds(a, FV, FAD, 2, "fl")
    a(f"v_subrev_u32 v{TA}, {L_FLAGG}, v{FAD}")
    poll_lds(a, FV, TA, 1, "fl")
    for k in range(4): d_dma(k)
    a.wait(vm="hst")
    a("s_lshl_b32 s42, s28, 2")
    a("s_add_u32 s42, s42, s3")
    a("s_lshl_b32 s42, s42, 4")
    a(f"s_add_u32 s42, s42, {FL_H}")
    a(f"v_mov_b32 v{TA}, s62")
    a("s_mov_b64 exec, 1")
    a.vmem(f"buffer_store_dword v{TA}, v{ZERO}, s[56:59], s42 offen sc1", "hfl")
    a("s_mov_b64 exec, -1")
    S_(5)
    DT, PA, OA = 12, 13, 14
    XR = 242
    a(f"v_lshrrev_b32 v{TB}, 5, v{LANE}")
    a(f"v_bfe_u32 v{DT}, v{LANE}, 2, 2")
    a(f"v_lshl_add_u32 v{DT}, v{TB}, 3, v{DT}")
    a(f"v_mul_u32_u24 v{DT}, 320, v{DT}")
    a(f"v_mul_u32_u24 v{OA}, 40, v{TB}")
    a(f"v_and_b32 v{TA}, 3, v{LANE}")
    a(f"v_bfe_u32 v{TB}, v{LANE}, 4, 1")
    a(f"v_lshl_add_u32 v{TA}, v{TB}, 2, v{TA}")
    a(f"v_mul_u32_u24 v{TA}, 40, v{TA}")
    a(f"v_add3_u32 v{DT}, v{DT}, v{TA}, s33")
    a(f"v_and_b32 v{TA}, 7, v{LANE}")
    a(f"v_lshlrev_b32 v{PA}, 4, v{TA}")
    a(f"v_and_b32 v{TA}, 31, v{LANE}")
    a(f"v_mul_u32_u24 v{TA}, 1280, v{TA}")
    a(f"v_add_u32 v{OA}, v{OA}, v{TA}")
    a("s_lshl_b32 s36, s4, 1")
    a("s_lshr_b32 s37, s5, 2")
    a("s_add_u32 s36, s36, s37")
    a("s_mul_i32 s43, s36, 40960")
    a("s_add_u32 s43, s43, s38")
    a("s_mul_i32 s37, s3, 80")
    a("s_add_u32 s43, s43, s37")
    a("s_mul_i32 s37, s36, 98304")
    a("s_mul_i32 s30, s3, 24576")
    a("s_add_u32 s37, s37, s30")
    a("s_mul_i32 s36, s36, 40960")
    a("s_mul_i32 s30, s3, 10240")
    a("s_add_u32 s36, s36, s30")
    a("s_lshl_b32 s30, s4, 9")
    a("s_lshl_b32 s31, s3, 7")
    a("s_add_u32 s30, s30, s31")
    a(f"s_add_u32 s31, s30, {FL_O}")
    a(f"s_add_u32 s30, s30, {FL_H}")
    DA = [16 + 16 * t for t in range(5)]; DF = 96; BF = 136
    for i in range(80): a(f"v_mov_b32 v{16+i}, 0")
    poll_global(a, FV, 1, PA, 56, "s30", "s62")
    S_(6)
    for k in range(24):
        if k % 4 == 0 and k: a("s_add_u32 s37, s37, 4096")
        a.vmem(f"buffer_load_dwordx4 {vr(BF+4*k,4)}, v{L16}, s[24:27], s37 offen offset:{(k%4)*1024} sc1", ("b", k))
    a.vmem(f"buffer_load_dwordx4 {vr(XR,4)}, v{OA}, s[8:11], s43 offen", "xr")
    a.vmem(f"buffer_load_dwordx4 {vr(XR+4,4)}, v{OA}, s[8:11], s43 offen offset:16", "xr")
    a.vmem(f"buffer_load_dwordx2 {vr(XR+8,2)}, v{OA}, s[8:11], s43 offen offset:32", "xr")
    def dreads(k):
        b = DF + (k % 2) * 20
        a.wait(vm=("d", k))
        for t in range(5):
            for hf in range(2):
                a.lds(f"ds_read_b64_tr_b16 {vr(b+4*t+2*hf,2)}, v{DT} offset:{(k%4)*DSLOT+t*8+hf*1280}", ("dr", k))
    dreads(0)
    a.wait(lg=("dr", 0))
    d_dma(4)
    NK = 34
    for k in range(NK):
        if k == 24:
            S_(7)
            poll_global(a, FV, 1, PA, 56, "s31", "s62", sleep=4)
            S_(8)
            for i in range(10):
                if i % 4 == 0 and i: a("s_add_u32 s36, s36, 4096")
                a.vmem(f"buffer_load_dwordx4 {vr(BF+4*i,4)}, v{L16}, s[12:15], s36 offen offset:{(i%4)*1024} sc1", ("b", 24 + i))
        if k + 1 < NK: dreads(k + 1)
        b = DF + (k % 2) * 20
        bf = BF + 4 * (k % 24)
        a.wait(vm=("b", k))
        for t in range(5):
            if t == 3:
                if k + 1 < NK: a.wait(lg=("dr", k + 1))
                if k + 5 < NK: d_dma(k + 5)
            a(f"v_mfma_f32_32x32x16_bf16 {vr(DA[t],16)}, {vr(b+4*t,4)}, {vr(bf,4)}, {vr(DA[t],16)}")
    srd(a, 16, P_OUT, 2048 * 1280)
    a(f"v_add_u32 v{TA}, s33, v{L16}")
    a("s_mul_i32 s30, s3, 5120")
    a(f"s_add_u32 s30, s30, {L_XN}")
    a(f"v_add_u32 v{DT}, s30, v{L16}")
    a(f"v_add_u32 v{PA}, {2*DRING}, v{DT}")
    a("s_nop 7"); a("s_nop 1")
    for t in range(5):
        for gq in range(4):
            a.lds(f"ds_write_b128 v{TA}, {vr(DA[t]+4*gq,4)} offset:{(gq*5+t)*1024}", "rw")
    a.wait(lg="all")
    set_flag(a, FV, FWA, 3)
    RS = 96
    a.wait(vm="xr")
    for i in range(10):
        a(f"v_lshlrev_b32 v{RS+2*i}, 16, v{XR+i}")
        a(f"v_and_b32 v{RS+2*i+1}, 0xffff0000, v{XR+i}")
    poll_lds(a, FV, FAD, 3, "fl")
    for w in range(4):
        for t in range(5):
            a.lds(f"ds_read_b128 {vr(16+20*w+4*t,4)}, v{DT if w < 2 else PA} offset:{(w%2)*DRING+t*1024}", ("rr", w))
    for w in range(4):
        a.wait(lg=("rr", w))
        for i in range(10):
            a(f"v_pk_add_f32 {vr(RS+2*i,2)}, {vr(RS+2*i,2)}, {vr(16+20*w+2*i,2)}")
    for i in range(10):
        a(f"v_cvt_pk_bf16_f32 v{120+i}, v{RS+2*i}, v{RS+2*i+1}")
    a(f"buffer_store_dwordx4 {vr(120,4)}, v{OA}, s[16:19], s43 offen")
    a(f"buffer_store_dwordx4 {vr(124,4)}, v{OA}, s[16:19], s43 offen offset:16")
    a(f"buffer_store_dwordx2 {vr(128,2)}, v{OA}, s[16:19], s43 offen offset:32")
    if st:
        a("s_waitcnt vmcnt(0)"); S_(9); st.flush(a, P_WS, 6, 20)
    if R.get("endstamp"):
        a("s_waitcnt vmcnt(0)")
        a("s_memrealtime s[60:61]")
        a("s_waitcnt lgkmcnt(0)")
        a("v_mov_b32 v20, s60")
        a("s_mov_b64 exec, 1")
        a(f"buffer_atomic_umax v20, v{ZERO}, s[88:91], 0 offen offset:4 sc1")
```

```python
class Asm:
    def __init__(self):
        self.lines = []
        self.vm = []
        self.lg = []
        self.uid = 0
        self.cold = []
        self.pend = []; self.inpend = False; self.pevery = 1; self.pkind = 'v_'; self.pcount = 0
        self.done = set()
    def __call__(self, s):
        for l in s.strip("\n").split("\n"):
            self.lines.append("    " + l.strip())
        if self.pend and not self.inpend and s.lstrip().startswith(self.pkind):
            self.pcount += 1
            if self.pcount >= self.pevery:
                self.pcount = 0
                self.inpend = True; self.pend.pop(0)(); self.inpend = False
    def sprinkle(self, emitters, every, kind="v_"):
        self.pend += list(emitters); self.pevery = every; self.pkind = kind; self.pcount = 0
    def flush_pend(self):
        self.inpend = True
        while self.pend: self.pend.pop(0)()
        self.inpend = False
    def label(self, l):
        self.lines.append(l + ":")
    def raw(self, l):
        self.lines.append(l)
    def newlabel(self, base):
        self.uid += 1
        return f"L_{base}_{self.uid}"
    def comment(self, c):
        self.lines.append("    ; " + c)
    def vmem(self, s, tag=None):
        self(s); self.vm.append(tag); self.done.add(tag)
    def lds(self, s, tag=None):
        self(s); self.lg.append(tag); self.done.add(tag)
    def _n_after(self, lst, tags):
        if not isinstance(tags, list): tags = [tags]
        idx = [i for i, t in enumerate(lst) if t in tags]
        if not idx:
            assert all(t in self.done for t in tags), f"wait on unknown tag {tags}"
            return None
        return len(lst) - 1 - max(idx)
    def wait(self, vm=None, lg=None):
        parts = []
        if vm is not None:
            n = 0 if vm == 'all' else self._n_after(self.vm, vm)
            if n is not None:
                assert n <= 63, n
                parts.append(f"vmcnt({n})")
                self.vm = self.vm[len(self.vm) - n:] if n else []
        if lg is not None:
            n = 0 if lg == 'all' else self._n_after(self.lg, lg)
            if n is not None:
                n2 = min(n, 15)
                parts.append(f"lgkmcnt({n2})")
                self.lg = self.lg[len(self.lg) - n2:] if n2 else []
        if parts:
            self("s_waitcnt " + " ".join(parts))
    def emit_cold(self):
        self.lines += self.cold; self.cold = []
    def text(self):
        return "\n".join(self.lines) + "\n"

def vr(b, n=1):
    return f"v{b}" if n == 1 else f"v[{b}:{b+n-1}]"
def sr(b, n=1):
    return f"s{b}" if n == 1 else f"s[{b}:{b+n-1}]"

def kdesc(name, vgpr, sgpr=102, extra=""):
    acc = (vgpr + 3) // 4 * 4
    return f""".amdhsa_kernel {name}
  .amdhsa_next_free_vgpr {vgpr}
  .amdhsa_next_free_sgpr {sgpr}
  .amdhsa_accum_offset {acc}
  .amdhsa_group_segment_fixed_size 0
  .amdhsa_kernarg_size 96
  .amdhsa_user_sgpr_count 2
  .amdhsa_user_sgpr_kernarg_segment_ptr 1
  .amdhsa_system_sgpr_workgroup_id_x 1
{extra}.end_amdhsa_kernel
"""
```

```python
from asmlib import *
import math, struct
def f32hex(x): return struct.unpack("<I", struct.pack("<f", x))[0]
WS_KV = 0x280000;  KV_BYTES = 64 * 3072
WS_H  = 0x300000;  H_BYTES = 64 * 96 * 1024
WS_O  = 0x900000;  O_BYTES = 64 * 40 * 1024
WS_FL = 0xC00000;  FL_BYTES = 0x10000
FL_KV = 0; FL_H = 0x4000; FL_O = 0x8000
BIG = 0x40000000
L_FLAGA = 0; L_FLAGG = 16; L_CNTKV = 32; L_TAG = 36; L_KVOK = 40
L_XN = 256; XNT = 80 * 528
L_R1 = L_XN + 2 * XNT
KVSLOT = 12288
L_KV = 163840 - 4 * KVSLOT
L_WK = 110592; L_WV = L_WK + 26624
WSLOT = 6272; WRING = 19776
DSLOT = 5120; DN = 4; DRING = DN * DSLOT
L_RED = 256; L_D = 81920
DS = lambda k: [3, 1, 2, 0][k % 4] * DSLOT
QXO = 2 * WSLOT
LDS_TOTAL = 163840
QSCALE = (20 ** -0.5) * math.log2(math.e)
P_X, P_WQ, P_WK, P_WV, P_WO, P_BX, P_WG, P_WU, P_WD, P_OUT, P_DBG, P_WS = [64 + 2 * i for i in range(12)]
SPIN = 0x40000
LANE, L16, TA, TB, ZERO = 1, 2, 3, 4, 5
FAD, FWA, FV = 6, 7, 8
DUMMY = 10

def srd(a, d, p, nbytes, add=0):
    if add:
        a(f"s_add_u32 s{d}, s{p}, {add}"); a(f"s_addc_u32 s{d+1}, s{p+1}, 0")
    else:
        a(f"s_mov_b32 s{d}, s{p}"); a(f"s_mov_b32 s{d+1}, s{p+1}")
    a(f"s_mov_b32 s{d+2}, {nbytes}"); a(f"s_mov_b32 s{d+3}, 0x00020000")

def poll_lds(a, vF, vFaddr, need, tag, issue=True):
    ok = a.newlabel("pok"); lp = a.newlabel("plp"); sl = a.newlabel("psl")
    if issue: a.lds(f"ds_read_b32 v{vF}, v{vFaddr}", tag)
    a.wait(lg=tag)
    a(f"v_cmp_gt_u32 vcc, {need}, v{vF}")
    a("s_cmp_eq_u64 vcc, 0")
    a(f"s_cbranch_scc0 {sl}")
    a.label(ok)
    a.cold += [f"{sl}:", f"    s_mov_b32 s63, {SPIN}", f"{lp}:", "    s_sleep 1", f"    ds_read_b32 v{vF}, v{vFaddr}", "    s_waitcnt lgkmcnt(0)",
               "    s_sub_u32 s63, s63, 1", f"    s_cbranch_scc1 {ok}", f"    v_cmp_gt_u32 vcc, {need}, v{vF}", "    s_cmp_eq_u64 vcc, 0",
               f"    s_cbranch_scc0 {lp}", f"    s_branch {ok}"]

def set_flag(a, vtmp, vaddr, val, off=0):
    a("s_mov_b64 exec, 1")
    a(f"v_mov_b32 v{vtmp}, {val}")
    a.lds(f"ds_write_b32 v{vaddr}, v{vtmp}" + (f" offset:{off}" if off else ""), "fw")
    a("s_mov_b64 exec, -1")

def poll_global(a, vdst, n, vaddr, srdn, soffs, stag, sleep=6):
    ok = a.newlabel("gok"); lp = a.newlabel("glp")
    a(f"s_mov_b32 s63, {SPIN // 16}")
    a.label(lp)
    for i in range(n):
        a(f"buffer_load_dword v{vdst+i}, v{vaddr}, s[{srdn}:{srdn+3}], {soffs} offen offset:{i*1024} sc1")
    a("s_waitcnt vmcnt(0)")
    for i in range(n): a(f"v_xor_b32 v{vdst+i}, {stag}, v{vdst+i}")
    for i in range(1, n): a(f"v_or_b32 v{vdst}, v{vdst}, v{vdst+i}")
    a(f"v_cmp_ne_u32 vcc, 0, v{vdst}")
    a("s_cmp_eq_u64 vcc, 0")
    a(f"s_cbranch_scc1 {ok}")
    a(f"s_sleep {sleep}")
    a("s_sub_u32 s63, s63, 1")
    a(f"s_cbranch_scc0 {lp}")
    a.label(ok)
    a.vm = []

def get_tag(a, vT):
    ok = a.newlabel("tok"); lp = a.newlabel("tlp")
    a(f"s_mov_b32 s63, {SPIN}")
    a.label(lp)
    a(f"ds_read_b32 v{vT}, v{ZERO} offset:{L_TAG}")
    a("s_waitcnt lgkmcnt(0)")
    a(f"v_readfirstlane_b32 s62, v{vT}")
    a("s_cmp_lg_u32 s62, 0")
    a(f"s_cbranch_scc1 {ok}")
    a("s_sleep 1")
    a("s_sub_u32 s63, s63, 1")
    a(f"s_cbranch_scc0 {lp}")
    a.label(ok)
    a.lg = []

def warm(a, srdn, stride, rows_per_wave, width, col_expr, NSH, vt, st0, st1, lpr):
    a(f"s_and_b32 s{st0}, s4, {NSH-1}")
    a(f"s_lshl_b32 s{st0}, s{st0}, 2")
    a(f"s_add_u32 s{st0}, s{st0}, s3")
    a(f"s_mul_i32 s{st0}, s{st0}, {rows_per_wave*stride}")
    a(f"s_mul_i32 s{st1}, {col_expr[0]}, {col_expr[1]}")
    a(f"s_add_u32 s{st0}, s{st0}, s{st1}")
    rpi = 64 // lpr
    a(f"v_mul_u32_u24 v{vt+1}, {(512 + lpr - 1) // lpr}, v{LANE}")
    a(f"v_lshrrev_b32 v{vt+1}, 9, v{vt+1}")
    a(f"v_mul_u32_u24 v{vt}, {lpr}, v{vt+1}")
    a(f"v_sub_u32 v{vt}, v{LANE}, v{vt}")
    a(f"v_lshlrev_b32 v{vt}, 7, v{vt}")
    a(f"v_min_u32 v{vt}, {width-4}, v{vt}")
    a(f"v_min_u32 v{vt+1}, {min(rpi, rows_per_wave)-1}, v{vt+1}")
    a(f"v_mul_u32_u24 v{vt+1}, {stride}, v{vt+1}")
    a(f"v_add_u32 v{vt}, v{vt}, v{vt+1}")
    n = (rows_per_wave + rpi - 1) // rpi
    for i in range(n):
        for sd in srdn:
            a.vmem(f"buffer_load_dword v{DUMMY}, v{vt}, s[{sd}:{sd+3}], s{st0} offen", "warm")
        if i + 1 < n:
            step = rpi if (i + 2) * rpi <= rows_per_wave else rows_per_wave - rpi - rpi * i
            a(f"s_add_u32 s{st0}, s{st0}, {step*stride}")

def warm_lane(a, dst, tmp, stride, rows, width, lpr):
    a(f"v_mul_u32_u24 v{tmp}, {(512 + lpr - 1) // lpr}, v{LANE}")
    a(f"v_lshrrev_b32 v{tmp}, 9, v{tmp}")
    a(f"v_mul_u32_u24 v{dst}, {lpr}, v{tmp}")
    a(f"v_sub_u32 v{dst}, v{LANE}, v{dst}")
    a(f"v_lshlrev_b32 v{dst}, 7, v{dst}")
    a(f"v_min_u32 v{dst}, {width-4}, v{dst}")
    a(f"v_min_u32 v{tmp}, {rows-1}, v{tmp}")
    a(f"v_mul_u32_u24 v{tmp}, {stride}, v{tmp}")
    a(f"v_add_u32 v{dst}, v{dst}, v{tmp}")

def share(a, sd, NSH):
    a(f"s_and_b32 s{sd}, s4, {NSH-1}")
    a(f"s_lshl_b32 s{sd}, s{sd}, 2")
    a(f"s_add_u32 s{sd}, s{sd}, s3")

def tag_check(a, vT):
    ok = a.newlabel("tok"); lp = a.newlabel("tlp")
    a(f"s_mov_b32 s63, {SPIN // 16}")
    a.label(lp)
    a(f"v_readfirstlane_b32 s62, v{vT}")
    a("s_cmp_lg_u32 s62, 0")
    a(f"s_cbranch_scc1 {ok}")
    a("s_sleep 4")
    a(f"buffer_load_dword v{vT}, v{ZERO}, s[88:91], 0 offen sc1")
    a("s_waitcnt vmcnt(0)")
    a("s_sub_u32 s63, s63, 1")
    a(f"s_cbranch_scc0 {lp}")
    a.label(ok)

def ln_finish(a, SUM, SQ):
    a(f"v_mul_f32 v{SUM}, 0x{f32hex(1.0/640):08x}, v{SUM}")
    a(f"v_mul_f32 v{SQ}, 0x{f32hex(1.0/640):08x}, v{SQ}")
    a(f"v_fma_f32 v{SQ}, -v{SUM}, v{SUM}, v{SQ}")
    a(f"v_max_f32 v{SQ}, 0, v{SQ}")
    a(f"v_add_f32 v{SQ}, 0x{f32hex(1e-5):08x}, v{SQ}")
    a(f"v_rsq_f32 v{SQ}, v{SQ}")
    a("s_nop 0")
    a(f"v_mul_f32 v{SUM}, v{SUM}, v{SQ}")
    a(f"v_mov_b32 v{SQ+1}, v{SQ}")
    a(f"v_sub_f32 v{SUM}, 0, v{SUM}")
    a(f"v_mov_b32 v{SUM+1}, v{SUM}")

def ln_stats(a, X, U, n, SUM, SQ, tagf, hook=None):
    for i in range(n):
        a.wait(vm=tagf(i))
        if hook: hook(i)
        for d in range(4):
            a(f"v_lshlrev_b32 v{U+8*i+2*d}, 16, v{X+4*i+d}")
            a(f"v_and_b32 v{U+8*i+2*d+1}, 0xffff0000, v{X+4*i+d}")
        for d in range(4):
            p = vr(U + 8 * i + 2 * d, 2)
            if i == 0 and d == 0:
                a(f"v_pk_mul_f32 {vr(SQ,2)}, {p}, {p}")
                a(f"v_pk_add_f32 {vr(SUM,2)}, {p}, {vr(U+2,2)}")
            else:
                if not (i == 0 and d == 1): a(f"v_pk_add_f32 {vr(SUM,2)}, {vr(SUM,2)}, {p}")
                a(f"v_pk_fma_f32 {vr(SQ,2)}, {p}, {p}, {vr(SQ,2)}")
    a(f"v_add_f32 v{SUM}, v{SUM}, v{SUM+1}")
    a(f"v_add_f32 v{SQ}, v{SQ}, v{SQ+1}")
    a("s_nop 0")

def dpp_sum(a, regs, ctls):
    for ctl in ctls:
        for r in regs: a(f"v_add_f32_dpp v{r}, v{r}, v{r} {ctl} row_mask:0xf bank_mask:0xf")
        a("s_nop 0")

def ln_group(a, idx_expr_sgpr, sgl, sld, vgl, vld):
    a(f"s_cmp_ge_u32 s{idx_expr_sgpr}, s5")
    a(f"s_addc_u32 s{sld}, s{idx_expr_sgpr}, 0")
    a(f"s_lshl_b32 s{sgl}, s4, 3")
    a(f"s_add_u32 s{sgl}, s{sgl}, s{sld}")
    a(f"s_mul_i32 s{sgl}, s{sgl}, 10240")
    a(f"v_lshrrev_b32 v{TB}, 3, v{LANE}")
    a(f"v_mul_u32_u24 v{vgl}, 1280, v{TB}")
    a(f"v_and_b32 v{TA}, 7, v{LANE}")
    a(f"v_lshl_add_u32 v{vgl}, v{TA}, 4, v{vgl}")
    a(f"v_mul_u32_u24 v{vld}, 528, v{TA}")
    a(f"v_lshl_add_u32 v{vld}, v{TB}, 4, v{vld}")
    a(f"s_and_b32 s63, s{sld}, 3")
    a("s_lshl_b32 s63, s63, 7")
    a(f"s_lshr_b32 s{sld}, s{sld}, 2")
    a(f"s_mul_i32 s{sld}, s{sld}, {XNT}")
    a(f"s_add_u32 s{sld}, s{sld}, s63")
    a(f"s_add_u32 s{sld}, s{sld}, {L_XN}")
    a(f"v_add_u32 v{vld}, s{sld}, v{vld}")

def ln_write(a, X, U, SUM, SQ, vld):
    for i in range(10):
        for d in range(4):
            pp = vr(U + 8 * i + 2 * d, 2)
            a(f"v_pk_fma_f32 {pp}, {pp}, {vr(SQ,2)}, {vr(SUM,2)}")
        for d in range(4):
            a(f"v_cvt_pk_bf16_f32 v{X+4*i+d}, v{U+8*i+2*d}, v{U+8*i+2*d+1}")
        a.lds(f"ds_write_b128 v{vld}, {vr(X+4*i,4)} offset:{i*4224}", "xw")

def wq_offsets(a, WQO):
    for i in range(5):
        a(f"v_add_u32 v{TA}, {64*i}, v{LANE}")
        a(f"v_mul_u32_u24 v{TB}, 205, v{TA}")
        a(f"v_lshrrev_b32 v{TB}, 11, v{TB}")
        a(f"v_mul_u32_u24 v{WQO+i}, 10, v{TB}")
        a(f"v_sub_u32 v{TA}, v{TA}, v{WQO+i}")
        a(f"v_lshlrev_b32 v{TA}, 4, v{TA}")
        if 0 < i < 4: a(f"v_subrev_u32 v{TA}, {1024*i}, v{TA}")
        a(f"v_mul_u32_u24 v{WQO+i}, 1280, v{TB}")
        a(f"v_add_u32 v{WQO+i}, v{WQO+i}, v{TA}")
SLOT = lambda g: g % 15
L_WQF = 44

def gen(name, st=None, opt=None):
    opt = dict(dict(prioA=2, prioG=0, pattern=4, endstamp=False, xmap="16x2", w0=0, wwarm="c", gp=1, pat="MeeeMeeceececeMeeccM|eeeceecc", hst=0), **(opt or {}))
    a = Asm()
    S_ = (lambda i, cyc=False: st(a, i, cyc)) if st else (lambda i, cyc=False: None)
    a.raw(f".globl {name}\n.p2align 8\n.type {name},@function")
    a.label(name)
    a("s_cmp_ge_u32 s2, 256")
    a("s_cbranch_scc1 L_end")
    if st: st.init(a); S_(0)
    a("s_load_dwordx16 s[64:79], s[0:1], 0")
    a("s_load_dwordx8 s[80:87], s[0:1], 64")
    a("v_lshrrev_b32 v3, 6, v0")
    a(f"v_and_b32 v{LANE}, 63, v0")
    a("v_readfirstlane_b32 s6, v3")
    a(f"v_lshlrev_b32 v{L16}, 4, v{LANE}")
    a(f"v_mov_b32 v{ZERO}, 0")
    if opt["xmap"] == "8x4":
        a("s_bfe_u32 s4, s2, 0x20001"); a("s_lshl_b32 s4, s4, 3"); a("s_lshr_b32 s7, s2, 5"); a("s_add_u32 s4, s4, s7")
        a("s_and_b32 s5, s2, 1"); a("s_lshl_b32 s5, s5, 2"); a("s_bfe_u32 s7, s2, 0x20003"); a("s_add_u32 s5, s5, s7")
        NSH = 8; NSD = 8
    elif opt["xmap"] == "4x8":
        a("s_and_b32 s4, s2, 7"); a("s_lshl_b32 s4, s4, 2"); a("s_lshr_b32 s7, s2, 6"); a("s_add_u32 s4, s4, s7")
        a("s_bfe_u32 s5, s2, 0x30003")
        NSH = 4; NSD = 4
    elif opt["xmap"] == "16x2":
        a("s_bfe_u32 s4, s2, 0x10002"); a("s_lshl_b32 s4, s4, 4"); a("s_lshr_b32 s7, s2, 4"); a("s_add_u32 s4, s4, s7")
        a("s_and_b32 s5, s2, 3"); a("s_lshl_b32 s5, s5, 1"); a("s_bfe_u32 s7, s2, 0x10003"); a("s_add_u32 s5, s5, s7")
        NSH = 16; NSD = 16
    a("s_and_b32 s3, s6, 3")
    a(f"v_lshlrev_b32 v{FWA}, 2, v{LANE}")
    a("s_cmp_lg_u32 s6, 0")
    a("s_cbranch_scc1 L_nozero")
    a(f"ds_write_b32 v{FWA}, v{ZERO}")
    a.label("L_nozero")
    a("s_waitcnt lgkmcnt(0)")
    srd(a, 8, P_X, 2048 * 1280)
    srd(a, 88, P_DBG, 256)
    a("s_cmp_ge_u32 s6, 4")
    a("s_cbranch_scc1 L_g_role")
    ln_group(a, 3, 7, 24, 10, 11)
    a("s_or_b32 s25, s2, s6")
    a("s_cmp_lg_u32 s25, 0")
    a("s_cbranch_scc1 L_notagpub")
    a("s_memrealtime s[60:61]")
    a("s_waitcnt lgkmcnt(0)")
    a("s_or_b32 s60, s60, 1")
    a("v_mov_b32 v8, s60")
    a("s_mov_b64 exec, 1")
    a(f"buffer_store_dword v8, v{ZERO}, s[88:91], 0 offen sc1")
    a("s_mov_b64 exec, -1")
    a.label("L_notagpub")
    a("s_barrier")
    for i in range(10):
        a.vmem(f"buffer_load_dwordx4 {vr(16+4*i,4)}, v10, s[8:11], s7 offen offset:{128*i}", ("x", i))
    vm_a = list(a.vm)
    a("s_branch L_a_role")
    a.label("L_g_role")
    a.vm = []; a.lg = []
    gen_g(a, S_, st, opt, NSH)
    a("s_endpgm")
    a.emit_cold()
    a.label("L_a_role")
    a.vm = vm_a; a.lg = []
    gen_a(a, S_, st, opt, NSH)
    a.emit_cold()
    a.label("L_end")
    a("s_endpgm")
    txt = a.text()
    if opt.get("gwrap"):
        out = []; on = False; low = False
        for l in txt.split("\n"):
            if "@@G_MAIN_BEGIN" in l: on = True; out.append(l); out.append("    s_setprio 3"); continue
            if "@@G_MAIN_END" in l:
                on = False
                if low: out.append("    s_setprio 3"); low = False
            t = l.strip()
            if on:
                if t.startswith("s_setprio"): continue
                if t.startswith("v_mfma"):
                    if not low:
                        out.append(f"    s_setprio {opt.get('glow', 0)}"); low = True
                        if opt.get("gnop") is not None: out.append(f"    s_nop {opt['gnop']}")
                elif low and t and not t.startswith(";"):
                    out.append(f"    s_setprio {opt.get('ghigh', 3)}"); low = False
            out.append(l)
        txt = "\n".join(out)
    if opt.get("allsc"):
        out = []
        for l in txt.split("\n"):
            t = l.strip()
            if t.startswith("buffer_load_dwordx4") and " sc1" not in t and "s[8:11]" not in t:
                l = (l[:-4] + f" {opt['allsc']} lds") if t.endswith(" lds") else l + f" {opt['allsc']}"
            out.append(l)
        txt = "\n".join(out)
    if opt.get("gdrop"):
        out = []; on = False
        for l in txt.split("\n"):
            if "@@G_MAIN_BEGIN" in l: on = True
            if "@@G_MAIN_END" in l: on = False
            t = l.strip()
            if on and "mfma" in opt["gdrop"] and t.startswith("v_mfma"): continue
            if on and "lds" in opt["gdrop"] and (t.startswith("ds_read_b64_tr") or t.startswith("ds_read_b128")): continue
            if on and "dma" in opt["gdrop"] and t.startswith("buffer_load_dwordx4"): continue
            out.append(l)
        txt = "\n".join(out)
    return txt, kdesc(name, 256, 102)

def gen_a(a, S0_, st, opt, NSH):
    QS = {5: 0, 7: 1, 16: 2, 19: 3, 28: 6, 31: 7} if opt.get("qst") else {}
    S_ = (lambda i, cyc=False: S0_(i, cyc) if (not opt.get("qst") or i in (4, 5, 8, 9, 10, 11)) else None)
    X = 16; U = 56; SUM, SQ = 12, 14; TAG = 8; WQA = 7
    WQO = 136
    srd(a, 12, P_WQ, 640 * 1280)
    wq_offsets(a, WQO)
    a("s_lshl_b32 s24, s5, 2")
    a("s_add_u32 s24, s24, s3")
    a("s_mul_i32 s25, s5, 160")
    a("s_mul_i32 s26, s3, 40960")
    a("s_add_u32 s25, s25, s26")
    a("s_mul_i32 s26, s3, 5120")
    a(f"s_add_u32 s26, s26, {L_R1}")
    def wq_one(g4, i, tag):
        def f():
            a(f"s_add_u32 m0, s26, {g4*5120 + (4096 if i == 4 else 0)}")
            a(f"s_add_u32 s27, s25, {g4*40960}")
            ins = f"buffer_load_dwordx4 v{WQO+i}, s[12:15], s27 offen" + (f" offset:{i*1024}" if i < 4 else "") + " lds"
            if tag: a.vmem(ins, tag)
            else:
                l = a.newlabel("g4"); a("s_cmp_lg_u32 s3, 0"); a(f"s_cbranch_scc1 {l}"); a(ins); a.label(l)
        return f
    srd(a, 16, P_WG, 640 * 3072)
    srd(a, 20, P_WU, 640 * 3072)
    late = [wq_one(4, i, None) for i in range(5)] + [wq_one(0, i, "p1") for i in range(5)]
    if not opt.get("nowarm"):
        warm_lane(a, 146, TA, 1280, 640 // NSH // 4, 160, 2)
        warm_lane(a, 147, TA, 3072, max(opt["w0"] // NSH // 4, 1), 384, 3)
        share(a, 32, NSH)
        a(f"s_mul_i32 s33, s32, {opt['w0'] // NSH // 4 * 3072}")
        a(f"s_mul_i32 s32, s32, {640 // NSH // 4 * 1280}")
        a("s_mul_i32 s34, s5, 160"); a("s_add_u32 s32, s32, s34")
        a("s_mul_i32 s34, s5, 384"); a("s_add_u32 s33, s33, s34")
        late = [lambda: a.vmem(f"buffer_load_dword v{DUMMY}, v146, s[12:15], s32 offen", "warm")] + late
        if opt["w0"]: late += [lambda: a.vmem(f"buffer_load_dword v{DUMMY}, v147, s[16:19], s33 offen", "warm"),
                 lambda: a.vmem(f"buffer_load_dword v{DUMMY}, v147, s[20:23], s33 offen", "warm")]
    XA0, XA1, FWQ, NEED, FG, F8 = 141, 142, 143, 9, 144, 145
    a(f"v_and_b32 v{TA}, 7, v{LANE}")
    a(f"v_lshlrev_b32 v{F8}, 2, v{TA}")
    a(f"v_and_b32 v{FAD}, 12, v{F8}")
    a(f"v_add_u32 v{FG}, {L_FLAGG}, v{FAD}")
    a(f"v_lshrrev_b32 v{TB}, 5, v{LANE}")
    a(f"v_bfe_u32 v{WQA}, v{LANE}, 2, 2")
    a(f"v_lshl_add_u32 v{WQA}, v{TB}, 3, v{WQA}")
    a(f"v_mul_u32_u24 v{WQA}, 160, v{WQA}")
    a(f"v_mul_u32_u24 v{XA0}, 528, v{TB}")
    a(f"v_and_b32 v{TB}, 1, v{LANE}")
    a(f"v_lshlrev_b32 v{TB}, 4, v{TB}")
    a(f"v_bfe_u32 v{TA}, v{LANE}, 1, 1")
    a(f"v_lshl_add_u32 v{TB}, v{TA}, 3, v{TB}")
    a(f"v_and_b32 v{TA}, 16, v{LANE}")
    a(f"v_cmp_eq_u32 vcc, 0, v{TA}")
    a(f"v_mov_b32 v{TA}, 32")
    a("s_mul_i32 s30, s3, 40")
    a(f"s_add_u32 s30, s30, {L_R1}")
    a(f"v_cndmask_b32 v{TB}, v{TA}, v{TB}, vcc")
    a(f"v_add3_u32 v{WQA}, v{WQA}, v{TB}, s30")
    a(f"v_and_b32 v{TA}, 31, v{LANE}")
    a(f"v_lshl_add_u32 v{XA0}, v{TA}, 4, v{XA0}")
    a(f"v_add_u32 v{XA0}, {L_XN}, v{XA0}")
    a(f"v_add_u32 v{XA1}, {XNT}, v{XA0}")
    a("s_lshl_b32 s30, s3, 2")
    a(f"v_mov_b32 v{FWQ}, s30")
    WF = lambda k: 176 + 4 * k if k < 20 else 16 + 4 * (k - 20)
    def wq_read(k0, n):
        for k in range(k0, k0 + n):
            for hf in range(2):
                off = SLOT(k//2)*5120+(k%2)*2560+hf*640
                a.lds(f"ds_read_b64_tr_b16 {vr(WF(k)+2*hf,2)}, v{WQA if off < 40960 else 12} offset:{off % 40960}", ("wr", k))
    S_(1)
    def hk(i):
        if i == 0:
            S_(2); a.sprinkle(late, 10)
    ln_stats(a, X, U, 10, SUM, SQ, lambda i: ("x", i), hk)
    a.flush_pend()
    dpp_sum(a, [SUM, SQ], ("quad_perm:[1,0,3,2]", "quad_perm:[2,3,0,1]", "row_half_mirror"))
    ln_finish(a, SUM, SQ)
    a.vmem(f"buffer_load_dword v{TAG}, v{ZERO}, s[88:91], 0 offen sc1", "tag")
    ln_write(a, X, U, SUM, SQ, 11)
    a.wait(vm="p1", lg="all")
    set_flag(a, TA, FWQ, 3)
    S_(3)
    poll_lds(a, TB, FAD, 3, "fl")
    wq_read(0, 10)
    a.wait(lg=("wr", 9))
    set_flag(a, TA, FWQ, 4)
    a(f"v_mov_b32 v11, {L_WQF}")
    a(f"v_add_u32 v12, 40960, v{WQA}")
    QACC = [144, 160]; QF = 96; QD = 5
    a(f"s_setprio {opt['prioA']}")
    srd(a, 16, P_WS, KV_BYTES, WS_KV)
    srd(a, 20, P_WS, O_BYTES, WS_O)
    srd(a, 56, P_WS, FL_BYTES, WS_FL)
    poll_lds(a, TB, F8, 3, "fl")
    S_(4)
    def qreads(ks):
        b = QF + (ks % QD) * 8
        a.lds(f"ds_read_b128 {vr(b,4)}, v{XA0} offset:{ks*1056}", ("qa", ks))
        a.lds(f"ds_read_b128 {vr(b+4,4)}, v{XA1} offset:{ks*1056}", ("qa", ks))
    RD = {6: (10, 3), 7: (13, 3), 8: (16, 3), 9: (19, 3), 10: (22, 3), 11: (25, 3), 12: (28, 2), 18: (30, 4), 19: (34, 3), 20: (37, 3)}
    for ks in range(QD - 1): qreads(ks)
    for ks in range(40):
        if ks in QS and QS[ks]: S0_(QS[ks])
        if ks + QD - 1 < 40: qreads(ks + QD - 1)
        if ks in (5, 17): a.lds(f"ds_read_b32 v{TB}, v11", "fl")
        if ks == 6: poll_lds(a, TB, 11, 1, "fl", issue=False)
        if ks == 18: poll_lds(a, TB, 11, 2, "fl", issue=False)
        if ks in RD: wq_read(*RD[ks])
        if ks == 23:
            a.wait(lg=("wr", 39)); set_flag(a, TA, FWQ, 6)
        if ks == 30: a.lds(f"ds_read_b32 v{TB}, v{FAD}", "fl")
        if ks == 32: poll_lds(a, TB, FAD, 6, "fl", issue=False)
        a.wait(lg=[("qa", ks), ("wr", ks)])
        b = QF + (ks % QD) * 8
        a(f"v_mfma_f32_32x32x16_bf16 {vr(QACC[0],16)}, {vr(WF(ks),4)}, {vr(b,4)}, {vr(QACC[0],16) if ks else 0}")
        if ks == 34:
            tag_check(a, TAG)
            a(f"v_lshrrev_b32 v{TA}, 2, v{LANE}")
            a(f"v_lshlrev_b32 v{TA}, 8, v{TA}")
            a(f"v_and_b32 v{TB}, 3, v{LANE}")
            a(f"v_lshl_add_u32 v{NEED}, v{TB}, 4, v{TA}")
            a("s_lshl_b32 s27, s3, 6")
            a.vmem(f"buffer_load_dword v{TAG}, v{NEED}, s[56:59], s27 offen sc1", "kvfl")
        a(f"v_mfma_f32_32x32x16_bf16 {vr(QACC[1],16)}, {vr(WF(ks),4)}, {vr(b+4,4)}, {vr(QACC[1],16) if ks else 0}")
    S_(5)
    BK2, BV, MX, FG2 = 9, 10, 11, 12
    RA = [13, 14, 15]
    QA = [16 + 4 * i for i in range(8)]; QB = [48 + 2 * i for i in range(8)]
    K1f = [64, 68, 72]; K2f = [76, 78, 80]; Vf = [[82, 86], [90, 94], [98, 102]]
    P = [106, 114]; S = [122, 138]
    O = [154 + 12 * i for i in range(8)]
    a(f"v_mov_b32 v{FWA}, s30")
    if opt.get("aoff"):
        set_flag(a, TA, FWA, 9); st.flush(a, P_WS, 6, 20); a("s_endpgm")
    a(f"v_lshlrev_b32 v{BK2}, 3, v{LANE}") if False else None
    def owner(i2, sd):
        a(f"s_add_u32 s{sd}, s3, {1+i2}"); a(f"s_and_b32 s{sd}, s{sd}, 3")
    a(f"v_cmp_gt_u32 vcc, 32, v{LANE}")
    a(f"v_mov_b32 v{TA}, 0x{f32hex(QSCALE):08x}")
    a(f"s_mov_b32 s31, 0x{f32hex(QSCALE):08x}")
    a(f"s_mul_i32 s29, s3, {WRING}")
    a(f"v_cndmask_b32 v{MX}, 0, v{TA}, vcc")
    a("s_mov_b64 s[60:61], vcc")
    a(f"s_add_u32 s29, s29, {L_R1 + QXO}")
    a(f"v_add_u32 v{FG2}, s29, v{L16}")
    a(f"v_lshlrev_b32 v{BV}, 3, v{LANE}")
    a(f"v_add_u32 v{TB}, s29, v{BV}")
    for i2 in range(3):
        owner(i2, 32); a(f"s_mul_i32 s32, s32, {WRING}"); a(f"s_add_u32 s32, s32, {L_R1 + QXO}")
        a(f"v_add_u32 v{RA[i2]}, s32, v{L16}")
    for t in range(2):
        for i in range(8): a(f"v_mul_f32 v{QACC[t]+i}, s31, v{QACC[t]+i}")
        for i in range(8, 12): a(f"v_mul_f32 v{QACC[t]+i}, v{MX}, v{QACC[t]+i}")
        for i in range(4): a(f"v_cvt_pk_bf16_f32 v{QA[6+t]+i}, v{QACC[t]+2*i}, v{QACC[t]+2*i+1}")
        for i in range(2): a(f"v_cvt_pk_bf16_f32 v{QB[6+t]+i}, v{QACC[t]+8+2*i}, v{QACC[t]+9+2*i}")
        a.lds(f"ds_write_b128 v{FG2}, {vr(QA[6+t],4)} offset:{t*1536}", "qw")
        a.lds(f"ds_write_b64 v{TB}, {vr(QB[6+t],2)} offset:{t*1536+1024}", "qw")
    a("s_bfe_u32 s28, s2, 0x40003")
    a(f"s_mul_i32 s28, s28, {KVSLOT}")
    a("s_mul_i32 s33, s3, 3072")
    a("s_add_u32 s28, s28, s33")
    a.wait(lg="qw")
    set_flag(a, FV + 0 if False else TA, FWA, 8)
    a.wait(vm="kvfl")
    a(f"v_cmp_ne_u32 vcc, s62, v{TAG}")
    a("s_cmp_eq_u64 vcc, 0")
    a("s_cbranch_scc1 L_a_kvok")
    def qx_reads():
        poll_lds(a, TA, FAD, 8, "fl")
        for i2 in range(3):
            for t in range(2):
                a.lds(f"ds_read_b128 {vr(QA[2*i2+t],4)}, v{RA[i2]} offset:{t*1536}", "qr")
            a(f"v_sub_u32 v{TA}, v{RA[i2]}, v{BV}")
            for t in range(2):
                a.lds(f"ds_read_b64 {vr(QB[2*i2+t],2)}, v{TA} offset:{t*1536+1024}", "qr")
        a.wait(lg="qr")
        set_flag(a, TA, FWA, 9)
    qx_reads()
    poll_global(a, TAG, 1, NEED, 56, "s27", "s62", sleep=4)
    a("s_mov_b32 s35, 1")
    a("s_branch L_a_kvld")
    a.label("L_a_kvok")
    a("s_mov_b32 s35, 0")
    a.label("L_a_kvld")
    a.vm = []; a.lg = []
    a(f"v_mov_b32 v{BK2}, v{BV}")
    a(f"v_and_b32 v{TA}, 31, v{LANE}")
    a(f"v_min_u32 v{TA}, 21, v{TA}")
    a(f"v_lshlrev_b32 v{TA}, 4, v{TA}")
    a(f"v_lshrrev_b32 v{TB}, 5, v{LANE}")
    a(f"v_mul_u32_u24 v{TB}, 384, v{TB}")
    a(f"v_add_u32 v{MX}, v{TA}, v{TB}")
    BVL = MX
    def kld(buf, so, tag):
        return [lambda: a.vmem(f"buffer_load_dwordx4 {vr(K1f[buf],4)}, v{L16}, s[16:19], {so} offen sc1", tag),
                lambda: a.vmem(f"buffer_load_dwordx2 {vr(K2f[buf],2)}, v{BK2}, s[16:19], {so} offen offset:1024 sc1", tag)]
    def vld(buf, so, tag):
        return [lambda: a.vmem(f"buffer_load_dwordx4 {vr(Vf[buf][0],4)}, v{BVL}, s[16:19], {so} offen offset:1536 sc1", tag),
                lambda: a.vmem(f"buffer_load_dwordx4 {vr(Vf[buf][1],4)}, v{BVL}, s[16:19], {so} offen offset:2304 sc1", tag)]
    def adv():
        return [lambda: (a(f"s_add_u32 s28, s28, {KVSLOT}"), a(f"s_sub_u32 s27, s28, {KV_BYTES}")),
                lambda: (a(f"s_cmp_ge_u32 s28, {KV_BYTES}"), a("s_cselect_b32 s28, s27, s28"))]
    for f in kld(0, "s28", ("k", 0)) + vld(0, "s28", ("v", 0)) + adv() + kld(1, "s28", ("k", 1)) + vld(1, "s28", ("v", 1)) + adv(): f()
    S_(6)
    a("s_cmp_eq_u32 s35, 1")
    a("s_cbranch_scc1 L_a_qxdone")
    qx_reads()
    a.label("L_a_qxdone")
    a.lg = []
    srd(a, 92, P_WD, 1536 * 1280); srd(a, 96, P_WO, 640 * 1280)
    warm_lane(a, 254, TA, 1280, 512 // NSH // 4, 320, 3)
    share(a, 32, NSH)
    a("s_and_b32 s37, s5, 3"); a("s_mul_i32 s37, s37, 320")
    a(f"s_mul_i32 s33, s32, {320 // NSH // 4 * 1280}"); a("s_add_u32 s33, s33, s37")
    a(f"s_mul_i32 s35, s32, {512 // NSH // 4 * 1280}"); a("s_add_u32 s35, s35, s37")
    def cold_warm(it, which):
        def f():
            l = a.newlabel("cw"); r = a.newlabel("cr")
            a(f"s_cmp_eq_u32 s34, {it}"); a(f"s_cbranch_scc1 {l}"); a.label(r)
            if which == "d": a.cold += [f"{l}:", "    buffer_load_dword v255, v254, s[92:95], s35 offen", f"    s_add_u32 s35, s35, {512*1280}", f"    s_branch {r}"]
            else: a.cold += [f"{l}:", "    buffer_load_dword v255, v254, s[96:99], s33 offen", f"    s_add_u32 s33, s33, {320*1280}", f"    s_branch {r}"]
        return f
    for i in range(8):
        a(f"v_mov_b32 v{P[1]+i}, 0"); a(f"v_mov_b32 v{Vf[2][0]+i}, 0")
    for i in range(100): a(f"v_mov_b32 v{O[0]+i}, 0")
    a("s_lshl_b32 s36, s4, 1")
    a("s_mul_i32 s36, s36, 40960")
    a("s_lshr_b32 s37, s24, 3")
    a("s_mul_i32 s37, s37, 10240")
    a("s_add_u32 s36, s36, s37")
    a("s_and_b32 s37, s24, 7")
    a("s_lshl_b32 s38, s37, 10")
    a("s_add_u32 s38, s38, s36")
    a("s_lshr_b32 s39, s37, 1")
    a("s_lshl_b32 s39, s39, 9")
    a("s_and_b32 s37, s37, 1")
    a("s_lshl_b32 s37, s37, 3")
    a("s_add_u32 s39, s39, s37")
    a("s_add_u32 s39, s39, s36")
    a("s_add_u32 s39, s39, 8192")
    a("s_add_u32 s40, s38, 40960")
    a("s_add_u32 s41, s39, 40960")
    a("s_lshl_b32 s36, s4, 5")
    a("s_add_u32 s36, s36, s24")
    a("s_lshl_b32 s36, s36, 4")
    a(f"s_add_u32 s36, s36, {FL_O}")
    a(f"s_mov_b32 s42, 0x{f32hex(2.0**100):08x}")
    a(f"v_lshlrev_b32 v{TB}, 2, v{LANE}")
    for i2 in range(3):
        a(f"v_sub_u32 v{RA[i2]}, v{RA[i2]}, v{L16}")
        a(f"v_add_u32 v{RA[i2]}, v{RA[i2]}, v{TB}")
    a(f"v_add_u32 v{FG2}, s29, v{TB}")
    def rowmax(t, dst, init):
        s = S[t]
        if init:
            a(f"v_max3_f32 v{dst}, v{s}, v{s+1}, v{s+2}")
            for i in range(3, 15, 2): a(f"v_max3_f32 v{dst}, v{dst}, v{s+i}, v{s+i+1}")
            a(f"v_max_f32 v{dst}, v{dst}, v{s+15}")
        else:
            for i in range(0, 16, 2): a(f"v_max3_f32 v{dst}, v{dst}, v{s+i}, v{s+i+1}")
    def embed(t, m):
        a(f"v_mov_b32 v{TB}, v{m}")
        a("s_nop 1")
        a(f"v_permlane32_swap_b32 v{m}, v{TB}")
        a("s_nop 1")
        a(f"v_max_f32 v{m}, v{m}, v{TB}")
        a(f"v_sub_f32 v{m}, 0, v{m}")
        a(f"v_cvt_pk_bf16_f32 v{TB}, v{m}, v{m}")
        a(f"v_lshlrev_b32 v{TB}, 16, v{TB}")
        a(f"v_sub_f32 v{TB}, v{m}, v{TB}")
        a(f"v_cvt_pk_bf16_f32 v{TB}, v{m}, v{TB}")
        a(f"v_cndmask_b32 v{QB[6+t]}, v{TB}, v{QB[6+t]}, s[60:61]")
    a.wait(vm=("k", 0))
    for t in range(2):
        a(f"v_mfma_f32_32x32x16_bf16 {vr(S[t],16)}, {vr(K1f[0],4)}, {vr(QA[6+t],4)}, 0")
        a(f"v_mfma_f32_32x32x8_bf16 {vr(S[t],16)}, {vr(K2f[0],2)}, {vr(QB[6+t],2)}, {vr(S[t],16)}")
    a("s_nop 7"); a("s_nop 1")
    for t in range(2):
        rowmax(t, TA, True); embed(t, TA)
        a.lds(f"ds_write_b32 v{FG2}, v{QB[6+t]} offset:{WSLOT+t*256}", "mw")
    a.wait(lg="mw")
    set_flag(a, FV, FWA, 10)
    poll_lds(a, FV, FAD, 10, "fl")
    for i2 in range(3):
        for t in range(2):
            a.lds(f"ds_read_b32 v{QB[2*i2+t]}, v{RA[i2]} offset:{WSLOT+t*256}", ("mr", 2 * i2 + t))
    for i2 in range(3):
        owner(i2, 32); a("s_mul_i32 s32, s32, 18432"); a(f"s_add_u32 s32, s32, {L_RED + i2*6144}")
        a(f"v_add_u32 v{RA[i2]}, s32, v{L16}")
    a(f"v_add_u32 v{FG2}, {L_FLAGG}, v{FAD}")
    a("s_mul_i32 s32, s3, 18432")
    a(f"s_add_u32 s32, s32, {L_RED}")
    a(f"v_add_u32 v{BV}, s32, v{L16}")
    a(f"v_mfma_f32_32x32x16_bf16 {vr(S[0],16)}, {vr(K1f[0],4)}, {vr(QA[0],4)}, 0")
    a.wait(lg="all")
    a(f"v_mfma_f32_32x32x8_bf16 {vr(S[0],16)}, {vr(K2f[0],2)}, {vr(QB[0],2)}, {vr(S[0],16)}")
    a("s_mov_b32 s34, 0")
    a("s_nop 7"); a("s_nop 1")
    a.vm = [("v", 0)] * 2 + [("k", 1)] * 2 + [("v", 1)] * 2
    S_(7); S_(10, True)
    pat = opt.get("pat", "MeeeMeeeMeeeM|eeeeeeecccccccc")
    def tile(b, last):
        for j in range(8):
            if opt.get("ts") and not last and (b == 0 or (b == 1 and j == 0)):
                ix = j if b == 0 else 8
                a(f"s_memtime s[{64+2*ix}:{65+2*ix}]")
            fill = []
            if not last:
                b2 = (b + 2) % 3
                if j in (1, 2): fill = [kld(b2, "s28", ("k", b2))[j - 1]]
                if j in (3, 4): fill = [vld(b2, "s28", ("v", b2))[j - 3]]
                if j == 5: fill = adv()
                if j == 6 and not opt.get("nowarm"): fill = [cold_warm(opt.get("wdit", 0), "d")] + ([cold_warm(opt.get("wdit", 0) + 1, "o")] if b < 2 else [])
            else:
                if j == 0: fill = [lambda: a.lds(f"ds_read_b32 v{FV}, v{FG2}", "fl")]
                if j == 1: fill = [lambda: poll_lds(a, FV, FG2, 4, "fl", issue=False)]
                if 2 <= j <= 7:
                    jj = j - 2
                    fill = [lambda: None] * 3 + [(lambda r=r: a.lds(f"ds_write_b128 v{RA[jj//2]}, {vr(O[jj]+4*r,4)} offset:{(jj%2)*3072+r*1024}", "ow")) for r in range(3)]
            if j == 7 and not last: a.wait(vm=("k", (b + 1) % 3))
            if j == 1: a.wait(vm=("v", b))
            kb = b if j < 7 else (b + 1) % 3
            vb = b if j > 0 else (b - 1) % 3
            aa = j % 2; o = 1 - aa
            s_, p_ = S[aa], P[aa]
            jn, jp = (j + 1) % 8, (j - 1) % 8
            M = [f"v_mfma_f32_32x32x16_bf16 {vr(S[o],16)}, {vr(K1f[kb],4)}, {vr(QA[jn],4)}, 0",
                 f"v_mfma_f32_32x32x8_bf16 {vr(S[o],16)}, {vr(K2f[kb],2)}, {vr(QB[jn],2)}, {vr(S[o],16)}",
                 f"v_mfma_f32_32x32x16_bf16 {vr(O[jp],16)}, {vr(Vf[vb][0],4)}, {vr(P[o],4)}, {vr(O[jp],16)}",
                 f"v_mfma_f32_32x32x16_bf16 {vr(O[jp],16)}, {vr(Vf[vb][1],4)}, {vr(P[o]+4,4)}, {vr(O[jp],16)}"]
            ne = nc = nm = 0
            for ch in pat:
                if ch == "M":
                    if not (last and j == 7 and nm < 2): a(M[nm])
                    nm += 1
                elif ch == "e": a(f"v_exp_f32 v{s_+ne}, v{s_+ne}"); ne += 1
                elif ch == "c": a(f"v_cvt_pk_bf16_f32 v{p_+nc}, v{s_+2*nc}, v{s_+2*nc+1}"); nc += 1
                elif ch == "|": a.sprinkle(fill, opt.get("fevery", 1), "v_")
            a.flush_pend()
    top_vm = list(a.vm)
    a.raw(".p2align 6")
    a.label("L_a_loop")
    tile(0, False); tile(1, False); tile(2, False)
    if opt.get("its"):
        for it, ix in ((0, 1), (1, 2), (2, 3), (3, 4), (4, 5)):
            l = a.newlabel("it"); a(f"s_cmp_lg_u32 s34, {it}"); a(f"s_cbranch_scc1 {l}"); S0_(ix, True); a(f"s_sub_u32 s{44+ix}, s{44+ix}, s54"); a(f"s_mul_i32 s{44+ix}, s{44+ix}, 100"); a(f"s_add_u32 s{44+ix}, s{44+ix}, s44"); a.label(l)
    a("s_add_u32 s34, s34, 1")
    a("s_cmp_lt_u32 s34, 5")
    a("s_cbranch_scc1 L_a_loop")
    assert a.vm == top_vm, (a.vm, top_vm)
    tile(0, True)
    a("s_nop 0")
    a(f"v_mfma_f32_32x32x16_bf16 {vr(O[7],16)}, {vr(Vf[0][0],4)}, {vr(P[1],4)}, {vr(O[7],16)}")
    a(f"v_mfma_f32_32x32x16_bf16 {vr(O[7],16)}, {vr(Vf[0][1],4)}, {vr(P[1]+4,4)}, {vr(O[7],16)}")
    a.wait(lg="ow")
    set_flag(a, FV, FWA, 11)
    if st:
        S_(8); S_(11, True); a("s_sub_u32 s54, s55, s54"); a("s_mov_b32 s55, 0")
        if opt.get("ts"):
            for i in range(1, 8):
                a(f"s_sub_u32 s{44+i}, s{64+2*i}, s{62+2*i}"); a(f"s_mul_i32 s{44+i}, s{44+i}, 100"); a(f"s_add_u32 s{44+i}, s{44+i}, s44")
    poll_lds(a, FV, FAD, 11, "fl")
    RR = 16
    RR = O[0]
    if opt.get("tst"): S0_(1)
    for src in range(3):
        for t in range(2):
            for r in range(3):
                a.lds(f"ds_read_b128 {vr(RR+24*src+12*t+4*r,4)}, v{BV} offset:{src*6144+t*3072+r*1024}", ("or", src))
    for src in range(3):
        a.wait(lg=("or", src))
        for i in range(0, 24, 2):
            a(f"v_pk_add_f32 {vr(O[6]+i,2)}, {vr(O[6]+i,2)}, {vr(RR+24*src+i,2)}")
    a(f"v_add_f32_e64 v{TA}, |v{O[6]}|, |v{O[6]+1}|")
    for i in range(2, 24): a(f"v_add_f32_e64 v{TA}, v{TA}, |v{O[6]+i}|")
    a(f"v_cmp_ngt_f32 vcc, s42, v{TA}")
    a("s_cmp_eq_u64 vcc, 0")
    a("s_cbranch_scc0 L_a_fallback")
    a.label("L_a_norm")
    if opt.get("tst"): S0_(2)
    a(f"v_mov_b32 v{FG2}, {BIG}")
    a(f"v_cndmask_b32 v{FG2}, v{FG2}, v{L16}, s[60:61]")
    for t in range(2):
        oo = O[6 + t]
        a(f"v_mov_b32 v{TA}, v{oo+8}")
        a(f"v_mov_b32 v{TB}, v{oo+8}")
        a("s_nop 1")
        a(f"v_permlane32_swap_b32 v{TA}, v{TB}")
        a("s_nop 1")
        a(f"v_rcp_f32 v{TB}, v{TB}")
        a("s_nop 0")
        for i in range(12): a(f"v_mul_f32 v{oo+i}, v{oo+i}, v{TB}")
        for i in range(6): a(f"v_cvt_pk_bf16_f32 v{S[t]+i}, v{oo+2*i}, v{oo+2*i+1}")
        a(f"buffer_store_dwordx4 {vr(S[t],4)}, v{L16}, s[20:23], s{38+2*t} offen sc1")
        a(f"buffer_store_dwordx2 {vr(S[t]+4,2)}, v{FG2}, s[20:23], s{39+2*t} offen sc1")
    a(f"v_mov_b32 v{TA}, s62")
    if opt.get("tst"): S0_(3)
    a("s_waitcnt vmcnt(0)")
    a("s_mov_b64 exec, 1")
    a(f"buffer_store_dword v{TA}, v{ZERO}, s[56:59], s36 offen sc1")
    a("s_mov_b64 exec, -1")
    if st:
        S_(9); st.flush(a, P_WS, 6, 20)
    a("s_endpgm")
    a.label("L_a_fallback")
    a("s_waitcnt vmcnt(0) lgkmcnt(0)")
    M = [RA[0], RA[1]]
    FO = [154, 170]
    for t in range(2):
        a(f"v_mov_b32 v{M[t]}, 0xff800000")
        a(f"v_cndmask_b32 v{QB[6+t]}, v{ZERO}, v{QB[6+t]}, s[60:61]")
    a("s_mov_b32 s43, 0")
    a.label("L_a_fb1")
    for f in kld(0, "s43", None): f()
    a("s_waitcnt vmcnt(0)")
    for t in range(2):
        a(f"v_mfma_f32_32x32x16_bf16 {vr(S[t],16)}, {vr(K1f[0],4)}, {vr(QA[6+t],4)}, 0")
        a(f"v_mfma_f32_32x32x8_bf16 {vr(S[t],16)}, {vr(K2f[0],2)}, {vr(QB[6+t],2)}, {vr(S[t],16)}")
    a("s_nop 7"); a("s_nop 7")
    for t in range(2): rowmax(t, M[t], False)
    a("s_add_u32 s43, s43, 3072")
    a(f"s_cmp_lt_u32 s43, {KV_BYTES}")
    a("s_cbranch_scc1 L_a_fb1")
    NEG = [186, 202]
    for t in range(2):
        a(f"v_mov_b32 v{TB}, v{M[t]}")
        a("s_nop 1")
        a(f"v_permlane32_swap_b32 v{M[t]}, v{TB}")
        a("s_nop 1")
        a(f"v_max_f32 v{M[t]}, v{M[t]}, v{TB}")
        for i in range(16):
            a(f"v_sub_f32 v{NEG[t]+i}, 0, v{M[t]}"); a(f"v_mov_b32 v{FO[t]+i}, 0")
    a("s_mov_b32 s43, 0")
    a.label("L_a_fb2")
    for f in kld(0, "s43", None) + vld(0, "s43", None): f()
    a("s_waitcnt vmcnt(0)")
    for t in range(2):
        a(f"v_mfma_f32_32x32x16_bf16 {vr(S[t],16)}, {vr(K1f[0],4)}, {vr(QA[6+t],4)}, {vr(NEG[t],16)}")
        a(f"v_mfma_f32_32x32x8_bf16 {vr(S[t],16)}, {vr(K2f[0],2)}, {vr(QB[6+t],2)}, {vr(S[t],16)}")
    a("s_nop 7"); a("s_nop 7")
    for t in range(2):
        for r in range(16): a(f"v_exp_f32 v{S[t]+r}, v{S[t]+r}")
        a("s_nop 0")
        for i in range(8): a(f"v_cvt_pk_bf16_f32 v{P[t]+i}, v{S[t]+2*i}, v{S[t]+2*i+1}")
        a("s_nop 1")
        a(f"v_mfma_f32_32x32x16_bf16 {vr(FO[t],16)}, {vr(Vf[0][0],4)}, {vr(P[t],4)}, {vr(FO[t],16)}")
        a(f"v_mfma_f32_32x32x16_bf16 {vr(FO[t],16)}, {vr(Vf[0][1],4)}, {vr(P[t]+4,4)}, {vr(FO[t],16)}")
    a("s_add_u32 s43, s43, 3072")
    a(f"s_cmp_lt_u32 s43, {KV_BYTES}")
    a("s_cbranch_scc1 L_a_fb2")
    a("s_nop 7"); a("s_nop 7")
    for t in range(2):
        for i in range(12): a(f"v_mov_b32 v{O[6+t]+i}, v{FO[t]+i}")
    a("s_branch L_a_norm")

def gen_g(a, S0_, st, opt, NSH):
    E_ = (lambda i: S0_(i)) if opt.get("early") else (lambda i: None)
    S_ = (lambda i, cyc=False: S0_(i, cyc) if (not opt.get("early") or i < 6 or i == 9) else None)
    E_(6)
    TAG = 11
    X = 16; U = 32; SUM, SQ = 12, 14
    a("s_setprio 3")
    a(f"v_lshrrev_b32 v{TA}, 5, v{LANE}")
    a(f"v_mul_u32_u24 v{TA}, 1280, v{TA}")
    a(f"v_and_b32 v{TB}, 31, v{LANE}")
    a(f"v_lshl_add_u32 v56, v{TB}, 4, v{TA}")
    a(f"v_mov_b32 v9, {BIG}")
    a(f"v_cmp_gt_u32 vcc, 16, v{TB}")
    a("s_lshl_b32 s28, s4, 3")
    a("s_add_u32 s28, s28, s5")
    a("v_cndmask_b32 v57, v9, v56, vcc")
    a("s_lshl_b32 s7, s28, 2")
    a("s_add_u32 s7, s7, s3")
    a("s_mul_i32 s7, s7, 2560")
    a("s_mov_b64 s[60:61], vcc")
    a.vmem(f"buffer_load_dwordx4 {vr(X,4)}, v56, s[8:11], s7 offen", ("x", 0))
    a.vmem(f"buffer_load_dwordx4 {vr(X+4,4)}, v56, s[8:11], s7 offen offset:512", ("x", 1))
    a.vmem(f"buffer_load_dwordx4 {vr(X+8,4)}, v57, s[8:11], s7 offen offset:1024", ("x", 2))
    a("s_barrier")
    a("s_cmp_ge_u32 s3, 2")
    a(f"s_cselect_b32 s12, s{P_WV}, s{P_WK}")
    a(f"s_cselect_b32 s13, s{P_WV+1}, s{P_WK+1}")
    a("s_mov_b32 s14, 25600"); a("s_mov_b32 s15, 0x00020000")
    a(f"s_cselect_b32 s24, {L_WV-L_WK}, 0")
    a(f"s_add_u32 s24, s24, {L_WK}")
    a("s_and_b32 s25, s3, 1")
    a("s_lshl_b32 s25, s25, 10")
    a("s_add_u32 s24, s24, s25")
    for j in range(13):
        a(f"s_add_u32 m0, s24, {j*2048}")
        a("s_nop 0")
        a.vmem(f"buffer_load_dwordx4 v{L16}, s[12:15], s25 offen lds", "wkv")
        a("s_add_u32 s25, s25, 2048")
    X2 = 216; U2 = 64
    a(f"v_and_b32 v{TB}, 31, v{LANE}")
    a(f"v_and_b32 v{TA}, 3, v{LANE}")
    a(f"v_lshlrev_b32 v{FAD}, 2, v{TA}")
    a(f"v_add_u32 v{FAD}, {L_FLAGG}, v{FAD}")
    a("s_lshl_b32 s30, s3, 2")
    a(f"s_add_u32 s30, s30, {L_FLAGG}")
    a(f"v_mov_b32 v{FWA}, s30")
    GQ, WA, XA, J, XW = 58, 59, 60, 61, 62
    a(f"v_lshrrev_b32 v{GQ}, 4, v{LANE}")
    a(f"v_bfe_u32 v{WA}, v{LANE}, 2, 2")
    a(f"v_lshl_add_u32 v{WA}, v{GQ}, 3, v{WA}")
    a(f"v_mul_u32_u24 v{WA}, 40, v{WA}")
    a(f"v_lshlrev_b32 v{TA}, 3, v{TA}")
    a("s_cmp_ge_u32 s3, 2")
    a("s_cselect_b32 s24, 0, -1")
    a("s_cselect_b32 s25, 32, 0")
    a("s_bitcmp1_b32 s3, 0")
    a(f"s_cselect_b32 s26, {L_WV-L_WK}, 0")
    a(f"s_add_u32 s26, s26, {L_WK}")
    a("s_add_u32 s25, s25, s26")
    a(f"v_and_b32 v{TA}, s24, v{TA}")
    a(f"v_add3_u32 v{WA}, v{WA}, v{TA}, s25")
    a("s_lshr_b32 s26, s5, 2")
    a(f"s_mul_i32 s26, s26, {XNT}")
    a("s_and_b32 s27, s5, 3")
    a("s_lshl_b32 s27, s27, 7")
    a("s_add_u32 s26, s26, s27")
    a(f"s_add_u32 s26, s26, {L_XN}")
    a(f"v_and_b32 v{TA}, 7, v{LANE}")
    a(f"v_mul_u32_u24 v{XA}, 528, v{GQ}")
    a(f"v_lshl_add_u32 v{XA}, v{TA}, 4, v{XA}")
    a(f"v_add_u32 v{XA}, s26, v{XA}")
    a("s_lshl_b32 s27, s3, 5")
    a("s_add_u32 s27, s27, s26")
    a(f"v_mul_u32_u24 v{XW}, 528, v{TB}")
    a(f"v_lshrrev_b32 v{TA}, 5, v{LANE}")
    a(f"v_lshl_add_u32 v{XW}, v{TA}, 4, v{XW}")
    a(f"v_add_u32 v{XW}, s27, v{XW}")
    srd(a, 24, P_WS, KV_BYTES, WS_KV)
    srd(a, 56, P_WS, FL_BYTES, WS_FL)
    srd(a, 16, P_WG, 640 * 3072)
    srd(a, 20, P_WU, 640 * 3072)
    a("s_lshr_b32 s29, s28, 2")
    a("s_mul_i32 s29, s29, 3072")
    a("s_bfe_u32 s30, s28, 0x10001")
    a("s_and_b32 s31, s28, 1")
    a(f"v_and_b32 v{J}, 15, v{LANE}")
    a("s_bitcmp1_b32 s3, 0")
    a("s_cbranch_scc1 L_g_va")
    a("s_lshl_b32 s32, s30, 4"); a("s_lshl_b32 s33, s31, 2"); a("s_add_u32 s32, s32, s33")
    a(f"v_lshrrev_b32 v30, 2, v{J}")
    a("v_lshlrev_b32 v30, 3, v30")
    a(f"v_and_b32 v28, 3, v{J}")
    a("v_add3_u32 v30, v30, v28, s32")
    a(f"v_lshrrev_b32 v28, 1, v{GQ}")
    a("v_lshlrev_b32 v28, 9, v28")
    a("v_lshl_add_u32 v28, v30, 4, v28")
    a(f"v_and_b32 v31, 1, v{GQ}")
    a("v_lshl_add_u32 v28, v31, 3, v28")
    a("v_lshlrev_b32 v31, 3, v30")
    a(f"v_lshl_add_u32 v31, v{GQ}, 8, v31")
    a("v_add_u32 v31, 1024, v31")
    a(f"v_cmp_gt_u32 vcc, 2, v{GQ}")
    a("v_mov_b32 v29, 0x3f803f80")
    a("v_mov_b32 v57, 0")
    a("v_cndmask_b32 v31, v9, v31, vcc")
    a(f"v_cmp_eq_u32 s[40:41], 1, v{GQ}")
    a("s_cmp_ge_u32 s3, 2")
    a("s_cselect_b64 vcc, -1, 0")
    a("s_cselect_b64 s[40:41], s[40:41], 0")
    a("v_cndmask_b32 v28, v28, v31, vcc")
    a(f"v_cmp_gt_u32 vcc, 8, v{J}")
    a("s_nop 1")
    a("v_cndmask_b32 v28, v9, v28, vcc")
    a("s_branch L_g_vb")
    a.label("L_g_va")
    a("s_mul_i32 s32, s30, 768"); a("s_mul_i32 s33, s31, 384"); a("s_add_u32 s32, s32, s33"); a("s_add_u32 s32, s32, 1536")
    a(f"v_and_b32 v30, 3, v{J}")
    a(f"v_bfe_u32 v28, v{J}, 2, 1")
    a("v_lshl_add_u32 v30, v28, 3, v30")
    a(f"v_bfe_u32 v28, v{J}, 3, 1")
    a("v_lshl_add_u32 v30, v28, 2, v30")
    a(f"v_add_u32 v28, 16, v{J}")
    a("s_cmp_ge_u32 s3, 2")
    a("s_cselect_b64 vcc, -1, 0")
    a("s_cselect_b32 s33, 6, 16")
    a("s_cselect_b32 s34, 4, 99")
    a("s_cselect_b32 s35, 5, 99")
    a("v_cndmask_b32 v30, v30, v28, vcc")
    a("v_lshlrev_b32 v30, 4, v30")
    a(f"v_lshl_add_u32 v30, v{GQ}, 3, v30")
    a("v_add_u32 v30, s32, v30")
    a(f"v_cmp_gt_u32 vcc, s33, v{J}")
    a("v_mov_b32 v29, 0x3f803f80")
    a("s_nop 0")
    a("v_cndmask_b32 v30, v9, v30, vcc")
    a(f"v_cmp_gt_u32 vcc, 2, v{GQ}")
    a("s_nop 1")
    a("v_cndmask_b32 v28, v9, v30, vcc")
    a(f"v_cmp_eq_u32 s[40:41], s35, v{J}")
    a(f"v_cmp_eq_u32 vcc, s34, v{J}")
    a("s_nop 1")
    a(f"v_cndmask_b32 v29, v29, v{ZERO}, s[40:41]")
    a("s_or_b64 s[40:41], vcc, s[40:41]")
    a("v_mov_b32 v57, v29")
    a.label("L_g_vb")
    a("s_min_u32 s42, s3, 2")
    a("s_add_u32 s42, s42, 4")
    ln_group(a, 42, 43, 42, 56, 63)
    wq_offsets(a, 144)
    srd(a, 92, P_WQ, 640 * 1280)
    a("s_mul_i32 s42, s5, 160")
    S_(1)
    def hook(i):
        if i == 0:
            S_(2)
            a.vmem(f"buffer_load_dword v{TAG}, v{ZERO}, s[88:91], 0 offen sc1", "tag")
    ln_stats(a, X, U, 3, SUM, SQ, lambda i: ("x", i), hook)
    dpp_sum(a, [SUM, SQ], ("quad_perm:[1,0,3,2]", "quad_perm:[2,3,0,1]", "row_half_mirror", "row_mirror"))
    a(f"v_mov_b32 v{SUM+1}, v{SUM}"); a(f"v_mov_b32 v{SQ+1}, v{SQ}")
    a("s_nop 1")
    a(f"v_permlane16_swap_b32 v{SUM}, v{SUM+1}")
    a(f"v_permlane16_swap_b32 v{SQ}, v{SQ+1}")
    a("s_nop 1")
    a(f"v_add_f32 v{SUM}, v{SUM}, v{SUM+1}")
    a(f"v_add_f32 v{SQ}, v{SQ}, v{SQ+1}")
    ln_finish(a, SUM, SQ)
    for i in range(3):
        for d in range(4):
            pp = vr(U + 8 * i + 2 * d, 2)
            a(f"v_pk_fma_f32 {pp}, {pp}, {vr(SQ,2)}, {vr(SUM,2)}")
        for d in range(4):
            a(f"v_cvt_pk_bf16_f32 v{X+4*i+d}, v{U+8*i+2*d}, v{U+8*i+2*d+1}")
        if i == 2: a("s_mov_b64 exec, s[60:61]")
        a.lds(f"ds_write_b128 v{XW}, {vr(X+4*i,4)} offset:{i*16896}", "xw")
        if i == 2: a("s_mov_b64 exec, -1")
    a.wait(vm="wkv", lg="all")
    set_flag(a, FV, FWA, 1)
    poll_lds(a, FV, FAD, 1, "fl")
    S_(3)
    KA = 16
    def rd(s):
        b = 64 + (s % 10) * 8
        a.lds(f"ds_read_b64_tr_b16 v[{b}:{b+1}], v{WA} offset:{s*1280}", ("g", s))
        a.lds(f"ds_read_b64_tr_b16 v[{b+2}:{b+3}], v{WA} offset:{s*1280+160}", ("g", s))
        a.lds(f"ds_read_b128 v[{b+4}:{b+7}], v{XA} offset:{s*2112}", ("g", s))
    a("s_bitcmp1_b32 s3, 0")
    a("s_cbranch_scc1 L_g_v")
    sv = (list(a.vm), list(a.lg))
    for role in ("k", "v"):
        if role == "v":
            a.label("L_g_v"); a.vm, a.lg = list(sv[0]), list(sv[1])
        for s_ in range(5): rd(s_)
        for s_ in range(20):
            if s_ % 2 == 0:
                a.vmem(f"buffer_load_dwordx4 {vr(X2+2*s_,4)}, v56, s[8:11], s43 offen offset:{64*s_}", ("x2", s_ // 2))
            a.wait(lg=("g", s_))
            if s_ + 5 < 20: rd(s_ + 5)
            b = 64 + (s_ % 10) * 8
            cin = vr(KA, 4) if s_ else "0"
            if role == "k": a(f"v_mfma_f32_16x16x32_bf16 {vr(KA,4)}, v[{b}:{b+3}], v[{b+4}:{b+7}], {cin}")
            else: a(f"v_mfma_f32_16x16x32_bf16 {vr(KA,4)}, v[{b+4}:{b+7}], v[{b}:{b+3}], {cin}")
        if role == "k": a("s_branch L_g_kvst")
    a.label("L_g_kvst")
    set_flag(a, FV, FWA, 2)
    a("s_nop 3")
    a(f"v_cvt_pk_bf16_f32 v24, v{KA}, v{KA+1}")
    a(f"v_cvt_pk_bf16_f32 v25, v{KA+2}, v{KA+3}")
    a("v_cndmask_b32 v24, v24, v29, s[40:41]")
    a("v_cndmask_b32 v25, v25, v57, s[40:41]")
    a.vmem("buffer_store_dwordx2 v[24:25], v28, s[24:27], s29 offen sc1", "kvst")
    S_(4)
    def g3_wq(g0, n):
        for g in range(g0, g0 + n):
            a(f"s_add_u32 m0, 0, {L_R1 + SLOT(g)*5120}")
            a(f"s_add_u32 s43, s42, {g*40960}")
            for i in range(4):
                a(f"buffer_load_dwordx4 v{144+i}, s[92:95], s43 offen offset:{i*1024} lds")
            a(f"s_add_u32 m0, 0, {L_R1 + SLOT(g)*5120+4096}")
            a("s_nop 0")
            a(f"buffer_load_dwordx4 v148, s[92:95], s43 offen lds")
    a("s_cmp_eq_u32 s3, 3")
    a("s_cbranch_scc1 L_g_noln")
    ln_stats(a, X2, U2, 10, SUM, SQ, lambda i: ("x2", i))
    dpp_sum(a, [SUM, SQ], ("quad_perm:[1,0,3,2]", "quad_perm:[2,3,0,1]", "row_half_mirror"))
    ln_finish(a, SUM, SQ)
    a("s_waitcnt vmcnt(0)")
    a("s_branch L_g_ln1")
    a.label("L_g_noln")
    a.lg = []
    poll_lds(a, FV, FAD, 2, "fl")
    g3_wq(5, 10)
    a("s_waitcnt vmcnt(50)")
    a.label("L_g_ln1")
    a.vm = []
    tag_check(a, TAG)
    a(f"v_mov_b32 v{TA}, s62")
    a("s_lshl_b32 s36, s28, 4")
    a("s_mov_b64 exec, 1")
    a(f"v_mov_b32 v{FV}, 1")
    a(f"ds_add_rtn_u32 v{FV}, v{ZERO}, v{FV} offset:{L_CNTKV}")
    a("s_waitcnt lgkmcnt(0)"); a.lg = []
    a(f"v_cmp_eq_u32 vcc, 3, v{FV}")
    a("s_and_b64 exec, exec, vcc")
    a("s_cbranch_execz L_g_nokvflag")
    a(f"buffer_store_dword v{TA}, v{ZERO}, s[56:59], s36 offen sc1")
    a.label("L_g_nokvflag")
    a("s_mov_b64 exec, -1")
    S_(5)
    a("s_cmp_eq_u32 s3, 3")
    a("s_cbranch_scc1 L_g_noln2")
    ln_write(a, X2, U2, SUM, SQ, 63)
    a("s_branch L_g_ln2")
    a.label("L_g_noln2")
    a.lg = []
    set_flag(a, FV, FWA, 3)
    a(f"v_subrev_u32 v{TB}, {L_FLAGG}, v{FAD}")
    a("s_waitcnt vmcnt(0)")
    set_flag(a, FV, ZERO, 1, off=L_WQF)
    poll_lds(a, FV, TB, 4, "fl")
    g3_wq(15, 5)
    a("s_waitcnt vmcnt(0)")
    set_flag(a, FV, ZERO, 2, off=L_WQF)
    a.label("L_g_ln2")
    WO = [12, 13, 14]; WT, XA0, XA1 = 15, 9, 226
    for i in range(3):
        a(f"v_add_u32 v{WO[i]}, {64*i}, v{LANE}")
        a(f"v_mul_u32_u24 v{TA}, 171, v{WO[i]}")
        a(f"v_lshrrev_b32 v{TA}, 10, v{TA}")
        a(f"v_mul_u32_u24 v{TB}, 6, v{TA}")
        a(f"v_sub_u32 v{TB}, v{WO[i]}, v{TB}")
        a(f"v_mul_u32_u24 v{TA}, 3072, v{TA}")
        a(f"v_lshl_add_u32 v{WO[i]}, v{TB}, 4, v{TA}")
        if i: a(f"v_subrev_u32 v{WO[i]}, {1024*i}, v{WO[i]}")
    a("s_mul_i32 s32, s5, 384")
    a("s_mul_i32 s33, s3, 96")
    a("s_add_u32 s32, s32, s33")
    a(f"s_mul_i32 s33, s3, {WRING}")
    a(f"s_add_u32 s33, s33, {L_R1}")
    a("s_waitcnt lgkmcnt(0)"); a.lg = []
    set_flag(a, FV, FWA, 3)
    def w_parts(u):
        sl = (u % 3) * WSLOT
        def mk(m, i):
            def f():
                if i == 0:
                    a(f"s_add_u32 m0, s33, {sl + m*3200}"); a("s_nop 0")
                a.vmem(f"buffer_load_dwordx4 v{WO[i]}, s[{16+4*m}:{19+4*m}], s32 offen offset:{i*1024} lds", ("w", u))
                if m == 1 and i == 2: a("s_add_u32 s32, s32, 98304")
            return f
        return [mk(m, i) for m in range(2) for i in range(3)]
    def gwarm():
        warm(a, [16, 20], 3072, 640 // NSH // 4, 384, ("s5", 384), NSH, TA, 60, 61, 3)
    if opt.get("wwarm") == "b": gwarm()
    if opt.get("wwarm") == "c":
        a(f"v_mov_b32 v{TB}, {L_WQF}")
        poll_lds(a, FV, TB, 2, "fl")
        gwarm()
    AFL = 11
    a(f"v_subrev_u32 v{AFL}, {L_FLAGG}, v{FAD}")
    a(f"v_lshrrev_b32 v{TB}, 5, v{LANE}")
    a(f"v_bfe_u32 v{WT}, v{LANE}, 2, 2")
    a(f"v_lshl_add_u32 v{WT}, v{TB}, 3, v{WT}")
    a(f"v_mul_u32_u24 v{229}, 320, v{WT}")
    a(f"v_mul_u32_u24 v{WT}, 96, v{WT}")
    a(f"v_mul_u32_u24 v{XA0}, 528, v{TB}")
    a(f"v_mul_u32_u24 v{230}, 40, v{TB}")
    a(f"v_and_b32 v{TB}, 1, v{LANE}")
    a(f"v_lshl_add_u32 v{WT}, v{TB}, 4, v{WT}")
    a(f"v_bfe_u32 v{TB}, v{LANE}, 1, 1")
    a(f"v_lshl_add_u32 v{WT}, v{TB}, 3, v{WT}")
    a(f"v_bfe_u32 v{TB}, v{LANE}, 4, 1")
    a(f"v_mul_u32_u24 v{TA}, 3200, v{TB}")
    a(f"v_add3_u32 v{WT}, v{WT}, v{TA}, s33")
    DO = 232; DO2 = 237; XR = 242; DT, PA, OA, DT2 = 252, 253, 254, 255
    a(f"v_and_b32 v{TA}, 3, v{LANE}")
    a(f"v_lshl_add_u32 v{TA}, v{TB}, 2, v{TA}")
    a(f"v_mul_u32_u24 v{TA}, 40, v{TA}")
    a(f"s_mul_i32 s29, s3, {DRING}")
    a(f"s_add_u32 s29, s29, {L_D}")
    a(f"v_add3_u32 v{DT}, v229, v{TA}, s29")
    a(f"v_and_b32 v{TA}, 7, v{LANE}")
    a(f"v_lshlrev_b32 v{PA}, 4, v{TA}")
    a(f"v_and_b32 v{TA}, 31, v{LANE}")
    a(f"v_lshl_add_u32 v{XA0}, v{TA}, 4, v{XA0}")
    a(f"v_add_u32 v{XA0}, {L_XN}, v{XA0}")
    a(f"v_add_u32 v{XA1}, {XNT}, v{XA0}")
    a(f"v_mul_u32_u24 v{TA}, 1280, v{TA}")
    a(f"v_add_u32 v{OA}, v230, v{TA}")
    for i in range(5):
        a(f"v_add_u32 v{TA}, {64*i}, v{LANE}")
        a(f"v_mul_u32_u24 v{TB}, 205, v{TA}")
        a(f"v_lshrrev_b32 v{TB}, 12, v{TB}")
        a(f"v_mul_u32_u24 v{DO+i}, 20, v{TB}")
        a(f"v_sub_u32 v{TA}, v{TA}, v{DO+i}")
        a(f"v_lshlrev_b32 v{TA}, 4, v{TA}")
        if 0 < i < 4: a(f"v_subrev_u32 v{TA}, {1024*i}, v{TA}")
        a(f"v_mul_u32_u24 v{DO+i}, 1280, v{TB}")
        a(f"v_add_u32 v{DO+i}, v{DO+i}, v{TA}")
        a(f"v_lshrrev_b32 v{TB}, 2, v{TB}")
        a(f"v_add_u32 v{TB}, 1, v{TB}")
        a(f"v_mul_u32_u24 v{TB}, 20480, v{TB}")
        a(f"v_add_u32 v{DO2+i}, v{DO+i}, v{TB}")
    srd(a, 24, P_WS, H_BYTES, WS_H)
    srd(a, 12, P_WS, O_BYTES, WS_O)
    srd(a, 92, P_WD, 1536 * 1280)
    srd(a, 96, P_WO, 640 * 1280)
    a("s_mul_i32 s26, s5, 12288") if False else None
    a("s_lshl_b32 s36, s4, 1")
    a("s_mul_i32 s36, s36, 98304")
    a("s_mul_i32 s37, s5, 12288")
    a("s_mul_i32 s7, s3, 3072")
    a("s_add_u32 s7, s7, s37")
    a("s_add_u32 s36, s36, s7")
    a("s_add_u32 s37, s36, 98304")
    a("s_and_b32 s38, s5, 3")
    a(f"v_and_b32 v{TA}, 7, v{LANE}")
    a(f"v_lshlrev_b32 v{TA}, 2, v{TA}")
    poll_lds(a, FV, TA, 3, "fl")
    poll_lds(a, FV, AFL, 6, "fl")
    a(f"s_setprio {opt['prioG']}")
    S_(6)
    a.raw("; @@G_MAIN_BEGIN")
    ACC = [[16 + 16 * (3 * b + t) for t in range(3)] for b in range(2)]
    FR = 112
    def f1parts(k):
        b = FR + (k % 2) * 20
        off = ((k // 2) % 3) * WSLOT + (k % 2) * 1536
        def B(i): return lambda: a.lds(f"ds_read_b128 {vr(b+4*i,4)}, v{XA1 if i else XA0} offset:{k*1056}", ("fb", k, i))
        def A_(t, hf):
            def f():
                if t == 0 and hf == 0: a.wait(vm=("w", k // 2))
                a.lds(f"ds_read_b64_tr_b16 {vr(b+8+4*t+2*hf,2)}, v{WT} offset:{off+t*32+hf*384}", ("fa", k, t))
            return f
        return [B(0), A_(0, 0), A_(0, 1), A_(1, 0), A_(1, 1), A_(2, 0), A_(2, 1), B(1)]
    a("s_mul_i32 s38, s38, 320")
    a("s_mul_i32 s39, s7, 20")
    a("s_add_u32 s39, s39, s38")
    a("s_mul_i32 s40, s3, 204800")
    a("s_add_u32 s40, s40, s38")
    a("s_mov_b32 s41, s40")
    def d_parts(k):
        sl = DS(k)
        if k < 24: sd, so, vo = "s[92:95]", "s39", DO
        elif k < 32: sd, so, vo = "s[96:99]", "s40", DO
        else: sd, so, vo = "s[96:99]", "s41", DO2
        def mk(i):
            def f():
                if i in (0, 4):
                    a(f"s_add_u32 m0, s29, {sl + (4096 if i == 4 else 0)}"); a("s_nop 0")
                a.vmem(f"buffer_load_dwordx4 v{vo+i}, {sd}, {so} offen" + (f" offset:{i*1024}" if i < 4 else "") + " lds", ("d", k))
                if i == 4:
                    if k < 24 and k % 3 == 2:
                        a("s_add_u32 s39, s39, 204800")
                        a("s_sub_u32 s60, s39, 1966080")
                        a("s_cmp_ge_u32 s39, 1966080")
                        a("s_cselect_b32 s39, s60, s39")
                    else:
                        a(f"s_add_u32 {so}, {so}, {20480 if k < 24 else (25600 if k < 32 else 102400)}")
            return f
        return [mk(i) for i in range(5)]
    def d_dma(k):
        for f in d_parts(k): f()
    for u in range(2):
        for f in w_parts(u): f()
    for f in f1parts(0): f()
    pend = []
    for k in range(40):
        b = FR + (k % 2) * 20
        rd_ = f1parts(k + 1) if k + 1 < 40 else []
        if k == 1:
            pend += [lambda: poll_lds(a, FV, AFL, 9, "fl")] + w_parts(2)
        if k % 2 == 0 and k >= 2 and k // 2 + 2 < 20:
            pend += w_parts(k // 2 + 2)
        if opt.get("f1st") and k in (1, 10, 20, 30): S0_({1: 1, 10: 2, 20: 3, 30: 4}[k])
        if k == 36: pend += d_parts(0)
        cut = [0, 2, 4, 5, 6, 7, 8]
        i = 0
        for bb in range(2):
            for t in range(3):
                a.wait(lg=[("fb", k, bb), ("fa", k, t)])
                a(f"v_mfma_f32_32x32x16_bf16 {vr(ACC[bb][t],16)}, {vr(b+8+4*t,4)}, {vr(b+4*bb,4)}, {vr(ACC[bb][t],16) if k else 0}")
                for f in rd_[cut[i]:cut[i+1]]: f()
                if i >= 2 and pend: pend.pop(0)()
                i += 1
    assert not pend
    d_dma(1); d_dma(2)
    set_flag(a, FV, FWA, 4)
    S_(7)
    a("s_lshl_b32 s30, s4, 9")
    a("s_lshl_b32 s31, s3, 7")
    a("s_add_u32 s30, s30, s31")
    a("s_lshl_b32 s42, s5, 4")
    a("s_add_u32 s42, s42, s30")
    a(f"s_add_u32 s42, s42, {FL_H}")
    a(f"s_add_u32 s31, s30, {FL_O}")
    a(f"s_add_u32 s30, s30, {FL_H}")
    a.lds(f"ds_read_b32 v{FV}, v{FAD}", "fl")
    a("s_cmp_ge_u32 s5, 4")
    a("s_cselect_b64 vcc, -1, 0")
    DA = [16 + 16 * t for t in range(5)]; BF = 136
    if opt.get('gp', 2) == 1: a('s_setprio 3')
    for b in range(2):
        for t in range(3):
            c = ACC[b][t]
            for r in range(0, 8, 2): a(f"v_pk_mul_f32 {vr(c+r,2)}, {vr(c+r,2)}, {vr(c+8+r,2)}")
            for i in range(4): a(f"v_cvt_pk_bf16_f32 v{c+8+i}, v{c+2*i}, v{c+2*i+1}")
            a.vmem(f"buffer_store_dwordx4 {vr(c+8,4)}, v{L16}, s[24:27], s{36+b} offen offset:{t*1024} sc1", "hst")
    for t in range(3):
        for i in range(4):
            a(f"v_cndmask_b32 v{BF+4*t+i}, v{ACC[0][t]+8+i}, v{ACC[1][t]+8+i}, vcc")
        a.done.add(("b", t))
    if opt.get('gp', 2) == 1: a('s_setprio 0')
    poll_lds(a, FV, FAD, 4, "fl", issue=False)
    d_dma(3)
    a("s_lshl_b32 s36, s4, 1")
    a("s_lshr_b32 s37, s5, 2")
    a("s_add_u32 s36, s36, s37")
    a("s_mul_i32 s43, s36, 40960")
    a("s_add_u32 s43, s43, s38")
    a("s_mul_i32 s37, s3, 80")
    a("s_add_u32 s43, s43, s37")
    a("s_mul_i32 s37, s36, 98304")
    a("s_mul_i32 s36, s36, 40960")
    a("s_mul_i32 s61, s3, 10240")
    a("s_add_u32 s36, s36, s61")
    a.wait(vm="hst")
    a(f"v_mov_b32 v{TA}, s62")
    a("s_mov_b64 exec, 1")
    a.vmem(f"buffer_store_dword v{TA}, v{ZERO}, s[56:59], s42 offen sc1", "hfl")
    a("s_mov_b64 exec, -1")
    a.vmem(f"buffer_load_dwordx4 {vr(XR,4)}, v{OA}, s[8:11], s43 offen", "xr")
    a.vmem(f"buffer_load_dwordx4 {vr(XR+4,4)}, v{OA}, s[8:11], s43 offen offset:16", "xr")
    a.vmem(f"buffer_load_dwordx2 {vr(XR+8,2)}, v{OA}, s[8:11], s43 offen offset:32", "xr")
    FS = lambda k: (96 + (k % 2) * 20) if k < 24 else [96, 116, 176, 196][k % 4]
    pend_dma = []
    def dparts(k):
        b = FS(k)
        def R(t, hf):
            def f():
                if t == 0 and hf == 0: a.wait(vm=("d", k))
                a.lds(f"ds_read_b64_tr_b16 {vr(b+4*t+2*hf,2)}, v{DT} offset:{DS(k)+t*8+hf*1280}", ("dr", k, t))
            return f
        return [R(t, hf) for t in range(5) for hf in range(2)]
    def dreads(k):
        for f in dparts(k): f()
    def mf(k, t):
        a.wait(vm=("b", k), lg=("dr", k, t))
        a(f"v_mfma_f32_32x32x16_bf16 {vr(DA[t],16)}, {vr(FS(k)+4*t,4)}, {vr(BF+4*(k%24),4)}, {vr(DA[t],16) if k else 0}")
    dreads(0)
    a(f"s_setprio {opt['prioG']}")
    for k in range(24):
        if k == 3:
            if opt.get("hst"): S_(10)
            poll_global(a, FV, 1, PA, 56, "s30", "s62")
            if opt.get("hst"): S_(11)
            for j in range(1, 8):
                a("s_add_u32 s7, s7, 12288")
                a("s_sub_u32 s61, s7, 98304")
                a("s_cmp_ge_u32 s7, 98304")
                a("s_cselect_b32 s7, s61, s7")
                a("s_add_u32 s61, s7, s37")
                for t in range(3):
                    a.vmem(f"buffer_load_dwordx4 {vr(BF+12*j+4*t,4)}, v{L16}, s[24:27], s61 offen offset:{t*1024} sc1", ("b", 3 * j + t))
        rd_ = dparts(k + 1)
        dm_ = d_parts(k + DN)
        cut = [0, 3, 6, 8, 10, 10]; dcut = [0, 0, 1, 2, 4, 5]
        for t in range(5):
            mf(k, t)
            for f in rd_[cut[t]:cut[t+1]]: f()
            if t == 1: a.wait(lg=("dr", k, 4))
            for f in dm_[dcut[t]:dcut[t+1]]: f()
    a.flush_pend()
    for k in (25, 26, 27): dreads(k)
    for k in (24, 25, 26, 27):
        a.wait(lg=("dr", k, 4)); d_dma(k + DN)
    a.raw("; @@G_MAIN_END")
    S_(8)
    if opt.get("aoff"):
        S_(9); st.flush(a, P_WS, 6, 20); a("s_endpgm")
    a("s_setprio 3")
    poll_global(a, FV, 1, PA, 56, "s31", "s62", sleep=opt.get("osleep", 2))
    for i in range(10):
        if i % 4 == 0 and i: a("s_add_u32 s36, s36, 4096")
        a.vmem(f"buffer_load_dwordx4 {vr(BF+4*i,4)}, v{L16}, s[12:15], s36 offen offset:{(i%4)*1024} sc1", ("b", 24 + i))
    if not opt.get("hst"): S_(10)
    for k in range(24, 34):
        rd_ = dparts(k + 3) if 28 <= k + 3 < 34 else []
        for t in range(5):
            mf(k, t)
            for f in rd_[2*t:2*t+2]: f()
        if k in (26, 27):
            a.wait(lg=("dr", k + 2, 4)); d_dma(k + 2 + DN)
    if not opt.get("hst"): S_(11)
    srd(a, 16, P_OUT, 2048 * 1280)
    a(f"v_add_u32 v{TA}, s29, v{L16}")
    a("s_mul_i32 s30, s3, 5120")
    a(f"s_add_u32 s30, s30, {L_D}")
    a(f"v_add_u32 v{DT}, s30, v{L16}")
    a(f"v_add_u32 v{PA}, {2*DRING}, v{DT}")
    RS = 96
    for i in range(10):
        a(f"v_lshlrev_b32 v{RS+2*i}, 16, v{XR+i}")
        a(f"v_and_b32 v{RS+2*i+1}, 0xffff0000, v{XR+i}")
    for t in range(5):
        for gq in range(4):
            a.lds(f"ds_write_b128 v{TA}, {vr(DA[t]+4*gq,4)} offset:{(gq*5+t)*1024}", "rw")
    a.wait(lg="all")
    set_flag(a, FV, FWA, 5)
    if opt.get("tst"): S0_(1)
    poll_lds(a, FV, FAD, 5, "fl")
    if opt.get("tst"): S0_(2)
    for w in range(4):
        for t in range(5):
            a.lds(f"ds_read_b128 {vr(16+20*w+4*t,4)}, v{DT if w < 2 else PA} offset:{(w%2)*DRING+t*1024}", ("rr", w))
    for w in range(4):
        a.wait(lg=("rr", w))
        for i in range(10):
            a(f"v_pk_add_f32 {vr(RS+2*i,2)}, {vr(RS+2*i,2)}, {vr(16+20*w+2*i,2)}")
    for i in range(10):
        a(f"v_cvt_pk_bf16_f32 v{120+i}, v{RS+2*i}, v{RS+2*i+1}")
    if opt.get("tst"): S0_(3)
    a(f"buffer_store_dwordx4 {vr(120,4)}, v{OA}, s[16:19], s43 offen")
    a(f"buffer_store_dwordx4 {vr(124,4)}, v{OA}, s[16:19], s43 offen offset:16")
    a(f"buffer_store_dwordx2 {vr(128,2)}, v{OA}, s[16:19], s43 offen offset:32")
    if st:
        a("s_waitcnt vmcnt(0)"); S_(9); st.flush(a, P_WS, 6, 20)
```

```python
import sys, json
from build import compose
import fz
from stamps import Stamps
D = len(sys.argv) > 2 and sys.argv[2] == "diag"
opt = json.loads(sys.argv[3]) if len(sys.argv) > 3 else {}
NAME = "parallel_sum__grouped_kv_mqa__glu_gated_bilinear__prompt_kernel"
t, d = fz.gen(NAME, st=Stamps(0) if D else None, opt=opt)
open(sys.argv[1], "w").write(compose([(NAME, t, d, 256, 512, fz.LDS_TOTAL)]))
```

```python
from asmlib import *
import math, struct
def f32hex(x): return struct.unpack("<I", struct.pack("<f", x))[0]
WS_KV = 0x280000;  KV_BYTES = 64 * 3072
WS_H  = 0x300000;  H_BYTES = 64 * 96 * 1024
WS_O  = 0x900000;  O_BYTES = 64 * 40 * 1024
WS_FL = 0xC00000;  FL_BYTES = 0x10000
FL_KV = 0; FL_H = 0x4000; FL_O = 0x8000
BIG = 0x40000000
L_FLAGA = 0; L_FLAGG = 16; L_CNTKV = 32; L_TAG = 36; L_KVOK = 40
L_XN = 256; XNT = 80 * 528
L_R1 = L_XN + 2 * XNT
KVSLOT = 12288
L_KV = 163840 - 4 * KVSLOT
L_WK = 110592; L_WV = L_WK + 26624
WSLOT = 6272
WSO = [0, 51200, 25600]
WMAP = lambda u: u % 3
DSLOT = 5120; DN = 3
L_RED = 256; L_MX = 161024
DS = lambda k: WSO[(k + 2) % 3]
QXO = 25600
LDS_TOTAL = 163840
QSCALE = (20 ** -0.5) * math.log2(math.e)
P_X, P_WQ, P_WK, P_WV, P_WO, P_BX, P_WG, P_WU, P_WD, P_OUT, P_DBG, P_WS = [64 + 2 * i for i in range(12)]
SPIN = 0x40000
LANE, L16, TA, TB, ZERO = 1, 2, 3, 4, 5
FAD, FWA, FV = 6, 7, 8
DUMMY = 10

def srd(a, d, p, nbytes, add=0):
    if add:
        a(f"s_add_u32 s{d}, s{p}, {add}"); a(f"s_addc_u32 s{d+1}, s{p+1}, 0")
    else:
        a(f"s_mov_b32 s{d}, s{p}"); a(f"s_mov_b32 s{d+1}, s{p+1}")
    a(f"s_mov_b32 s{d+2}, {nbytes}"); a(f"s_mov_b32 s{d+3}, 0x00020000")

def poll_lds(a, vF, vFaddr, need, tag, issue=True):
    ok = a.newlabel("pok"); lp = a.newlabel("plp"); sl = a.newlabel("psl")
    if issue: a.lds(f"ds_read_b32 v{vF}, v{vFaddr}", tag)
    a.wait(lg=tag)
    a(f"v_cmp_gt_u32 vcc, {need}, v{vF}")
    a("s_cmp_eq_u64 vcc, 0")
    a(f"s_cbranch_scc0 {sl}")
    a.label(ok)
    a.cold += [f"{sl}:", f"    s_mov_b32 s63, {SPIN}", f"{lp}:", "    s_sleep 1", f"    ds_read_b32 v{vF}, v{vFaddr}", "    s_waitcnt lgkmcnt(0)",
               "    s_sub_u32 s63, s63, 1", f"    s_cbranch_scc1 {ok}", f"    v_cmp_gt_u32 vcc, {need}, v{vF}", "    s_cmp_eq_u64 vcc, 0",
               f"    s_cbranch_scc0 {lp}", f"    s_branch {ok}"]

def set_flag(a, vtmp, vaddr, val, off=0):
    a("s_mov_b64 exec, 1")
    a(f"v_mov_b32 v{vtmp}, {val}")
    a.lds(f"ds_write_b32 v{vaddr}, v{vtmp}" + (f" offset:{off}" if off else ""), "fw")
    a("s_mov_b64 exec, -1")

def poll_global(a, vdst, n, vaddr, srdn, soffs, stag, sleep=6):
    ok = a.newlabel("gok"); lp = a.newlabel("glp")
    a(f"s_mov_b32 s63, {SPIN // 16}")
    a.label(lp)
    for i in range(n):
        a(f"buffer_load_dword v{vdst+i}, v{vaddr}, s[{srdn}:{srdn+3}], {soffs} offen offset:{i*1024} sc1")
    a("s_waitcnt vmcnt(0)")
    for i in range(n): a(f"v_xor_b32 v{vdst+i}, {stag}, v{vdst+i}")
    for i in range(1, n): a(f"v_or_b32 v{vdst}, v{vdst}, v{vdst+i}")
    a(f"v_cmp_ne_u32 vcc, 0, v{vdst}")
    a("s_cmp_eq_u64 vcc, 0")
    a(f"s_cbranch_scc1 {ok}")
    a(f"s_sleep {sleep}")
    a("s_sub_u32 s63, s63, 1")
    a(f"s_cbranch_scc0 {lp}")
    a.label(ok)
    a.vm = []

def get_tag(a, vT):
    ok = a.newlabel("tok"); lp = a.newlabel("tlp")
    a(f"s_mov_b32 s63, {SPIN}")
    a.label(lp)
    a(f"ds_read_b32 v{vT}, v{ZERO} offset:{L_TAG}")
    a("s_waitcnt lgkmcnt(0)")
    a(f"v_readfirstlane_b32 s62, v{vT}")
    a("s_cmp_lg_u32 s62, 0")
    a(f"s_cbranch_scc1 {ok}")
    a("s_sleep 1")
    a("s_sub_u32 s63, s63, 1")
    a(f"s_cbranch_scc0 {lp}")
    a.label(ok)
    a.lg = []

def warm(a, srdn, stride, rows_per_wave, width, col_expr, NSH, vt, st0, st1, lpr):
    a(f"s_and_b32 s{st0}, s4, {NSH-1}")
    a(f"s_lshl_b32 s{st0}, s{st0}, 2")
    a(f"s_add_u32 s{st0}, s{st0}, s3")
    a(f"s_mul_i32 s{st0}, s{st0}, {rows_per_wave*stride}")
    a(f"s_mul_i32 s{st1}, {col_expr[0]}, {col_expr[1]}")
    a(f"s_add_u32 s{st0}, s{st0}, s{st1}")
    rpi = 64 // lpr
    a(f"v_mul_u32_u24 v{vt+1}, {(512 + lpr - 1) // lpr}, v{LANE}")
    a(f"v_lshrrev_b32 v{vt+1}, 9, v{vt+1}")
    a(f"v_mul_u32_u24 v{vt}, {lpr}, v{vt+1}")
    a(f"v_sub_u32 v{vt}, v{LANE}, v{vt}")
    a(f"v_lshlrev_b32 v{vt}, 7, v{vt}")
    a(f"v_min_u32 v{vt}, {width-4}, v{vt}")
    a(f"v_min_u32 v{vt+1}, {min(rpi, rows_per_wave)-1}, v{vt+1}")
    a(f"v_mul_u32_u24 v{vt+1}, {stride}, v{vt+1}")
    a(f"v_add_u32 v{vt}, v{vt}, v{vt+1}")
    n = (rows_per_wave + rpi - 1) // rpi
    for i in range(n):
        for sd in srdn:
            a.vmem(f"buffer_load_dword v{DUMMY}, v{vt}, s[{sd}:{sd+3}], s{st0} offen", "warm")
        if i + 1 < n:
            step = rpi if (i + 2) * rpi <= rows_per_wave else rows_per_wave - rpi - rpi * i
            a(f"s_add_u32 s{st0}, s{st0}, {step*stride}")

def warm_lane(a, dst, tmp, stride, rows, width, lpr):
    a(f"v_mul_u32_u24 v{tmp}, {(512 + lpr - 1) // lpr}, v{LANE}")
    a(f"v_lshrrev_b32 v{tmp}, 9, v{tmp}")
    a(f"v_mul_u32_u24 v{dst}, {lpr}, v{tmp}")
    a(f"v_sub_u32 v{dst}, v{LANE}, v{dst}")
    a(f"v_lshlrev_b32 v{dst}, 7, v{dst}")
    a(f"v_min_u32 v{dst}, {width-4}, v{dst}")
    a(f"v_min_u32 v{tmp}, {rows-1}, v{tmp}")
    a(f"v_mul_u32_u24 v{tmp}, {stride}, v{tmp}")
    a(f"v_add_u32 v{dst}, v{dst}, v{tmp}")

def share(a, sd, NSH):
    a(f"s_and_b32 s{sd}, s4, {NSH-1}")
    a(f"s_lshl_b32 s{sd}, s{sd}, 2")
    a(f"s_add_u32 s{sd}, s{sd}, s3")

def tag_check(a, vT):
    ok = a.newlabel("tok"); lp = a.newlabel("tlp")
    a(f"s_mov_b32 s63, {SPIN // 16}")
    a.label(lp)
    a(f"v_readfirstlane_b32 s62, v{vT}")
    a("s_cmp_lg_u32 s62, 0")
    a(f"s_cbranch_scc1 {ok}")
    a("s_sleep 4")
    a(f"buffer_load_dword v{vT}, v{ZERO}, s[88:91], 0 offen sc1")
    a("s_waitcnt vmcnt(0)")
    a("s_sub_u32 s63, s63, 1")
    a(f"s_cbranch_scc0 {lp}")
    a.label(ok)

def ln_finish(a, SUM, SQ):
    a(f"v_mul_f32 v{SUM}, 0x{f32hex(1.0/640):08x}, v{SUM}")
    a(f"v_mul_f32 v{SQ}, 0x{f32hex(1.0/640):08x}, v{SQ}")
    a(f"v_fma_f32 v{SQ}, -v{SUM}, v{SUM}, v{SQ}")
    a(f"v_max_f32 v{SQ}, 0, v{SQ}")
    a(f"v_add_f32 v{SQ}, 0x{f32hex(1e-5):08x}, v{SQ}")
    a(f"v_rsq_f32 v{SQ}, v{SQ}")
    a("s_nop 0")
    a(f"v_mul_f32 v{SUM}, v{SUM}, v{SQ}")
    a(f"v_mov_b32 v{SQ+1}, v{SQ}")
    a(f"v_sub_f32 v{SUM}, 0, v{SUM}")
    a(f"v_mov_b32 v{SUM+1}, v{SUM}")

def ln_stats(a, X, U, n, SUM, SQ, tagf, hook=None):
    for i in range(n):
        a.wait(vm=tagf(i))
        if hook: hook(i)
        for d in range(4):
            a(f"v_lshlrev_b32 v{U+8*i+2*d}, 16, v{X+4*i+d}")
            a(f"v_and_b32 v{U+8*i+2*d+1}, 0xffff0000, v{X+4*i+d}")
        for d in range(4):
            p = vr(U + 8 * i + 2 * d, 2)
            if i == 0 and d == 0:
                a(f"v_pk_mul_f32 {vr(SQ,2)}, {p}, {p}")
                a(f"v_pk_add_f32 {vr(SUM,2)}, {p}, {vr(U+2,2)}")
            else:
                if not (i == 0 and d == 1): a(f"v_pk_add_f32 {vr(SUM,2)}, {vr(SUM,2)}, {p}")
                a(f"v_pk_fma_f32 {vr(SQ,2)}, {p}, {p}, {vr(SQ,2)}")
    a(f"v_add_f32 v{SUM}, v{SUM}, v{SUM+1}")
    a(f"v_add_f32 v{SQ}, v{SQ}, v{SQ+1}")
    a("s_nop 0")

def dpp_sum(a, regs, ctls):
    for ctl in ctls:
        for r in regs: a(f"v_add_f32_dpp v{r}, v{r}, v{r} {ctl} row_mask:0xf bank_mask:0xf")
        a("s_nop 0")

def ln_group(a, idx_expr_sgpr, sgl, sld, vgl, vld):
    a(f"s_cmp_ge_u32 s{idx_expr_sgpr}, s5")
    a(f"s_addc_u32 s{sld}, s{idx_expr_sgpr}, 0")
    a(f"s_lshl_b32 s{sgl}, s4, 3")
    a(f"s_add_u32 s{sgl}, s{sgl}, s{sld}")
    a(f"s_mul_i32 s{sgl}, s{sgl}, 10240")
    a(f"v_lshrrev_b32 v{TB}, 3, v{LANE}")
    a(f"v_mul_u32_u24 v{vgl}, 1280, v{TB}")
    a(f"v_and_b32 v{TA}, 7, v{LANE}")
    a(f"v_lshl_add_u32 v{vgl}, v{TA}, 4, v{vgl}")
    a(f"v_mul_u32_u24 v{vld}, 528, v{TA}")
    a(f"v_lshl_add_u32 v{vld}, v{TB}, 4, v{vld}")
    a(f"s_and_b32 s63, s{sld}, 3")
    a("s_lshl_b32 s63, s63, 7")
    a(f"s_lshr_b32 s{sld}, s{sld}, 2")
    a(f"s_mul_i32 s{sld}, s{sld}, {XNT}")
    a(f"s_add_u32 s{sld}, s{sld}, s63")
    a(f"s_add_u32 s{sld}, s{sld}, {L_XN}")
    a(f"v_add_u32 v{vld}, s{sld}, v{vld}")

def ln_write(a, X, U, SUM, SQ, vld):
    for i in range(10):
        for d in range(4):
            pp = vr(U + 8 * i + 2 * d, 2)
            a(f"v_pk_fma_f32 {pp}, {pp}, {vr(SQ,2)}, {vr(SUM,2)}")
        for d in range(4):
            a(f"v_cvt_pk_bf16_f32 v{X+4*i+d}, v{U+8*i+2*d}, v{U+8*i+2*d+1}")
        a.lds(f"ds_write_b128 v{vld}, {vr(X+4*i,4)} offset:{i*4224}", "xw")

def wq_offsets(a, WQO):
    for i in range(5):
        a(f"v_add_u32 v{TA}, {64*i}, v{LANE}")
        a(f"v_mul_u32_u24 v{TB}, 205, v{TA}")
        a(f"v_lshrrev_b32 v{TB}, 11, v{TB}")
        a(f"v_mul_u32_u24 v{WQO+i}, 10, v{TB}")
        a(f"v_sub_u32 v{TA}, v{TA}, v{WQO+i}")
        a(f"v_lshlrev_b32 v{TA}, 4, v{TA}")
        if 0 < i < 4: a(f"v_subrev_u32 v{TA}, {1024*i}, v{TA}")
        a(f"v_mul_u32_u24 v{WQO+i}, 1280, v{TB}")
        a(f"v_add_u32 v{WQO+i}, v{WQO+i}, v{TA}")
SLOT = lambda g: g % 15
L_WQF = 44

def gen(name, st=None, opt=None):
    opt = dict(dict(prioA=2, prioG=0, pattern=4, endstamp=False, xmap="16x2", w0=0, wwarm="c", gp=1, pat="MeeeMeeceececeMeeccM|eeeceecc", hst=0), **(opt or {}))
    a = Asm()
    S_ = (lambda i, cyc=False: st(a, i, cyc)) if st else (lambda i, cyc=False: None)
    a.raw(f".globl {name}\n.p2align 8\n.type {name},@function")
    a.label(name)
    a("s_cmp_ge_u32 s2, 256")
    a("s_cbranch_scc1 L_end")
    if st: st.init(a); S_(0)
    a("s_load_dwordx16 s[64:79], s[0:1], 0")
    a("s_load_dwordx8 s[80:87], s[0:1], 64")
    a("v_lshrrev_b32 v3, 6, v0")
    a(f"v_and_b32 v{LANE}, 63, v0")
    a("v_readfirstlane_b32 s6, v3")
    a(f"v_lshlrev_b32 v{L16}, 4, v{LANE}")
    a(f"v_mov_b32 v{ZERO}, 0")
    if opt["xmap"] == "8x4":
        a("s_bfe_u32 s4, s2, 0x20001"); a("s_lshl_b32 s4, s4, 3"); a("s_lshr_b32 s7, s2, 5"); a("s_add_u32 s4, s4, s7")
        a("s_and_b32 s5, s2, 1"); a("s_lshl_b32 s5, s5, 2"); a("s_bfe_u32 s7, s2, 0x20003"); a("s_add_u32 s5, s5, s7")
        NSH = 8; NSD = 8
    elif opt["xmap"] == "4x8":
        a("s_and_b32 s4, s2, 7"); a("s_lshl_b32 s4, s4, 2"); a("s_lshr_b32 s7, s2, 6"); a("s_add_u32 s4, s4, s7")
        a("s_bfe_u32 s5, s2, 0x30003")
        NSH = 4; NSD = 4
    elif opt["xmap"] == "16x2":
        a("s_bfe_u32 s4, s2, 0x10002"); a("s_lshl_b32 s4, s4, 4"); a("s_lshr_b32 s7, s2, 4"); a("s_add_u32 s4, s4, s7")
        a("s_and_b32 s5, s2, 3"); a("s_lshl_b32 s5, s5, 1"); a("s_bfe_u32 s7, s2, 0x10003"); a("s_add_u32 s5, s5, s7")
        NSH = 16; NSD = 16
    a("s_and_b32 s3, s6, 3")
    a(f"v_lshlrev_b32 v{FWA}, 2, v{LANE}")
    a("s_cmp_lg_u32 s6, 0")
    a("s_cbranch_scc1 L_nozero")
    a(f"ds_write_b32 v{FWA}, v{ZERO}")
    a.label("L_nozero")
    a("s_waitcnt lgkmcnt(0)")
    srd(a, 8, P_X, 2048 * 1280)
    srd(a, 88, P_DBG, 256)
    a("s_cmp_ge_u32 s6, 4")
    a("s_cbranch_scc1 L_g_role")
    ln_group(a, 3, 7, 24, 10, 11)
    a("s_or_b32 s25, s2, s6")
    a("s_cmp_lg_u32 s25, 0")
    a("s_cbranch_scc1 L_notagpub")
    a("s_memrealtime s[60:61]")
    a("s_waitcnt lgkmcnt(0)")
    a("s_or_b32 s60, s60, 1")
    a("v_mov_b32 v8, s60")
    a("s_mov_b64 exec, 1")
    a(f"buffer_store_dword v8, v{ZERO}, s[88:91], 0 offen sc1")
    a("s_mov_b64 exec, -1")
    a.label("L_notagpub")
    a("s_barrier")
    for i in range(10):
        a.vmem(f"buffer_load_dwordx4 {vr(16+4*i,4)}, v10, s[8:11], s7 offen offset:{128*i}", ("x", i))
    vm_a = list(a.vm)
    a("s_branch L_a_role")
    a.label("L_g_role")
    a.vm = []; a.lg = []
    gen_g(a, S_, st, opt, NSH)
    a("s_endpgm")
    a.emit_cold()
    a.label("L_a_role")
    a.vm = vm_a; a.lg = []
    gen_a(a, S_, st, opt, NSH)
    a.emit_cold()
    a.label("L_end")
    a("s_endpgm")
    txt = a.text()
    if opt.get("gwrap"):
        out = []; on = False; low = False
        for l in txt.split("\n"):
            if "@@G_MAIN_BEGIN" in l: on = True; out.append(l); out.append("    s_setprio 3"); continue
            if "@@G_MAIN_END" in l:
                on = False
                if low: out.append("    s_setprio 3"); low = False
            t = l.strip()
            if on:
                if t.startswith("s_setprio"): continue
                if t.startswith("v_mfma"):
                    if not low:
                        out.append(f"    s_setprio {opt.get('glow', 0)}"); low = True
                        if opt.get("gnop") is not None: out.append(f"    s_nop {opt['gnop']}")
                elif low and t and not t.startswith(";"):
                    out.append(f"    s_setprio {opt.get('ghigh', 3)}"); low = False
            out.append(l)
        txt = "\n".join(out)
    if opt.get("allsc"):
        out = []
        for l in txt.split("\n"):
            t = l.strip()
            if t.startswith("buffer_load_dwordx4") and " sc1" not in t and "s[8:11]" not in t:
                l = (l[:-4] + f" {opt['allsc']} lds") if t.endswith(" lds") else l + f" {opt['allsc']}"
            out.append(l)
        txt = "\n".join(out)
    if opt.get("gdrop"):
        out = []; on = False
        for l in txt.split("\n"):
            if "@@G_MAIN_BEGIN" in l: on = True
            if "@@G_MAIN_END" in l: on = False
            t = l.strip()
            if on and "mfma" in opt["gdrop"] and t.startswith("v_mfma"): continue
            if on and "lds" in opt["gdrop"] and (t.startswith("ds_read_b64_tr") or t.startswith("ds_read_b128")): continue
            if on and "dma" in opt["gdrop"] and t.startswith("buffer_load_dwordx4"): continue
            out.append(l)
        txt = "\n".join(out)
    return txt, kdesc(name, 256, 102)

def gen_a(a, S0_, st, opt, NSH):
    QS = {5: 0, 7: 1, 16: 2, 19: 3, 28: 6, 31: 7} if opt.get("qst") else {}
    S_ = (lambda i, cyc=False: S0_(i, cyc) if (not opt.get("qst") or i in (4, 5, 8, 9, 10, 11)) else None)
    X = 16; U = 56; SUM, SQ = 12, 14; TAG = 8; WQA = 7
    WQO = 136
    srd(a, 12, P_WQ, 640 * 1280)
    wq_offsets(a, WQO)
    a("s_lshl_b32 s24, s5, 2")
    a("s_add_u32 s24, s24, s3")
    a("s_mul_i32 s25, s5, 160")
    a("s_mul_i32 s26, s3, 40960")
    a("s_add_u32 s25, s25, s26")
    a("s_mul_i32 s26, s3, 5120")
    a(f"s_add_u32 s26, s26, {L_R1}")
    def wq_one(g4, i, tag):
        def f():
            a(f"s_add_u32 m0, s26, {SLOT(g4)*5120 + (4096 if i == 4 else 0)}")
            a(f"s_add_u32 s27, s25, {g4*40960}")
            ins = f"buffer_load_dwordx4 v{WQO+i}, s[12:15], s27 offen" + (f" offset:{i*1024}" if i < 4 else "") + " lds"
            if tag: a.vmem(ins, tag)
            else:
                l = a.newlabel("g4"); a("s_cmp_lg_u32 s3, 0"); a(f"s_cbranch_scc1 {l}"); a(ins); a.label(l)
        return f
    srd(a, 16, P_WG, 640 * 3072)
    srd(a, 20, P_WU, 640 * 3072)
    late = [wq_one(4, i, None) for i in range(5)] + [wq_one(0, i, "p1") for i in range(5)]
    if not opt.get("nowarm"):
        warm_lane(a, 146, TA, 1280, 640 // NSH // 4, 160, 2)
        warm_lane(a, 147, TA, 3072, max(opt["w0"] // NSH // 4, 1), 384, 3)
        share(a, 32, NSH)
        a(f"s_mul_i32 s33, s32, {opt['w0'] // NSH // 4 * 3072}")
        a(f"s_mul_i32 s32, s32, {640 // NSH // 4 * 1280}")
        a("s_mul_i32 s34, s5, 160"); a("s_add_u32 s32, s32, s34")
        a("s_mul_i32 s34, s5, 384"); a("s_add_u32 s33, s33, s34")
        late = [lambda: a.vmem(f"buffer_load_dword v{DUMMY}, v146, s[12:15], s32 offen", "warm")] + late
        if opt["w0"]: late += [lambda: a.vmem(f"buffer_load_dword v{DUMMY}, v147, s[16:19], s33 offen", "warm"),
                 lambda: a.vmem(f"buffer_load_dword v{DUMMY}, v147, s[20:23], s33 offen", "warm")]
    XA0, XA1, FWQ, NEED, FG, F8 = 141, 142, 143, 9, 144, 145
    a(f"v_and_b32 v{TA}, 7, v{LANE}")
    a(f"v_lshlrev_b32 v{F8}, 2, v{TA}")
    a(f"v_and_b32 v{FAD}, 12, v{F8}")
    a(f"v_add_u32 v{FG}, {L_FLAGG}, v{FAD}")
    a(f"v_lshrrev_b32 v{TB}, 5, v{LANE}")
    a(f"v_bfe_u32 v{WQA}, v{LANE}, 2, 2")
    a(f"v_lshl_add_u32 v{WQA}, v{TB}, 3, v{WQA}")
    a(f"v_mul_u32_u24 v{WQA}, 160, v{WQA}")
    a(f"v_mul_u32_u24 v{XA0}, 528, v{TB}")
    a(f"v_and_b32 v{TB}, 1, v{LANE}")
    a(f"v_lshlrev_b32 v{TB}, 4, v{TB}")
    a(f"v_bfe_u32 v{TA}, v{LANE}, 1, 1")
    a(f"v_lshl_add_u32 v{TB}, v{TA}, 3, v{TB}")
    a(f"v_and_b32 v{TA}, 16, v{LANE}")
    a(f"v_cmp_eq_u32 vcc, 0, v{TA}")
    a(f"v_mov_b32 v{TA}, 32")
    a("s_mul_i32 s30, s3, 40")
    a(f"s_add_u32 s30, s30, {L_R1}")
    a(f"v_cndmask_b32 v{TB}, v{TA}, v{TB}, vcc")
    a(f"v_add3_u32 v{WQA}, v{WQA}, v{TB}, s30")
    a(f"v_and_b32 v{TA}, 31, v{LANE}")
    a(f"v_lshl_add_u32 v{XA0}, v{TA}, 4, v{XA0}")
    a(f"v_add_u32 v{XA0}, {L_XN}, v{XA0}")
    a(f"v_add_u32 v{XA1}, {XNT}, v{XA0}")
    a("s_lshl_b32 s30, s3, 2")
    a(f"v_mov_b32 v{FWQ}, s30")
    WF = lambda k: 176 + 4 * k if k < 20 else 16 + 4 * (k - 20)
    def wq_read(k0, n):
        for k in range(k0, k0 + n):
            for hf in range(2):
                off = SLOT(k//2)*5120+(k%2)*2560+hf*640
                a.lds(f"ds_read_b64_tr_b16 {vr(WF(k)+2*hf,2)}, v{WQA if off < 40960 else 15} offset:{off % 40960}", ("wr", k))
    S_(1)
    def hk(i):
        if i == 0:
            S_(2); a.sprinkle(late, 10)
    ln_stats(a, X, U, 10, SUM, SQ, lambda i: ("x", i), hk)
    a.flush_pend()
    dpp_sum(a, [SUM, SQ], ("quad_perm:[1,0,3,2]", "quad_perm:[2,3,0,1]", "row_half_mirror"))
    ln_finish(a, SUM, SQ)
    a.vmem(f"buffer_load_dword v{TAG}, v{ZERO}, s[88:91], 0 offen sc1", "tag")
    ln_write(a, X, U, SUM, SQ, 11)
    a.wait(vm="p1", lg="all")
    set_flag(a, TA, FWQ, 3)
    S_(3)
    poll_lds(a, TB, FAD, 3, "fl")
    wq_read(0, 10)
    a.wait(lg=("wr", 9))
    set_flag(a, TA, FWQ, 4)
    a(f"v_mov_b32 v14, {L_WQF}")
    a(f"v_add_u32 v15, 40960, v{WQA}")
    QACC = [144, 160]; QF = 96; QD = 5
    a(f"s_setprio {opt['prioA']}")
    srd(a, 16, P_WS, KV_BYTES, WS_KV)
    srd(a, 20, P_WS, O_BYTES, WS_O)
    srd(a, 56, P_WS, FL_BYTES, WS_FL)
    poll_lds(a, TB, F8, 3, "fl")
    S_(4)
    a("s_lshl_b32 s36, s4, 1")
    a("s_mul_i32 s36, s36, 40960")
    a("s_lshr_b32 s37, s24, 3")
    a("s_mul_i32 s37, s37, 10240")
    a("s_add_u32 s36, s36, s37")
    a("s_and_b32 s37, s24, 7")
    a("s_lshl_b32 s38, s37, 10")
    a("s_add_u32 s38, s38, s36")
    a("s_lshr_b32 s39, s37, 1")
    a("s_lshl_b32 s39, s39, 9")
    a("s_and_b32 s37, s37, 1")
    a("s_lshl_b32 s37, s37, 3")
    a("s_add_u32 s39, s39, s37")
    a("s_add_u32 s39, s39, s36")
    a("s_add_u32 s39, s39, 8192")
    a("s_add_u32 s40, s38, 40960")
    a("s_add_u32 s41, s39, 40960")
    def qreads(ks):
        b = QF + (ks % QD) * 8
        a.lds(f"ds_read_b128 {vr(b,4)}, v{XA0} offset:{ks*1056}", ("qa", ks))
        a.lds(f"ds_read_b128 {vr(b+4,4)}, v{XA1} offset:{ks*1056}", ("qa", ks))
    BK2, BV, MX, FG2 = 9, 10, 11, 12
    RA = [13, 14, 15]
    QA = [16 + 4 * i for i in range(8)]; QB = [48 + 2 * i for i in range(8)]
    O = [64 + 12 * i for i in range(8)]
    S = [164, 180]; P = [196, 204]
    K1f = [212, 216, 220]; K2f = [224, 226, 228]; Vf = [[230, 234], [238, 242], [246, 250]]
    BVL = MX
    def kld(buf, so, tag):
        return [lambda: a.vmem(f"buffer_load_dwordx4 {vr(K1f[buf],4)}, v{L16}, s[16:19], {so} offen sc1", tag),
                lambda: a.vmem(f"buffer_load_dwordx2 {vr(K2f[buf],2)}, v{BK2}, s[16:19], {so} offen offset:1024 sc1", tag)]
    def vld(buf, so, tag):
        return [lambda: a.vmem(f"buffer_load_dwordx4 {vr(Vf[buf][0],4)}, v{BVL}, s[16:19], {so} offen offset:1536 sc1", tag),
                lambda: a.vmem(f"buffer_load_dwordx4 {vr(Vf[buf][1],4)}, v{BVL}, s[16:19], {so} offen offset:2304 sc1", tag)]
    def adv():
        return [lambda: (a(f"s_add_u32 s28, s28, {KVSLOT}"), a(f"s_sub_u32 s27, s28, {KV_BYTES}")),
                lambda: (a(f"s_cmp_ge_u32 s28, {KV_BYTES}"), a("s_cselect_b32 s28, s27, s28"))]
    def kv_first():
        for f in kld(0, "s28", ("k", 0)) + vld(0, "s28", ("v", 0)) + adv() + kld(1, "s28", ("k", 1)) + vld(1, "s28", ("v", 1)) + adv(): f()
    NEED = 13
    a("s_bfe_u32 s28, s2, 0x40003")
    a(f"s_mul_i32 s28, s28, {KVSLOT}")
    a("s_mul_i32 s33, s3, 3072")
    a("s_add_u32 s28, s28, s33")
    a("s_lshl_b32 s43, s3, 6")
    a("s_mov_b32 s35, 0")
    a(f"v_lshlrev_b32 v{BK2}, 3, v{LANE}")
    a(f"v_and_b32 v{TA}, 31, v{LANE}")
    a(f"v_min_u32 v{TA}, 21, v{TA}")
    a(f"v_lshlrev_b32 v{TA}, 4, v{TA}")
    a(f"v_lshrrev_b32 v{TB}, 5, v{LANE}")
    a(f"v_mul_u32_u24 v{TB}, 384, v{TB}")
    a(f"v_add_u32 v{MX}, v{TA}, v{TB}")
    a(f"v_lshrrev_b32 v{TA}, 2, v{LANE}")
    a(f"v_lshlrev_b32 v{TA}, 8, v{TA}")
    a(f"v_and_b32 v{TB}, 3, v{LANE}")
    a(f"v_lshl_add_u32 v{NEED}, v{TB}, 4, v{TA}")
    RD = {6: (10, 3), 7: (13, 3), 8: (16, 3), 9: (19, 3), 10: (22, 3), 11: (25, 3), 12: (28, 2), opt.get('p3r', 18): (30, 4), opt.get('p3r', 18) + 1: (34, 3), opt.get('p3r', 18) + 2: (37, 3)}
    for ks in range(QD - 1): qreads(ks)
    CHK = opt.get("kvchk", ()); CLD = opt.get("kvld", (32,))
    for ks in range(40):
        if ks in QS and QS[ks]: S0_(QS[ks])
        if ks + QD - 1 < 40: qreads(ks + QD - 1)
        if ks == 24:
            a.wait(vm='tag'); tag_check(a, TAG)
        P3R = opt.get('p3r', 18)
        if ks in (5, P3R - 1): a.lds(f"ds_read_b32 v{TB}, v14", "fl")
        if ks == 6: poll_lds(a, TB, 14, 1, "fl", issue=False)
        if ks == P3R: poll_lds(a, TB, 14, 2, "fl", issue=False)
        if ks in RD: wq_read(*RD[ks])
        if ks == opt.get("p3r", 18) + 2: set_flag(a, TA, FWQ, 8)
        if ks == 30: a.lds(f"ds_read_b32 v{TB}, v{FAD}", "fl")
        if ks == 32: poll_lds(a, TB, FAD, 8, "fl", issue=False)
        if ks in CLD:
            a(f"buffer_load_dword v{TAG}, v{NEED}, s[56:59], s43 offen sc1")
        if ks in CHK:
            l = a.newlabel("kvc"); r = a.newlabel("kvr")
            a("s_waitcnt vmcnt(0)")
            a(f"v_cmp_ne_u32 vcc, s62, v{TAG}")
            a("s_cmp_eq_u32 s35, 0")
            a("s_cselect_b64 vcc, vcc, -1")
            a("s_cmp_eq_u64 vcc, 0")
            a(f"s_cbranch_scc0 {r}")
            sv = list(a.vm); kv_first(); a.vm = sv
            a("s_mov_b32 s35, 1")
            a.label(r)
        a.wait(lg=[("qa", ks), ("wr", ks)])
        b = QF + (ks % QD) * 8
        a(f"v_mfma_f32_32x32x16_bf16 {vr(QACC[0],16)}, {vr(WF(ks),4)}, {vr(b,4)}, {vr(QACC[0],16) if ks else 0}")
        a(f"v_mfma_f32_32x32x16_bf16 {vr(QACC[1],16)}, {vr(WF(ks),4)}, {vr(b+4,4)}, {vr(QACC[1],16) if ks else 0}")
    S_(5)
    a(f"v_mov_b32 v{FWA}, s30")
    if opt.get("aoff"):
        set_flag(a, TA, FWA, 12); st.flush(a, P_WS, 6, 20); a("s_endpgm")
    a(f"v_lshlrev_b32 v{BK2}, 3, v{LANE}") if False else None
    def owner(i2, sd):
        a(f"s_add_u32 s{sd}, s3, {1+i2}"); a(f"s_and_b32 s{sd}, s{sd}, 3")
    a(f"v_mov_b32 v{BV}, v{NEED}")
    a(f"v_cmp_gt_u32 vcc, 32, v{LANE}")
    a(f"v_mov_b32 v{TA}, 0x{f32hex(QSCALE):08x}")
    a(f"s_mov_b32 s31, 0x{f32hex(QSCALE):08x}")
    a(f"s_mul_i32 s29, s3, {WSLOT}")
    a(f"v_cndmask_b32 v196, 0, v{TA}, vcc")
    a("s_mov_b64 s[60:61], vcc")
    a(f"s_add_u32 s29, s29, {L_R1 + QXO}")
    a(f"v_add_u32 v{FG2}, s29, v{L16}")
    a(f"v_add_u32 v{TB}, s29, v{BK2}")
    for i2 in range(3):
        owner(i2, 32); a(f"s_mul_i32 s32, s32, {WSLOT}"); a(f"s_add_u32 s32, s32, {L_R1 + QXO}")
        a(f"v_add_u32 v{RA[i2]}, s32, v{L16}")
    for t in range(2):
        for i in range(8): a(f"v_mul_f32 v{QACC[t]+i}, s31, v{QACC[t]+i}")
        for i in range(8, 12): a(f"v_mul_f32 v{QACC[t]+i}, v196, v{QACC[t]+i}")
        for i in range(4): a(f"v_cvt_pk_bf16_f32 v{QA[6+t]+i}, v{QACC[t]+2*i}, v{QACC[t]+2*i+1}")
        for i in range(2): a(f"v_cvt_pk_bf16_f32 v{QB[6+t]+i}, v{QACC[t]+8+2*i}, v{QACC[t]+9+2*i}")
        a.lds(f"ds_write_b128 v{FG2}, {vr(QA[6+t],4)} offset:{t*1536}", "qw")
        a.lds(f"ds_write_b64 v{TB}, {vr(QB[6+t],2)} offset:{t*1536+1024}", "qw")
    set_flag(a, TA, FWA, 9)
    a("s_cmp_eq_u32 s35, 1")
    a("s_cbranch_scc1 L_a_kvld")
    a("s_waitcnt vmcnt(0)")
    a(f"v_cmp_ne_u32 vcc, s62, v{TAG}")
    a("s_cmp_eq_u64 vcc, 0")
    a("s_cbranch_scc0 L_a_kvld")
    kv_first()
    a("s_mov_b32 s35, 1")
    a.label("L_a_kvld")
    a.vm = []
    poll_lds(a, TA, FAD, 9, "fl")
    for i2 in range(3):
        for t in range(2):
            a.lds(f"ds_read_b128 {vr(QA[2*i2+t],4)}, v{RA[i2]} offset:{t*1536}", "qr")
        a(f"v_sub_u32 v{TA}, v{RA[i2]}, v{BK2}")
        for t in range(2):
            a.lds(f"ds_read_b64 {vr(QB[2*i2+t],2)}, v{TA} offset:{t*1536+1024}", "qr")
    set_flag(a, TA, FWA, 10)
    for i in range(100): a(f"v_mov_b32 v{O[0]+i}, 0")
    a("s_cmp_eq_u32 s35, 1")
    a("s_cbranch_scc1 L_a_kvgo")
    poll_global(a, TAG, 1, BV, 56, "s43", "s62", sleep=4)
    kv_first()
    a.label("L_a_kvgo")
    a.vm = [("k", 0)] * 2 + [("v", 0)] * 2 + [("k", 1)] * 2 + [("v", 1)] * 2
    S_(6)
    srd(a, 92, P_WD, 1536 * 1280); srd(a, 96, P_WO, 640 * 1280)
    warm_lane(a, 254, TA, 1280, 512 // NSH // 4, 320, 3)
    share(a, 32, NSH)
    a("s_and_b32 s37, s5, 3"); a("s_mul_i32 s37, s37, 320")
    a(f"s_mul_i32 s33, s32, {320 // NSH // 4 * 1280}"); a("s_add_u32 s33, s33, s37")
    a(f"s_mul_i32 s35, s32, {512 // NSH // 4 * 1280}"); a("s_add_u32 s35, s35, s37")
    srd(a, 12, P_WS, H_BYTES, WS_H)
    a("s_mul_i32 s25, s4, 196608"); a("s_mul_i32 s26, s5, 12288"); a("s_add_u32 s25, s25, s26")
    a("s_mul_i32 s26, s3, 3072"); a("s_add_u32 s25, s25, s26"); a("s_add_u32 s26, s25, 98304")
    def cold_blk(it, lines):
        def f():
            l = a.newlabel("cw"); r = a.newlabel("cr")
            a(f"s_cmp_eq_u32 s34, {it}"); a(f"s_cbranch_scc1 {l}"); a.label(r)
            a.cold += [f"{l}:"] + ["    " + x for x in lines] + [f"    s_branch {r}"]
        return f
    sr_ = K1f[2]
    SENT = [f"v_mov_b32 v{sr_+i}, -1" for i in range(4)] + [f"buffer_store_dwordx4 {vr(sr_,4)}, v{L16}, s[20:23], s{38+2*t} offen sc1" for t in range(2)] + \
           ["s_mov_b64 exec, s[60:61]"] + [f"buffer_store_dwordx2 {vr(sr_,2)}, v{L16}, s[20:23], s{39+2*t} offen sc1" for t in range(2)] + ["s_mov_b64 exec, -1"]
    if opt.get("hsent"): SENT += [f"buffer_store_dwordx4 {vr(sr_,4)}, v{L16}, s[12:15], s{25+b} offen offset:{t*1024} sc1" for b in range(2) for t in range(3)]
    SFLG = ["s_waitcnt vmcnt(8)", "s_mov_b64 exec, 1", f"v_mov_b32 v{TA}, 12", f"ds_write_b32 v{FWA}, v{TA}", "s_mov_b64 exec, -1"]
    def cold_warm(it, which):
        def f():
            l = a.newlabel("cw"); r = a.newlabel("cr")
            a(f"s_cmp_eq_u32 s34, {it}"); a(f"s_cbranch_scc1 {l}"); a.label(r)
            if which == "d": a.cold += [f"{l}:", "    buffer_load_dword v255, v254, s[92:95], s35 offen", f"    s_add_u32 s35, s35, {512*1280}", f"    s_branch {r}"]
            else: a.cold += [f"{l}:", "    buffer_load_dword v255, v254, s[96:99], s33 offen", f"    s_add_u32 s33, s33, {320*1280}", f"    s_branch {r}"]
        return f
    for i in range(8):
        a(f"v_mov_b32 v{P[1]+i}, 0"); a(f"v_mov_b32 v{Vf[2][0]+i}, 0")
    a(f"s_mov_b32 s42, 0x{f32hex(2.0**100):08x}")
    a(f"v_lshlrev_b32 v{TB}, 2, v{LANE}")
    for i2 in range(3):
        owner(i2, 32); a("s_lshl_b32 s32, s32, 9"); a(f"s_add_u32 s32, s32, {L_MX}")
        a(f"v_add_u32 v{RA[i2]}, s32, v{TB}")
    a("s_lshl_b32 s32, s3, 9"); a(f"s_add_u32 s32, s32, {L_MX}")
    a(f"v_add_u32 v{FG2}, s32, v{TB}")
    def rowmax(t, dst, init):
        s = S[t]
        if init:
            a(f"v_max3_f32 v{dst}, v{s}, v{s+1}, v{s+2}")
            for i in range(3, 15, 2): a(f"v_max3_f32 v{dst}, v{dst}, v{s+i}, v{s+i+1}")
            a(f"v_max_f32 v{dst}, v{dst}, v{s+15}")
        else:
            for i in range(0, 16, 2): a(f"v_max3_f32 v{dst}, v{dst}, v{s+i}, v{s+i+1}")
    def embed(t, m):
        a(f"v_mov_b32 v{TB}, v{m}")
        a("s_nop 1")
        a(f"v_permlane32_swap_b32 v{m}, v{TB}")
        a("s_nop 1")
        a(f"v_max_f32 v{m}, v{m}, v{TB}")
        a(f"v_sub_f32 v{m}, 0, v{m}")
        a(f"v_cvt_pk_bf16_f32 v{TB}, v{m}, v{m}")
        a(f"v_lshlrev_b32 v{TB}, 16, v{TB}")
        a(f"v_sub_f32 v{TB}, v{m}, v{TB}")
        a(f"v_cvt_pk_bf16_f32 v{TB}, v{m}, v{TB}")
        a(f"v_cndmask_b32 v{QB[6+t]}, v{TB}, v{QB[6+t]}, s[60:61]")
    a.wait(vm=("k", 0))
    for t in range(2):
        a(f"v_mfma_f32_32x32x16_bf16 {vr(S[t],16)}, {vr(K1f[0],4)}, {vr(QA[6+t],4)}, 0")
        a(f"v_mfma_f32_32x32x8_bf16 {vr(S[t],16)}, {vr(K2f[0],2)}, {vr(QB[6+t],2)}, {vr(S[t],16)}")
    a("s_nop 7"); a("s_nop 1")
    for t in range(2):
        rowmax(t, TA, True); embed(t, TA)
        a.lds(f"ds_write_b32 v{FG2}, v{QB[6+t]} offset:{t*256}", "mw")
    a.wait(lg="mw")
    set_flag(a, FV, FWA, 11)
    poll_lds(a, FV, FAD, 11, "fl")
    for i2 in range(3):
        for t in range(2):
            a.lds(f"ds_read_b32 v{QB[2*i2+t]}, v{RA[i2]} offset:{t*256}", ("mr", 2 * i2 + t))
    for i2 in range(3):
        owner(i2, 32); a("s_mul_i32 s32, s32, 18432"); a(f"s_add_u32 s32, s32, {L_RED + i2*6144}")
        a(f"v_add_u32 v{RA[i2]}, s32, v{L16}")
    a(f"v_add_u32 v{FG2}, {L_FLAGG}, v{FAD}")
    a("s_mul_i32 s32, s3, 18432")
    a(f"s_add_u32 s32, s32, {L_RED}")
    a(f"v_add_u32 v{BV}, s32, v{L16}")
    a(f"v_mfma_f32_32x32x16_bf16 {vr(S[0],16)}, {vr(K1f[0],4)}, {vr(QA[0],4)}, 0")
    a.wait(lg="all")
    a(f"v_mfma_f32_32x32x8_bf16 {vr(S[0],16)}, {vr(K2f[0],2)}, {vr(QB[0],2)}, {vr(S[0],16)}")
    a("s_mov_b32 s34, 0")
    a("s_nop 7"); a("s_nop 1")
    a.vm = [("v", 0)] * 2 + [("k", 1)] * 2 + [("v", 1)] * 2
    S_(7); S_(10, True)
    pat = opt.get("pat", "MeeeMeeeMeeeM|eeeeeeecccccccc")
    def tile(b, last):
        for j in range(8):
            if opt.get("ts") and not last and (b == 0 or (b == 1 and j == 0)):
                ix = j if b == 0 else 8
                a(f"s_memtime s[{64+2*ix}:{65+2*ix}]")
            fill = []
            if not last:
                b2 = (b + 2) % 3
                if j in (1, 2): fill = [kld(b2, "s28", ("k", b2))[j - 1]]
                if j in (3, 4): fill = [vld(b2, "s28", ("v", b2))[j - 3]]
                if j == 5: fill = adv()
                if j == 6:
                    fill = [] if opt.get("nowarm") else [cold_warm(0, "d")] + ([cold_warm(1, "o")] if b else [])
                    if b == 0: fill += [cold_blk(1, SFLG)]
                if j == 0 and b == 0: fill = [cold_blk(0, SENT)]
            else:
                if j == 0: fill = [lambda: a.lds(f"ds_read_b32 v{FV}, v{FG2}", "fl")]
                if j == 1: fill = [lambda: poll_lds(a, FV, FG2, 4, "fl", issue=False)]
                if 2 <= j <= 7:
                    jj = j - 2
                    fill = [lambda: None] * 3 + [(lambda r=r: a.lds(f"ds_write_b128 v{RA[jj//2]}, {vr(O[jj]+4*r,4)} offset:{(jj%2)*3072+r*1024}", "ow")) for r in range(3)]
            if j == 7 and not last: a.wait(vm=("k", (b + 1) % 3))
            if j == 1: a.wait(vm=("v", b))
            kb = b if j < 7 else (b + 1) % 3
            vb = b if j > 0 else (b - 1) % 3
            aa = j % 2; o = 1 - aa
            s_, p_ = S[aa], P[aa]
            jn, jp = (j + 1) % 8, (j - 1) % 8
            M = [f"v_mfma_f32_32x32x16_bf16 {vr(S[o],16)}, {vr(K1f[kb],4)}, {vr(QA[jn],4)}, 0",
                 f"v_mfma_f32_32x32x8_bf16 {vr(S[o],16)}, {vr(K2f[kb],2)}, {vr(QB[jn],2)}, {vr(S[o],16)}",
                 f"v_mfma_f32_32x32x16_bf16 {vr(O[jp],16)}, {vr(Vf[vb][0],4)}, {vr(P[o],4)}, {vr(O[jp],16)}",
                 f"v_mfma_f32_32x32x16_bf16 {vr(O[jp],16)}, {vr(Vf[vb][1],4)}, {vr(P[o]+4,4)}, {vr(O[jp],16)}"]
            ne = nc = nm = 0
            for ch in pat:
                if ch == "M":
                    if not (last and j == 7 and nm < 2): a(M[nm])
                    nm += 1
                elif ch == "e": a(f"v_exp_f32 v{s_+ne}, v{s_+ne}"); ne += 1
                elif ch == "c": a(f"v_cvt_pk_bf16_f32 v{p_+nc}, v{s_+2*nc}, v{s_+2*nc+1}"); nc += 1
                elif ch == "|": a.sprinkle(fill, opt.get("fevery", 1), "v_")
            a.flush_pend()
    top_vm = list(a.vm)
    a.raw(".p2align 6")
    a.label("L_a_loop")
    tile(0, False); tile(1, False); tile(2, False)
    if opt.get("its"):
        for it, ix in ((0, 1), (1, 2), (2, 3), (3, 4), (4, 5)):
            l = a.newlabel("it"); a(f"s_cmp_lg_u32 s34, {it}"); a(f"s_cbranch_scc1 {l}"); S0_(ix, True); a(f"s_sub_u32 s{44+ix}, s{44+ix}, s54"); a(f"s_mul_i32 s{44+ix}, s{44+ix}, 100"); a(f"s_add_u32 s{44+ix}, s{44+ix}, s44"); a.label(l)
    a("s_add_u32 s34, s34, 1")
    a("s_cmp_lt_u32 s34, 5")
    a("s_cbranch_scc1 L_a_loop")
    assert a.vm == top_vm, (a.vm, top_vm)
    tile(0, True)
    a("s_nop 0")
    a(f"v_mfma_f32_32x32x16_bf16 {vr(O[7],16)}, {vr(Vf[0][0],4)}, {vr(P[1],4)}, {vr(O[7],16)}")
    a(f"v_mfma_f32_32x32x16_bf16 {vr(O[7],16)}, {vr(Vf[0][1],4)}, {vr(P[1]+4,4)}, {vr(O[7],16)}")
    a.wait(lg="ow")
    set_flag(a, FV, FWA, 13)
    if st:
        S_(8); S_(11, True); a("s_sub_u32 s54, s55, s54"); a("s_mov_b32 s55, 0")
        if opt.get("ts"):
            for i in range(1, 8):
                a(f"s_sub_u32 s{44+i}, s{64+2*i}, s{62+2*i}"); a(f"s_mul_i32 s{44+i}, s{44+i}, 100"); a(f"s_add_u32 s{44+i}, s{44+i}, s44")
    poll_lds(a, FV, FAD, 13, "fl")
    RR = 16
    RR = O[0]
    if opt.get("tst"): S0_(1)
    for src in range(3):
        for t in range(2):
            for r in range(3):
                a.lds(f"ds_read_b128 {vr(RR+24*src+12*t+4*r,4)}, v{BV} offset:{src*6144+t*3072+r*1024}", ("or", src))
    for src in range(3):
        a.wait(lg=("or", src))
        for i in range(0, 24, 2):
            a(f"v_pk_add_f32 {vr(O[6]+i,2)}, {vr(O[6]+i,2)}, {vr(RR+24*src+i,2)}")
    a(f"v_add_f32_e64 v{TA}, |v{O[6]}|, |v{O[6]+1}|")
    for i in range(2, 24): a(f"v_add_f32_e64 v{TA}, v{TA}, |v{O[6]+i}|")
    a(f"v_cmp_ngt_f32 vcc, s42, v{TA}")
    a("s_cmp_eq_u64 vcc, 0")
    a("s_cbranch_scc0 L_a_fallback")
    a.label("L_a_norm")
    if opt.get("tst"): S0_(2)
    a(f"v_mov_b32 v{FG2}, {BIG}")
    a(f"v_cndmask_b32 v{FG2}, v{FG2}, v{L16}, s[60:61]")
    for t in range(2):
        oo = O[6 + t]
        a(f"v_mov_b32 v{TA}, v{oo+8}")
        a(f"v_mov_b32 v{TB}, v{oo+8}")
        a("s_nop 1")
        a(f"v_permlane32_swap_b32 v{TA}, v{TB}")
        a("s_nop 1")
        a(f"v_rcp_f32 v{TB}, v{TB}")
        a("s_nop 0")
        for i in range(12): a(f"v_mul_f32 v{oo+i}, v{oo+i}, v{TB}")
        for i in range(6): a(f"v_cvt_pk_bf16_f32 v{S[t]+i}, v{oo+2*i}, v{oo+2*i+1}")
        a(f"buffer_store_dwordx4 {vr(S[t],4)}, v{L16}, s[20:23], s{38+2*t} offen sc1")
        a(f"buffer_store_dwordx2 {vr(S[t]+4,2)}, v{FG2}, s[20:23], s{39+2*t} offen sc1")
    if opt.get("tst"): S0_(3)
    if st:
        S_(9); st.flush(a, P_WS, 6, 20)
    a("s_endpgm")
    a.label("L_a_fallback")
    a("s_waitcnt vmcnt(0) lgkmcnt(0)")
    M = [RA[0], RA[1]]
    FO = [64, 80]
    for t in range(2):
        a(f"v_mov_b32 v{M[t]}, 0xff800000")
        a(f"v_cndmask_b32 v{QB[6+t]}, v{ZERO}, v{QB[6+t]}, s[60:61]")
    a("s_mov_b32 s43, 0")
    a.label("L_a_fb1")
    for f in kld(0, "s43", None): f()
    a("s_waitcnt vmcnt(0)")
    for t in range(2):
        a(f"v_mfma_f32_32x32x16_bf16 {vr(S[t],16)}, {vr(K1f[0],4)}, {vr(QA[6+t],4)}, 0")
        a(f"v_mfma_f32_32x32x8_bf16 {vr(S[t],16)}, {vr(K2f[0],2)}, {vr(QB[6+t],2)}, {vr(S[t],16)}")
    a("s_nop 7"); a("s_nop 7")
    for t in range(2): rowmax(t, M[t], False)
    a("s_add_u32 s43, s43, 3072")
    a(f"s_cmp_lt_u32 s43, {KV_BYTES}")
    a("s_cbranch_scc1 L_a_fb1")
    NEG = [96, 112]
    for t in range(2):
        a(f"v_mov_b32 v{TB}, v{M[t]}")
        a("s_nop 1")
        a(f"v_permlane32_swap_b32 v{M[t]}, v{TB}")
        a("s_nop 1")
        a(f"v_max_f32 v{M[t]}, v{M[t]}, v{TB}")
        for i in range(16):
            a(f"v_sub_f32 v{NEG[t]+i}, 0, v{M[t]}"); a(f"v_mov_b32 v{FO[t]+i}, 0")
    a("s_mov_b32 s43, 0")
    a.label("L_a_fb2")
    for f in kld(0, "s43", None) + vld(0, "s43", None): f()
    a("s_waitcnt vmcnt(0)")
    for t in range(2):
        a(f"v_mfma_f32_32x32x16_bf16 {vr(S[t],16)}, {vr(K1f[0],4)}, {vr(QA[6+t],4)}, {vr(NEG[t],16)}")
        a(f"v_mfma_f32_32x32x8_bf16 {vr(S[t],16)}, {vr(K2f[0],2)}, {vr(QB[6+t],2)}, {vr(S[t],16)}")
    a("s_nop 7"); a("s_nop 7")
    for t in range(2):
        for r in range(16): a(f"v_exp_f32 v{S[t]+r}, v{S[t]+r}")
        a("s_nop 0")
        for i in range(8): a(f"v_cvt_pk_bf16_f32 v{P[t]+i}, v{S[t]+2*i}, v{S[t]+2*i+1}")
        a("s_nop 1")
        a(f"v_mfma_f32_32x32x16_bf16 {vr(FO[t],16)}, {vr(Vf[0][0],4)}, {vr(P[t],4)}, {vr(FO[t],16)}")
        a(f"v_mfma_f32_32x32x16_bf16 {vr(FO[t],16)}, {vr(Vf[0][1],4)}, {vr(P[t]+4,4)}, {vr(FO[t],16)}")
    a("s_add_u32 s43, s43, 3072")
    a(f"s_cmp_lt_u32 s43, {KV_BYTES}")
    a("s_cbranch_scc1 L_a_fb2")
    a("s_nop 7"); a("s_nop 7")
    for t in range(2):
        for i in range(12): a(f"v_mov_b32 v{O[6+t]+i}, v{FO[t]+i}")
    a("s_branch L_a_norm")

def gen_g(a, S0_, st, opt, NSH):
    E_ = (lambda i: S0_(i)) if opt.get("early") else (lambda i: None)
    S_ = (lambda i, cyc=False: S0_(i, cyc) if (not opt.get("early") or i < 6 or i == 9) else None)
    E_(6)
    TAG = 11
    X = 16; U = 32; SUM, SQ = 12, 14
    a("s_setprio 3")
    a(f"v_lshrrev_b32 v{TA}, 5, v{LANE}")
    a(f"v_mul_u32_u24 v{TA}, 1280, v{TA}")
    a(f"v_and_b32 v{TB}, 31, v{LANE}")
    a(f"v_lshl_add_u32 v56, v{TB}, 4, v{TA}")
    a(f"v_mov_b32 v9, {BIG}")
    a(f"v_cmp_gt_u32 vcc, 16, v{TB}")
    a("s_lshl_b32 s28, s4, 3")
    a("s_add_u32 s28, s28, s5")
    a("v_cndmask_b32 v57, v9, v56, vcc")
    a("s_lshl_b32 s7, s28, 2")
    a("s_add_u32 s7, s7, s3")
    a("s_mul_i32 s7, s7, 2560")
    a("s_mov_b64 s[60:61], vcc")
    a.vmem(f"buffer_load_dwordx4 {vr(X,4)}, v56, s[8:11], s7 offen", ("x", 0))
    a.vmem(f"buffer_load_dwordx4 {vr(X+4,4)}, v56, s[8:11], s7 offen offset:512", ("x", 1))
    a.vmem(f"buffer_load_dwordx4 {vr(X+8,4)}, v57, s[8:11], s7 offen offset:1024", ("x", 2))
    a("s_barrier")
    a("s_cmp_ge_u32 s3, 2")
    a(f"s_cselect_b32 s12, s{P_WV}, s{P_WK}")
    a(f"s_cselect_b32 s13, s{P_WV+1}, s{P_WK+1}")
    a("s_mov_b32 s14, 25600"); a("s_mov_b32 s15, 0x00020000")
    a(f"s_cselect_b32 s24, {L_WV-L_WK}, 0")
    a(f"s_add_u32 s24, s24, {L_WK}")
    a("s_and_b32 s25, s3, 1")
    a("s_lshl_b32 s25, s25, 10")
    a("s_add_u32 s24, s24, s25")
    for j in range(13):
        a(f"s_add_u32 m0, s24, {j*2048}")
        a("s_nop 0")
        a.vmem(f"buffer_load_dwordx4 v{L16}, s[12:15], s25 offen lds", "wkv")
        a("s_add_u32 s25, s25, 2048")
    X2 = 216; U2 = 64
    a(f"v_and_b32 v{TB}, 31, v{LANE}")
    a(f"v_and_b32 v{TA}, 3, v{LANE}")
    a(f"v_lshlrev_b32 v{FAD}, 2, v{TA}")
    a(f"v_add_u32 v{FAD}, {L_FLAGG}, v{FAD}")
    a("s_lshl_b32 s30, s3, 2")
    a(f"s_add_u32 s30, s30, {L_FLAGG}")
    a(f"v_mov_b32 v{FWA}, s30")
    GQ, WA, XA, J, XW = 58, 59, 60, 61, 62
    a(f"v_lshrrev_b32 v{GQ}, 4, v{LANE}")
    a(f"v_bfe_u32 v{WA}, v{LANE}, 2, 2")
    a(f"v_lshl_add_u32 v{WA}, v{GQ}, 3, v{WA}")
    a(f"v_mul_u32_u24 v{WA}, 40, v{WA}")
    a(f"v_lshlrev_b32 v{TA}, 3, v{TA}")
    a("s_cmp_ge_u32 s3, 2")
    a("s_cselect_b32 s24, 0, -1")
    a("s_cselect_b32 s25, 32, 0")
    a("s_bitcmp1_b32 s3, 0")
    a(f"s_cselect_b32 s26, {L_WV-L_WK}, 0")
    a(f"s_add_u32 s26, s26, {L_WK}")
    a("s_add_u32 s25, s25, s26")
    a(f"v_and_b32 v{TA}, s24, v{TA}")
    a(f"v_add3_u32 v{WA}, v{WA}, v{TA}, s25")
    a("s_lshr_b32 s26, s5, 2")
    a(f"s_mul_i32 s26, s26, {XNT}")
    a("s_and_b32 s27, s5, 3")
    a("s_lshl_b32 s27, s27, 7")
    a("s_add_u32 s26, s26, s27")
    a(f"s_add_u32 s26, s26, {L_XN}")
    a(f"v_and_b32 v{TA}, 7, v{LANE}")
    a(f"v_mul_u32_u24 v{XA}, 528, v{GQ}")
    a(f"v_lshl_add_u32 v{XA}, v{TA}, 4, v{XA}")
    a(f"v_add_u32 v{XA}, s26, v{XA}")
    a("s_lshl_b32 s27, s3, 5")
    a("s_add_u32 s27, s27, s26")
    a(f"v_mul_u32_u24 v{XW}, 528, v{TB}")
    a(f"v_lshrrev_b32 v{TA}, 5, v{LANE}")
    a(f"v_lshl_add_u32 v{XW}, v{TA}, 4, v{XW}")
    a(f"v_add_u32 v{XW}, s27, v{XW}")
    srd(a, 24, P_WS, KV_BYTES, WS_KV)
    srd(a, 56, P_WS, FL_BYTES, WS_FL)
    srd(a, 16, P_WG, 640 * 3072)
    srd(a, 20, P_WU, 640 * 3072)
    a("s_lshr_b32 s29, s28, 2")
    a("s_mul_i32 s29, s29, 3072")
    a("s_bfe_u32 s30, s28, 0x10001")
    a("s_and_b32 s31, s28, 1")
    a(f"v_and_b32 v{J}, 15, v{LANE}")
    a("s_bitcmp1_b32 s3, 0")
    a("s_cbranch_scc1 L_g_va")
    a("s_lshl_b32 s32, s30, 4"); a("s_lshl_b32 s33, s31, 2"); a("s_add_u32 s32, s32, s33")
    a(f"v_lshrrev_b32 v30, 2, v{J}")
    a("v_lshlrev_b32 v30, 3, v30")
    a(f"v_and_b32 v28, 3, v{J}")
    a("v_add3_u32 v30, v30, v28, s32")
    a(f"v_lshrrev_b32 v28, 1, v{GQ}")
    a("v_lshlrev_b32 v28, 9, v28")
    a("v_lshl_add_u32 v28, v30, 4, v28")
    a(f"v_and_b32 v31, 1, v{GQ}")
    a("v_lshl_add_u32 v28, v31, 3, v28")
    a("v_lshlrev_b32 v31, 3, v30")
    a(f"v_lshl_add_u32 v31, v{GQ}, 8, v31")
    a("v_add_u32 v31, 1024, v31")
    a(f"v_cmp_gt_u32 vcc, 2, v{GQ}")
    a("v_mov_b32 v29, 0x3f803f80")
    a("v_mov_b32 v57, 0")
    a("v_cndmask_b32 v31, v9, v31, vcc")
    a(f"v_cmp_eq_u32 s[40:41], 1, v{GQ}")
    a("s_cmp_ge_u32 s3, 2")
    a("s_cselect_b64 vcc, -1, 0")
    a("s_cselect_b64 s[40:41], s[40:41], 0")
    a("v_cndmask_b32 v28, v28, v31, vcc")
    a(f"v_cmp_gt_u32 vcc, 8, v{J}")
    a("s_nop 1")
    a("v_cndmask_b32 v28, v9, v28, vcc")
    a("s_branch L_g_vb")
    a.label("L_g_va")
    a("s_mul_i32 s32, s30, 768"); a("s_mul_i32 s33, s31, 384"); a("s_add_u32 s32, s32, s33"); a("s_add_u32 s32, s32, 1536")
    a(f"v_and_b32 v30, 3, v{J}")
    a(f"v_bfe_u32 v28, v{J}, 2, 1")
    a("v_lshl_add_u32 v30, v28, 3, v30")
    a(f"v_bfe_u32 v28, v{J}, 3, 1")
    a("v_lshl_add_u32 v30, v28, 2, v30")
    a(f"v_add_u32 v28, 16, v{J}")
    a("s_cmp_ge_u32 s3, 2")
    a("s_cselect_b64 vcc, -1, 0")
    a("s_cselect_b32 s33, 6, 16")
    a("s_cselect_b32 s34, 4, 99")
    a("s_cselect_b32 s35, 5, 99")
    a("v_cndmask_b32 v30, v30, v28, vcc")
    a("v_lshlrev_b32 v30, 4, v30")
    a(f"v_lshl_add_u32 v30, v{GQ}, 3, v30")
    a("v_add_u32 v30, s32, v30")
    a(f"v_cmp_gt_u32 vcc, s33, v{J}")
    a("v_mov_b32 v29, 0x3f803f80")
    a("s_nop 0")
    a("v_cndmask_b32 v30, v9, v30, vcc")
    a(f"v_cmp_gt_u32 vcc, 2, v{GQ}")
    a("s_nop 1")
    a("v_cndmask_b32 v28, v9, v30, vcc")
    a(f"v_cmp_eq_u32 s[40:41], s35, v{J}")
    a(f"v_cmp_eq_u32 vcc, s34, v{J}")
    a("s_nop 1")
    a(f"v_cndmask_b32 v29, v29, v{ZERO}, s[40:41]")
    a("s_or_b64 s[40:41], vcc, s[40:41]")
    a("v_mov_b32 v57, v29")
    a.label("L_g_vb")
    a("s_min_u32 s42, s3, 2")
    a("s_add_u32 s42, s42, 4")
    ln_group(a, 42, 43, 42, 56, 63)
    wq_offsets(a, 144)
    srd(a, 92, P_WQ, 640 * 1280)
    a("s_mul_i32 s42, s5, 160")
    S_(1)
    def hook(i):
        if i == 0:
            S_(2)
            a.vmem(f"buffer_load_dword v{TAG}, v{ZERO}, s[88:91], 0 offen sc1", "tag")
    ln_stats(a, X, U, 3, SUM, SQ, lambda i: ("x", i), hook)
    dpp_sum(a, [SUM, SQ], ("quad_perm:[1,0,3,2]", "quad_perm:[2,3,0,1]", "row_half_mirror", "row_mirror"))
    a(f"v_mov_b32 v{SUM+1}, v{SUM}"); a(f"v_mov_b32 v{SQ+1}, v{SQ}")
    a("s_nop 1")
    a(f"v_permlane16_swap_b32 v{SUM}, v{SUM+1}")
    a(f"v_permlane16_swap_b32 v{SQ}, v{SQ+1}")
    a("s_nop 1")
    a(f"v_add_f32 v{SUM}, v{SUM}, v{SUM+1}")
    a(f"v_add_f32 v{SQ}, v{SQ}, v{SQ+1}")
    ln_finish(a, SUM, SQ)
    for i in range(3):
        for d in range(4):
            pp = vr(U + 8 * i + 2 * d, 2)
            a(f"v_pk_fma_f32 {pp}, {pp}, {vr(SQ,2)}, {vr(SUM,2)}")
        for d in range(4):
            a(f"v_cvt_pk_bf16_f32 v{X+4*i+d}, v{U+8*i+2*d}, v{U+8*i+2*d+1}")
        if i == 2: a("s_mov_b64 exec, s[60:61]")
        a.lds(f"ds_write_b128 v{XW}, {vr(X+4*i,4)} offset:{i*16896}", "xw")
        if i == 2: a("s_mov_b64 exec, -1")
    for i in range(10):
        a.vmem(f"buffer_load_dwordx4 {vr(X2+4*i,4)}, v56, s[8:11], s43 offen offset:{128*i}", ("x2", i))
    a.wait(vm="wkv")
    set_flag(a, FV, FWA, 1)
    poll_lds(a, FV, FAD, 1, "fl")
    S_(3)
    KA = 16
    def rd(s):
        b = 64 + (s % 10) * 8
        a.lds(f"ds_read_b64_tr_b16 v[{b}:{b+1}], v{WA} offset:{s*1280}", ("g", s))
        a.lds(f"ds_read_b64_tr_b16 v[{b+2}:{b+3}], v{WA} offset:{s*1280+160}", ("g", s))
        a.lds(f"ds_read_b128 v[{b+4}:{b+7}], v{XA} offset:{s*2112}", ("g", s))
    a("s_bitcmp1_b32 s3, 0")
    a("s_cbranch_scc1 L_g_v")
    sv = (list(a.vm), list(a.lg))
    for role in ("k", "v"):
        if role == "v":
            a.label("L_g_v"); a.vm, a.lg = list(sv[0]), list(sv[1])
        for s_ in range(5): rd(s_)
        for s_ in range(20):
            a.wait(lg=("g", s_))
            if s_ + 5 < 20: rd(s_ + 5)
            b = 64 + (s_ % 10) * 8
            cin = vr(KA, 4) if s_ else "0"
            if role == "k": a(f"v_mfma_f32_16x16x32_bf16 {vr(KA,4)}, v[{b}:{b+3}], v[{b+4}:{b+7}], {cin}")
            else: a(f"v_mfma_f32_16x16x32_bf16 {vr(KA,4)}, v[{b+4}:{b+7}], v[{b}:{b+3}], {cin}")
        if role == "k": a("s_branch L_g_kvst")
    a.label("L_g_kvst")
    set_flag(a, FV, FWA, 2)
    a("s_nop 3")
    a(f"v_cvt_pk_bf16_f32 v24, v{KA}, v{KA+1}")
    a(f"v_cvt_pk_bf16_f32 v25, v{KA+2}, v{KA+3}")
    a("v_cndmask_b32 v24, v24, v29, s[40:41]")
    a("v_cndmask_b32 v25, v25, v57, s[40:41]")
    a.vmem("buffer_store_dwordx2 v[24:25], v28, s[24:27], s29 offen sc1", "kvst")
    S_(4)
    def g3_wq(g0, n):
        for g in range(g0, g0 + n):
            a(f"s_add_u32 m0, 0, {L_R1 + SLOT(g)*5120}")
            a(f"s_add_u32 s43, s42, {g*40960}")
            for i in range(4):
                a(f"buffer_load_dwordx4 v{144+i}, s[92:95], s43 offen offset:{i*1024} lds")
            a(f"s_add_u32 m0, 0, {L_R1 + SLOT(g)*5120+4096}")
            a("s_nop 0")
            a(f"buffer_load_dwordx4 v148, s[92:95], s43 offen lds")
    a("s_cmp_eq_u32 s3, 3")
    a("s_cbranch_scc1 L_g_noln")
    ln_stats(a, X2, U2, 10, SUM, SQ, lambda i: ("x2", i))
    dpp_sum(a, [SUM, SQ], ("quad_perm:[1,0,3,2]", "quad_perm:[2,3,0,1]", "row_half_mirror"))
    ln_finish(a, SUM, SQ)
    a("s_waitcnt vmcnt(0)")
    a("s_branch L_g_ln1")
    a.label("L_g_noln")
    a.lg = []
    poll_lds(a, FV, FAD, 2, "fl")
    g3_wq(5, 10)
    a("s_waitcnt vmcnt(50)")
    a.label("L_g_ln1")
    a.vm = []
    tag_check(a, TAG)
    a(f"v_mov_b32 v{TA}, s62")
    a("s_lshl_b32 s36, s28, 4")
    a("s_mov_b64 exec, 1")
    a(f"v_mov_b32 v{FV}, 1")
    a(f"ds_add_rtn_u32 v{FV}, v{ZERO}, v{FV} offset:{L_CNTKV}")
    a("s_waitcnt lgkmcnt(0)"); a.lg = []
    a(f"v_cmp_eq_u32 vcc, 3, v{FV}")
    a("s_and_b64 exec, exec, vcc")
    a("s_cbranch_execz L_g_nokvflag")
    a(f"buffer_store_dword v{TA}, v{ZERO}, s[56:59], s36 offen sc1")
    a.label("L_g_nokvflag")
    a("s_mov_b64 exec, -1")
    S_(5)
    a("s_cmp_eq_u32 s3, 3")
    a("s_cbranch_scc1 L_g_noln2")
    ln_write(a, X2, U2, SUM, SQ, 63)
    a("s_branch L_g_ln2")
    a.label("L_g_noln2")
    a.lg = []
    set_flag(a, FV, FWA, 3)
    a(f"v_subrev_u32 v{TB}, {L_FLAGG}, v{FAD}")
    a("s_waitcnt vmcnt(0)")
    set_flag(a, FV, ZERO, 1, off=L_WQF)
    poll_lds(a, FV, TB, 4, "fl")
    g3_wq(15, 5)
    a("s_waitcnt vmcnt(0)")
    set_flag(a, FV, ZERO, 2, off=L_WQF)
    a.label("L_g_ln2")
    WO = [12, 13, 14]; WT, XA0, XA1 = 15, 9, 226
    for i in range(3):
        a(f"v_add_u32 v{WO[i]}, {64*i}, v{LANE}")
        a(f"v_mul_u32_u24 v{TA}, 171, v{WO[i]}")
        a(f"v_lshrrev_b32 v{TA}, 10, v{TA}")
        a(f"v_mul_u32_u24 v{TB}, 6, v{TA}")
        a(f"v_sub_u32 v{TB}, v{WO[i]}, v{TB}")
        a(f"v_mul_u32_u24 v{TA}, 3072, v{TA}")
        a(f"v_lshl_add_u32 v{WO[i]}, v{TB}, 4, v{TA}")
        if i: a(f"v_subrev_u32 v{WO[i]}, {1024*i}, v{WO[i]}")
    a("s_mul_i32 s32, s5, 384")
    a("s_mul_i32 s33, s3, 96")
    a("s_add_u32 s32, s32, s33")
    a(f"s_mul_i32 s33, s3, {WSLOT}")
    a(f"s_add_u32 s33, s33, {L_R1}")
    a("s_waitcnt lgkmcnt(0)"); a.lg = []
    set_flag(a, FV, FWA, 3)
    wcount = {}
    def w_parts(u):
        sl = WSO[WMAP(u)]
        def mk(m, i):
            def f():
                if i == 0:
                    a(f"s_add_u32 m0, s33, {sl + m*3200}"); a("s_nop 0")
                a.vmem(f"buffer_load_dwordx4 v{WO[i]}, s[{16+4*m}:{19+4*m}], s32 offen offset:{i*1024} lds", ("w", u))
                if m == 1 and i == 2: a("s_add_u32 s32, s32, 98304")
                wcount[u] = wcount.get(u, 0) + 1
            return f
        return [mk(m, i) for m in range(2) for i in range(3)]
    def gwarm():
        warm(a, [16, 20], 3072, 640 // NSH // 4, 384, ("s5", 384), NSH, TA, 60, 61, 3)
    if opt.get("wwarm") == "b": gwarm()
    if opt.get("wwarm") == "c":
        a(f"v_mov_b32 v{TB}, {L_WQF}")
        poll_lds(a, FV, TB, 2, "fl")
        gwarm()
    AFL = 11
    a(f"v_subrev_u32 v{AFL}, {L_FLAGG}, v{FAD}")
    a(f"v_lshrrev_b32 v{TB}, 5, v{LANE}")
    a(f"v_bfe_u32 v{WT}, v{LANE}, 2, 2")
    a(f"v_lshl_add_u32 v{WT}, v{TB}, 3, v{WT}")
    a(f"v_mul_u32_u24 v{229}, 320, v{WT}")
    a(f"v_mul_u32_u24 v{WT}, 96, v{WT}")
    a(f"v_mul_u32_u24 v{XA0}, 528, v{TB}")
    a(f"v_mul_u32_u24 v{230}, 40, v{TB}")
    a(f"v_and_b32 v{TB}, 1, v{LANE}")
    a(f"v_lshl_add_u32 v{WT}, v{TB}, 4, v{WT}")
    a(f"v_bfe_u32 v{TB}, v{LANE}, 1, 1")
    a(f"v_lshl_add_u32 v{WT}, v{TB}, 3, v{WT}")
    a(f"v_bfe_u32 v{TB}, v{LANE}, 4, 1")
    a(f"v_mul_u32_u24 v{TA}, 3200, v{TB}")
    a(f"v_add3_u32 v{WT}, v{WT}, v{TA}, s33")
    DO = 232; DO2 = 237; XR = 242; DT, PA, OA, DT2 = 252, 253, 254, 255
    a(f"v_and_b32 v{TA}, 3, v{LANE}")
    a(f"v_lshl_add_u32 v{TA}, v{TB}, 2, v{TA}")
    a("s_lshl_b32 s29, s3, 1")
    a(f"v_add_u32 v{TA}, s29, v{TA}")
    a(f"v_and_b32 v{TA}, 7, v{TA}")
    a(f"v_mul_u32_u24 v{TA}, 40, v{TA}")
    a("s_mov_b32 s29, s33")
    a(f"v_add3_u32 v{DT}, v229, v{TA}, s29")
    a(f"v_and_b32 v{TA}, 7, v{LANE}")
    a(f"v_lshlrev_b32 v{PA}, 4, v{TA}")
    a(f"v_and_b32 v{TA}, 31, v{LANE}")
    a(f"v_lshl_add_u32 v{XA0}, v{TA}, 4, v{XA0}")
    a(f"v_add_u32 v{XA0}, {L_XN}, v{XA0}")
    a(f"v_add_u32 v{XA1}, {XNT}, v{XA0}")
    a(f"v_mul_u32_u24 v{TA}, 1280, v{TA}")
    a(f"v_add_u32 v{OA}, v230, v{TA}")
    for i in range(5):
        a(f"v_add_u32 v{TA}, {64*i}, v{LANE}")
        a(f"v_mul_u32_u24 v{TB}, 205, v{TA}")
        a(f"v_lshrrev_b32 v{TB}, 12, v{TB}")
        a(f"v_mul_u32_u24 v{DO+i}, 20, v{TB}")
        a(f"v_sub_u32 v{TA}, v{TA}, v{DO+i}")
        a(f"v_lshlrev_b32 v{TA}, 4, v{TA}")
        if 0 < i < 4: a(f"v_subrev_u32 v{TA}, {1024*i}, v{TA}")
        a(f"v_mul_u32_u24 v{DO+i}, 1280, v{TB}")
        a(f"v_add_u32 v{DO+i}, v{DO+i}, v{TA}")
        a(f"v_lshrrev_b32 v{TB}, 2, v{TB}")
        a(f"v_add_u32 v{TB}, 1, v{TB}")
        a(f"v_mul_u32_u24 v{TB}, 20480, v{TB}")
        a(f"v_add_u32 v{DO2+i}, v{DO+i}, v{TB}")
    srd(a, 24, P_WS, H_BYTES, WS_H)
    srd(a, 12, P_WS, O_BYTES, WS_O)
    srd(a, 92, P_WD, 1536 * 1280)
    srd(a, 96, P_WO, 640 * 1280)
    a("s_mul_i32 s26, s5, 12288") if False else None
    a("s_lshl_b32 s36, s4, 1")
    a("s_mul_i32 s36, s36, 98304")
    a("s_mul_i32 s37, s5, 12288")
    a("s_mul_i32 s7, s3, 3072")
    a("s_add_u32 s7, s7, s37")
    a("s_add_u32 s36, s36, s7")
    a("s_add_u32 s37, s36, 98304")
    a("s_and_b32 s38, s5, 3")
    a(f"v_and_b32 v{TA}, 7, v{LANE}")
    a(f"v_lshlrev_b32 v{TA}, 2, v{TA}")
    poll_lds(a, FV, TA, 3, "fl")
    poll_lds(a, FV, AFL, opt.get("wstart", 8), "fl")
    a(f"s_setprio {opt['prioG']}")
    S_(6)
    a.raw("; @@G_MAIN_BEGIN")
    ACC = [[16 + 16 * (3 * b + t) for t in range(3)] for b in range(2)]
    FR = 112
    def f1parts(k):
        b = FR + (k % 2) * 20
        off = WSO[WMAP(k // 2)] + (k % 2) * 1536
        def B(i): return lambda: a.lds(f"ds_read_b128 {vr(b+4*i,4)}, v{XA1 if i else XA0} offset:{k*1056}", ("fb", k, i))
        def A_(t, hf):
            def f():
                if t == 0 and hf == 0:
                    while wcount.get(k // 2, 0) < 6: pend.pop(0)()
                    a.wait(vm=("w", k // 2))
                a.lds(f"ds_read_b64_tr_b16 {vr(b+8+4*t+2*hf,2)}, v{WT} offset:{off+t*32+hf*384}", ("fa", k, t))
            return f
        return [B(0), A_(0, 0), A_(0, 1), A_(1, 0), A_(1, 1), A_(2, 0), A_(2, 1), B(1)]
    a("s_mul_i32 s38, s38, 320")
    a("s_mul_i32 s39, s7, 20")
    a("s_add_u32 s39, s39, s38")
    a("s_mul_i32 s40, s3, 204800")
    a("s_add_u32 s40, s40, s38")
    a("s_mov_b32 s41, s40")
    def d_parts(k):
        sl = DS(k)
        if k < 24: sd, so, vo = "s[92:95]", "s39", DO
        elif k < 32: sd, so, vo = "s[96:99]", "s40", DO
        else: sd, so, vo = "s[96:99]", "s41", DO2
        def mk(i):
            def f():
                if i in (0, 4):
                    a(f"s_add_u32 m0, s29, {sl + (4096 if i == 4 else 0)}"); a("s_nop 0")
                a.vmem(f"buffer_load_dwordx4 v{vo+i}, {sd}, {so} offen" + (f" offset:{i*1024}" if i < 4 else "") + " lds", ("d", k))
                if i == 4:
                    if k < 24 and k % 3 == 2:
                        a("s_add_u32 s39, s39, 204800")
                        a("s_sub_u32 s60, s39, 1966080")
                        a("s_cmp_ge_u32 s39, 1966080")
                        a("s_cselect_b32 s39, s60, s39")
                    else:
                        a(f"s_add_u32 {so}, {so}, {20480 if k < 24 else (25600 if k < 32 else 102400)}")
            return f
        return [mk(i) for i in range(5)]
    def d_dma(k):
        for f in d_parts(k): f()
    a("s_lshl_b32 s30, s4, 9")
    a("s_lshl_b32 s31, s3, 7")
    a("s_add_u32 s30, s30, s31")
    a("s_lshl_b32 s42, s5, 4")
    a("s_add_u32 s42, s42, s30")
    a(f"s_add_u32 s42, s42, {FL_H}")
    a(f"s_add_u32 s30, s30, {FL_H}")
    SFR = 152
    a(f"v_mov_b32 v153, s62")
    def hflag(w):
        if w: a.wait(vm="hst")
        a("s_mov_b64 exec, 1")
        a.vmem(f"buffer_store_dword v153, v{ZERO}, s[56:59], s42 offen sc1", "hfl")
        a("s_mov_b64 exec, -1")
    pend = []
    for f in w_parts(0): f()
    if opt.get("wstart", 8) >= 6:
        for f in w_parts(1): f()
    else: pend += [lambda: poll_lds(a, FV, AFL, 6, "fl")] + w_parts(1)
    for f in f1parts(0): f()
    for k in range(40):
        b = FR + (k % 2) * 20
        rd_ = f1parts(k + 1) if k + 1 < 40 else []
        if k == 1: pend += [lambda: poll_lds(a, FV, AFL, 10, "fl")] + w_parts(2)
        if k % 2 == 0 and k >= 2 and k // 2 + 2 < 20: pend += w_parts(k // 2 + 2)
        if k == 36: pend += d_parts(0)
        if k == 38: pend += d_parts(1)
        if opt.get("hsent"):
            if k == 24: pend += [lambda: poll_lds(a, FV, AFL, 12, "fl"), lambda: hflag(False)]
            if k == 34: pend += [lambda: a.vmem(f"buffer_load_dword v{SFR}, v{PA}, s[56:59], s30 offen sc1", "sfr")]
        elif k == 37: pend += [lambda: poll_lds(a, FV, AFL, 12, "fl")]
        if opt.get("f1st") and k in (1, 10, 20, 30): S0_({1: 1, 10: 2, 20: 3, 30: 4}[k])
        cut = [0, 2, 4, 5, 6, 7, 8]
        i = 0
        for bb in range(2):
            for t in range(3):
                a.wait(lg=[("fb", k, bb), ("fa", k, t)])
                a(f"v_mfma_f32_32x32x16_bf16 {vr(ACC[bb][t],16)}, {vr(b+8+4*t,4)}, {vr(b+4*bb,4)}, {vr(ACC[bb][t],16) if k else 0}")
                for f in rd_[cut[i]:cut[i+1]]: f()
                if (i >= 2 or len(pend) > 6) and pend: pend.pop(0)()
                i += 1
    while pend: pend.pop(0)()
    d_dma(2)
    set_flag(a, FV, FWA, 4)
    S_(7)
    a("s_cmp_ge_u32 s5, 4")
    a("s_cselect_b64 vcc, -1, 0")
    DA = [16 + 16 * t for t in range(5)]; BF = 136
    if opt.get('gp', 2) >= 1: a('s_setprio 3')
    for b in range(2):
        for t in range(3):
            c = ACC[b][t]
            for r in range(0, 8, 2): a(f"v_pk_mul_f32 {vr(c+r,2)}, {vr(c+r,2)}, {vr(c+8+r,2)}")
            for i in range(4): a(f"v_cvt_pk_bf16_f32 v{c+8+i}, v{c+2*i}, v{c+2*i+1}")
            if opt.get('gp') == 1: a.vmem(f"buffer_store_dwordx4 {vr(c+8,4)}, v{L16}, s[24:27], s{36+b} offen offset:{t*1024} sc1", "hst")
    for t in range(3):
        for i in range(4):
            a(f"v_cndmask_b32 v{BF+4*t+i}, v{ACC[0][t]+8+i}, v{ACC[1][t]+8+i}, vcc")
        a.done.add(("b", t))
    a(f"v_mov_b32 v{TB}, s62")
    if opt.get('gp') == 3:
        a('s_setprio 0')
        for b in range(2):
            for t in range(3):
                a.vmem(f"buffer_store_dwordx4 {vr(ACC[b][t]+8,4)}, v{L16}, s[24:27], s{36+b} offen offset:{t*1024} sc1", "hst")
    a("s_lshl_b32 s36, s4, 1")
    a("s_lshr_b32 s37, s5, 2")
    a("s_add_u32 s36, s36, s37")
    a("s_mul_i32 s43, s36, 40960")
    a("s_add_u32 s43, s43, s38")
    a("s_mul_i32 s37, s3, 80")
    a("s_add_u32 s43, s43, s37")
    a("s_mul_i32 s37, s36, 98304")
    a("s_mul_i32 s36, s36, 40960")
    a("s_mul_i32 s61, s3, 10240")
    a("s_add_u32 s36, s36, s61")
    HS = [64, 65, 66, 67, 68, 69, 70]
    for j in range(1, 8):
        a("s_add_u32 s7, s7, 12288")
        a("s_sub_u32 s61, s7, 98304")
        a("s_cmp_ge_u32 s7, 98304")
        a("s_cselect_b32 s7, s61, s7")
        a(f"s_add_u32 s{HS[j-1]}, s7, s37")
    def h_ld(k): return f"buffer_load_dwordx4 {vr(BF+4*k,4)}, v{L16}, s[24:27], s{HS[k//3-1]} offen offset:{(k%3)*1024} sc1"
    if opt.get("hsent"):
        a.wait(vm="sfr")
        a(f"v_cmp_ne_u32 vcc, s62, v{SFR}")
        a("s_cmp_eq_u64 vcc, 0")
        a("s_cbranch_scc1 L_g_sok")
        sv = list(a.vm); poll_global(a, FV, 1, PA, 56, "s30", "s62"); a.vm = sv
        a.label("L_g_sok")
    if opt.get('gp', 2) == 1: a('s_setprio 0')
    hl = [lambda: a.vmem(f"buffer_load_dwordx4 {vr(XR,4)}, v{OA}, s[8:11], s43 offen", "xr"),
           lambda: a.vmem(f"buffer_load_dwordx4 {vr(XR+4,4)}, v{OA}, s[8:11], s43 offen offset:16", "xr"),
           lambda: a.vmem(f"buffer_load_dwordx2 {vr(XR+8,2)}, v{OA}, s[8:11], s43 offen offset:32", "xr")]
    def valid(regs, reload, nleft, sleep):
        chk = a.newlabel("ck"); rt = a.newlabel("rt"); go = a.newlabel("go")
        a("s_mov_b32 s63, 8192")
        a.label(chk)
        a(f"v_max3_u32 v{TA}, v{regs[0]}, v{regs[1]}, v{regs[2]}")
        r = regs[3:]
        while len(r) >= 2: a(f"v_max3_u32 v{TA}, v{TA}, v{r[0]}, v{r[1]}"); r = r[2:]
        if r: a(f"v_max_u32 v{TA}, v{TA}, v{r[0]}")
        a(f"v_cmp_eq_u32 vcc, -1, v{TA}")
        a("s_cmp_eq_u64 vcc, 0")
        a(f"s_cbranch_scc0 {rt}")
        a.label(go)
        a.cold += [f"{rt}:", "    s_sub_u32 s63, s63, 1", f"    s_cbranch_scc1 {go}", f"    s_sleep {sleep}"] + ["    " + l for l in reload] + [f"    s_waitcnt vmcnt({nleft})", f"    s_branch {chk}"]
    FS = lambda k: (96 + (k % 2) * 20) if k < 24 else [96, 116, 176, 196][k % 4]
    pend_dma = []
    def dparts(k):
        b = FS(k)
        def R(t, hf):
            def f():
                if t == 0 and hf == 0: a.wait(vm=("d", k))
                a.lds(f"ds_read_b64_tr_b16 {vr(b+4*t+2*hf,2)}, v{DT} offset:{DS(k)+t*8+hf*1280}", ("dr", k, t))
            return f
        return [R(t, hf) for t in range(5) for hf in range(2)]
    def dreads(k):
        for f in dparts(k): f()
    def mf(k, t):
        a.wait(vm=("b", k), lg=("dr", k, t))
        a(f"v_mfma_f32_32x32x16_bf16 {vr(DA[t],16)}, {vr(FS(k)+4*t,4)}, {vr(BF+4*(k%24),4)}, {vr(DA[t],16) if k else 0}")
    dreads(0)
    a(f"s_setprio {opt['prioG']}")
    for k in range(24):
        if opt.get("hsent"):
            if k == 1: hl = [(lambda j=j: a.vmem(h_ld(j), ("b", j))) for j in range(3, 24)] + hl
            if k >= 3 and k % 3 == 0:
                if k == 3 and opt.get("hst"): S_(10)
                a.wait(vm=("b", k + 2))
                a("s_setprio 3")
                valid(list(range(BF + 4 * k, BF + 4 * k + 12)), [h_ld(j) for j in range(k, min(k + 9, 24))], min(k + 9, 24) - k - 3, 6)
                a(f"s_setprio {opt['prioG']}")
                if k == 3 and opt.get("hst"): S_(11)
        elif k == 3:
            if opt.get("hst"): S_(10)
            poll_global(a, FV, 1, PA, 56, "s30", "s62")
            if opt.get("hst"): S_(11)
            for j in range(3, 9): a.vmem(h_ld(j), ("b", j))
            hl += [(lambda j=j: a.vmem(h_ld(j), ("b", j))) for j in range(9, 24)]
        rd_ = dparts(k + 1)
        dm_ = d_parts(k + DN)
        if k == 0 and not opt.get("hsent"):
            dm_ = [lambda: (a.wait(vm="hst"), a("s_mov_b64 exec, 1"), a.vmem(f"buffer_store_dword v{TB}, v{ZERO}, s[56:59], s42 offen sc1", "hfl"), a("s_mov_b64 exec, -1"))] + dm_
        cut = [0, 3, 6, 8, 10, 10]; dcut = [0, 0, 1, 2, 4, len(dm_)]
        for t in range(5):
            mf(k, t)
            for f in rd_[cut[t]:cut[t+1]]: f()
            if t == 1: a.wait(lg=("dr", k, 4))
            for f in dm_[dcut[t]:dcut[t+1]]: f()
            nh = 2 if (opt.get("hsent") and k < 3) else 1
            for f in hl[:nh]: f()
            hl = hl[nh:]
    assert not hl
    a.flush_pend()
    for k in (25, 26): dreads(k)
    a.wait(lg=("dr", 24, 4)); d_dma(27)
    a.wait(lg=("dr", 25, 4)); d_dma(28)
    a.wait(lg=("dr", 26, 4)); d_dma(29)
    dreads(27)
    a.wait(lg=("dr", 27, 4)); d_dma(30)
    a.raw("; @@G_MAIN_END")
    S_(8)
    if opt.get("aoff"):
        S_(9); st.flush(a, P_WS, 6, 20); a("s_endpgm")
    a("s_setprio 3")
    a("s_add_u32 s30, s36, 4096"); a("s_add_u32 s31, s36, 8192")
    def o_ld(i): return f"buffer_load_dwordx4 {vr(BF+4*i,4)}, v{L16}, s[12:15], {['s36','s30','s31'][i//4]} offen offset:{(i%4)*1024} sc1"
    for i in range(10): a.vmem(o_ld(i), ("b", 24 + i))
    for k in range(24, 34):
        i = k - 24; bq = BF + 4 * i
        a.wait(vm=("b", k))
        valid([bq, bq + 1, bq + 2, bq + 3], [o_ld(j) for j in range(i, 10)], 9 - i, opt.get("osleep", 2))
        if k == 24 and not opt.get("hst"): S_(10)
        rd_ = dparts(k + 3) if 28 <= k + 3 < 34 else []
        for t in range(5):
            mf(k, t)
            for f in rd_[2*t:2*t+2]: f()
        if k in (26, 27, 28):
            a.wait(lg=("dr", k + 2, 4)); d_dma(k + 2 + DN)
    if not opt.get("hst"): S_(11)
    srd(a, 16, P_OUT, 2048 * 1280)
    a(f"v_add_u32 v{TA}, s29, v{L16}")
    RS = 96
    a.wait(vm="xr")
    for i in range(10):
        a(f"v_lshlrev_b32 v{RS+2*i}, 16, v{XR+i}")
        a(f"v_and_b32 v{RS+2*i+1}, 0xffff0000, v{XR+i}")
    for gq in range(1, 4):
        for t in range(5):
            a.lds(f"ds_write_b128 v{TA}, {vr(DA[t]+4*gq,4)} offset:{WSO[gq-1]+t*1024}", "rw")
    set_flag(a, FV, FWA, 5)
    if opt.get("tst"): S0_(1)
    for gq in range(1, 4):
        a(f"s_sub_u32 s30, s3, {gq}"); a("s_and_b32 s30, s30, 3"); a(f"s_mul_i32 s30, s30, {WSLOT}"); a(f"s_add_u32 s30, s30, {L_R1 + WSO[gq-1]}")
        a(f"v_add_u32 v{116+gq}, s30, v{L16}")
    for t in range(5):
        for i in range(2): a(f"v_pk_add_f32 {vr(RS+4*t+2*i,2)}, {vr(RS+4*t+2*i,2)}, {vr(DA[t]+2*i,2)}")
    poll_lds(a, FV, FAD, 5, "fl")
    if opt.get("tst"): S0_(2)
    for w in range(1, 4):
        for t in range(5):
            a.lds(f"ds_read_b128 {vr(16+20*w+4*t,4)}, v{116+w} offset:{t*1024}", ("rr", w))
    for w in range(1, 4):
        a.wait(lg=("rr", w))
        for i in range(10):
            a(f"v_pk_add_f32 {vr(RS+2*i,2)}, {vr(RS+2*i,2)}, {vr(16+20*w+2*i,2)}")
    for i in range(10):
        a(f"v_cvt_pk_bf16_f32 v{120+i}, v{RS+2*i}, v{RS+2*i+1}")
    if opt.get("tst"): S0_(3)
    a(f"buffer_store_dwordx4 {vr(120,4)}, v{OA}, s[16:19], s43 offen")
    a(f"buffer_store_dwordx4 {vr(124,4)}, v{OA}, s[16:19], s43 offen offset:16")
    a(f"buffer_store_dwordx2 {vr(128,2)}, v{OA}, s[16:19], s43 offen offset:32")
    if st:
        a("s_waitcnt vmcnt(0)"); S_(9); st.flush(a, P_WS, 6, 20)
```

```python
from asmlib import *
import math, struct
def f32hex(x): return struct.unpack("<I", struct.pack("<f", x))[0]
WS_KV = 0x280000;  KV_BYTES = 64 * 3072
WS_H  = 0x300000;  H_BYTES = 64 * 96 * 1024
WS_O  = 0x900000;  O_BYTES = 64 * 40 * 1024
WS_FL = 0xC00000;  FL_BYTES = 0x10000
FL_KV = 0; FL_H = 0x4000; FL_O = 0x8000
BIG = 0x40000000
L_FLAGA = 0; L_FLAGG = 16; L_CNTKV = 32; L_TAG = 36; L_KVOK = 40
L_XN = 256; XNT = 80 * 528
L_R1 = L_XN + 2 * XNT
KVSLOT = 12288
L_KV = 163840 - 4 * KVSLOT
L_WK = 110592; L_WV = L_WK + 26624
WSLOT = 6272
WSO = [0, 51200, 25600]
WMAP = lambda u: u % 3
DSLOT = 5120; DN = 3
L_RED = 256; L_MX = 161024
DS = lambda k: WSO[(k + 2) % 3]
QXO = 25600
LDS_TOTAL = 163840
QSCALE = (20 ** -0.5) * math.log2(math.e)
P_X, P_WQ, P_WK, P_WV, P_WO, P_BX, P_WG, P_WU, P_WD, P_OUT, P_DBG, P_WS = [64 + 2 * i for i in range(12)]
SPIN = 0x40000
LANE, L16, TA, TB, ZERO = 1, 2, 3, 4, 5
FAD, FWA, FV = 6, 7, 8
DUMMY = 10

def srd(a, d, p, nbytes, add=0):
    if add:
        a(f"s_add_u32 s{d}, s{p}, {add}"); a(f"s_addc_u32 s{d+1}, s{p+1}, 0")
    else:
        a(f"s_mov_b32 s{d}, s{p}"); a(f"s_mov_b32 s{d+1}, s{p+1}")
    a(f"s_mov_b32 s{d+2}, {nbytes}"); a(f"s_mov_b32 s{d+3}, 0x00020000")

def poll_lds(a, vF, vFaddr, need, tag, issue=True):
    ok = a.newlabel("pok"); lp = a.newlabel("plp"); sl = a.newlabel("psl")
    if issue: a.lds(f"ds_read_b32 v{vF}, v{vFaddr}", tag)
    a.wait(lg=tag)
    a(f"v_cmp_gt_u32 vcc, {need}, v{vF}")
    a("s_cmp_eq_u64 vcc, 0")
    a(f"s_cbranch_scc0 {sl}")
    a.label(ok)
    a.cold += [f"{sl}:", f"    s_mov_b32 s63, {SPIN}", f"{lp}:", "    s_sleep 1", f"    ds_read_b32 v{vF}, v{vFaddr}", "    s_waitcnt lgkmcnt(0)",
               "    s_sub_u32 s63, s63, 1", f"    s_cbranch_scc1 {ok}", f"    v_cmp_gt_u32 vcc, {need}, v{vF}", "    s_cmp_eq_u64 vcc, 0",
               f"    s_cbranch_scc0 {lp}", f"    s_branch {ok}"]

def set_flag(a, vtmp, vaddr, val, off=0):
    a("s_mov_b64 exec, 1")
    a(f"v_mov_b32 v{vtmp}, {val}")
    a.lds(f"ds_write_b32 v{vaddr}, v{vtmp}" + (f" offset:{off}" if off else ""), "fw")
    a("s_mov_b64 exec, -1")

def poll_global(a, vdst, n, vaddr, srdn, soffs, stag, sleep=6):
    ok = a.newlabel("gok"); lp = a.newlabel("glp")
    a(f"s_mov_b32 s63, {SPIN // 16}")
    a.label(lp)
    for i in range(n):
        a(f"buffer_load_dword v{vdst+i}, v{vaddr}, s[{srdn}:{srdn+3}], {soffs} offen offset:{i*1024} sc1")
    a("s_waitcnt vmcnt(0)")
    for i in range(n): a(f"v_xor_b32 v{vdst+i}, {stag}, v{vdst+i}")
    for i in range(1, n): a(f"v_or_b32 v{vdst}, v{vdst}, v{vdst+i}")
    a(f"v_cmp_ne_u32 vcc, 0, v{vdst}")
    a("s_cmp_eq_u64 vcc, 0")
    a(f"s_cbranch_scc1 {ok}")
    a(f"s_sleep {sleep}")
    a("s_sub_u32 s63, s63, 1")
    a(f"s_cbranch_scc0 {lp}")
    a.label(ok)
    a.vm = []

def get_tag(a, vT):
    ok = a.newlabel("tok"); lp = a.newlabel("tlp")
    a(f"s_mov_b32 s63, {SPIN}")
    a.label(lp)
    a(f"ds_read_b32 v{vT}, v{ZERO} offset:{L_TAG}")
    a("s_waitcnt lgkmcnt(0)")
    a(f"v_readfirstlane_b32 s62, v{vT}")
    a("s_cmp_lg_u32 s62, 0")
    a(f"s_cbranch_scc1 {ok}")
    a("s_sleep 1")
    a("s_sub_u32 s63, s63, 1")
    a(f"s_cbranch_scc0 {lp}")
    a.label(ok)
    a.lg = []

def warm(a, srdn, stride, rows_per_wave, width, col_expr, NSH, vt, st0, st1, lpr):
    a(f"s_and_b32 s{st0}, s4, {NSH-1}")
    a(f"s_lshl_b32 s{st0}, s{st0}, 2")
    a(f"s_add_u32 s{st0}, s{st0}, s3")
    a(f"s_mul_i32 s{st0}, s{st0}, {rows_per_wave*stride}")
    a(f"s_mul_i32 s{st1}, {col_expr[0]}, {col_expr[1]}")
    a(f"s_add_u32 s{st0}, s{st0}, s{st1}")
    rpi = 64 // lpr
    a(f"v_mul_u32_u24 v{vt+1}, {(512 + lpr - 1) // lpr}, v{LANE}")
    a(f"v_lshrrev_b32 v{vt+1}, 9, v{vt+1}")
    a(f"v_mul_u32_u24 v{vt}, {lpr}, v{vt+1}")
    a(f"v_sub_u32 v{vt}, v{LANE}, v{vt}")
    a(f"v_lshlrev_b32 v{vt}, 7, v{vt}")
    a(f"v_min_u32 v{vt}, {width-4}, v{vt}")
    a(f"v_min_u32 v{vt+1}, {min(rpi, rows_per_wave)-1}, v{vt+1}")
    a(f"v_mul_u32_u24 v{vt+1}, {stride}, v{vt+1}")
    a(f"v_add_u32 v{vt}, v{vt}, v{vt+1}")
    n = (rows_per_wave + rpi - 1) // rpi
    for i in range(n):
        for sd in srdn:
            a.vmem(f"buffer_load_dword v{DUMMY}, v{vt}, s[{sd}:{sd+3}], s{st0} offen", "warm")
        if i + 1 < n:
            step = rpi if (i + 2) * rpi <= rows_per_wave else rows_per_wave - rpi - rpi * i
            a(f"s_add_u32 s{st0}, s{st0}, {step*stride}")

def warm_lane(a, dst, tmp, stride, rows, width, lpr):
    a(f"v_mul_u32_u24 v{tmp}, {(512 + lpr - 1) // lpr}, v{LANE}")
    a(f"v_lshrrev_b32 v{tmp}, 9, v{tmp}")
    a(f"v_mul_u32_u24 v{dst}, {lpr}, v{tmp}")
    a(f"v_sub_u32 v{dst}, v{LANE}, v{dst}")
    a(f"v_lshlrev_b32 v{dst}, 7, v{dst}")
    a(f"v_min_u32 v{dst}, {width-4}, v{dst}")
    a(f"v_min_u32 v{tmp}, {rows-1}, v{tmp}")
    a(f"v_mul_u32_u24 v{tmp}, {stride}, v{tmp}")
    a(f"v_add_u32 v{dst}, v{dst}, v{tmp}")

def share(a, sd, NSH):
    a(f"s_and_b32 s{sd}, s4, {NSH-1}")
    a(f"s_lshl_b32 s{sd}, s{sd}, 2")
    a(f"s_add_u32 s{sd}, s{sd}, s3")

def tag_check(a, vT):
    ok = a.newlabel("tok"); lp = a.newlabel("tlp")
    a(f"s_mov_b32 s63, {SPIN // 16}")
    a.label(lp)
    a(f"v_readfirstlane_b32 s62, v{vT}")
    a("s_cmp_lg_u32 s62, 0")
    a(f"s_cbranch_scc1 {ok}")
    a("s_sleep 4")
    a(f"buffer_load_dword v{vT}, v{ZERO}, s[88:91], 0 offen sc1")
    a("s_waitcnt vmcnt(0)")
    a("s_sub_u32 s63, s63, 1")
    a(f"s_cbranch_scc0 {lp}")
    a.label(ok)

def ln_finish(a, SUM, SQ):
    a(f"v_mul_f32 v{SUM}, 0x{f32hex(1.0/640):08x}, v{SUM}")
    a(f"v_mul_f32 v{SQ}, 0x{f32hex(1.0/640):08x}, v{SQ}")
    a(f"v_fma_f32 v{SQ}, -v{SUM}, v{SUM}, v{SQ}")
    a(f"v_max_f32 v{SQ}, 0, v{SQ}")
    a(f"v_add_f32 v{SQ}, 0x{f32hex(1e-5):08x}, v{SQ}")
    a(f"v_rsq_f32 v{SQ}, v{SQ}")
    a("s_nop 0")
    a(f"v_mul_f32 v{SUM}, v{SUM}, v{SQ}")
    a(f"v_mov_b32 v{SQ+1}, v{SQ}")
    a(f"v_sub_f32 v{SUM}, 0, v{SUM}")
    a(f"v_mov_b32 v{SUM+1}, v{SUM}")

def ln_stats(a, X, U, n, SUM, SQ, tagf, hook=None):
    for i in range(n):
        a.wait(vm=tagf(i))
        if hook: hook(i)
        for d in range(4):
            a(f"v_lshlrev_b32 v{U+8*i+2*d}, 16, v{X+4*i+d}")
            a(f"v_and_b32 v{U+8*i+2*d+1}, 0xffff0000, v{X+4*i+d}")
        for d in range(4):
            p = vr(U + 8 * i + 2 * d, 2)
            if i == 0 and d == 0:
                a(f"v_pk_mul_f32 {vr(SQ,2)}, {p}, {p}")
                a(f"v_pk_add_f32 {vr(SUM,2)}, {p}, {vr(U+2,2)}")
            else:
                if not (i == 0 and d == 1): a(f"v_pk_add_f32 {vr(SUM,2)}, {vr(SUM,2)}, {p}")
                a(f"v_pk_fma_f32 {vr(SQ,2)}, {p}, {p}, {vr(SQ,2)}")
    a(f"v_add_f32 v{SUM}, v{SUM}, v{SUM+1}")
    a(f"v_add_f32 v{SQ}, v{SQ}, v{SQ+1}")
    a("s_nop 0")

def dpp_sum(a, regs, ctls):
    for ctl in ctls:
        for r in regs: a(f"v_add_f32_dpp v{r}, v{r}, v{r} {ctl} row_mask:0xf bank_mask:0xf")
        a("s_nop 0")

def ln_group(a, idx_expr_sgpr, sgl, sld, vgl, vld):
    a(f"s_cmp_ge_u32 s{idx_expr_sgpr}, s5")
    a(f"s_addc_u32 s{sld}, s{idx_expr_sgpr}, 0")
    a(f"s_lshl_b32 s{sgl}, s4, 3")
    a(f"s_add_u32 s{sgl}, s{sgl}, s{sld}")
    a(f"s_mul_i32 s{sgl}, s{sgl}, 10240")
    a(f"v_lshrrev_b32 v{TB}, 3, v{LANE}")
    a(f"v_mul_u32_u24 v{vgl}, 1280, v{TB}")
    a(f"v_and_b32 v{TA}, 7, v{LANE}")
    a(f"v_lshl_add_u32 v{vgl}, v{TA}, 4, v{vgl}")
    a(f"v_mul_u32_u24 v{vld}, 528, v{TA}")
    a(f"v_lshl_add_u32 v{vld}, v{TB}, 4, v{vld}")
    a(f"s_and_b32 s63, s{sld}, 3")
    a("s_lshl_b32 s63, s63, 7")
    a(f"s_lshr_b32 s{sld}, s{sld}, 2")
    a(f"s_mul_i32 s{sld}, s{sld}, {XNT}")
    a(f"s_add_u32 s{sld}, s{sld}, s63")
    a(f"s_add_u32 s{sld}, s{sld}, {L_XN}")
    a(f"v_add_u32 v{vld}, s{sld}, v{vld}")

def ln_write(a, X, U, SUM, SQ, vld):
    for i in range(10):
        for d in range(4):
            pp = vr(U + 8 * i + 2 * d, 2)
            a(f"v_pk_fma_f32 {pp}, {pp}, {vr(SQ,2)}, {vr(SUM,2)}")
        for d in range(4):
            a(f"v_cvt_pk_bf16_f32 v{X+4*i+d}, v{U+8*i+2*d}, v{U+8*i+2*d+1}")
        a.lds(f"ds_write_b128 v{vld}, {vr(X+4*i,4)} offset:{i*4224}", "xw")

def wq_offsets(a, WQO):
    for i in range(5):
        a(f"v_add_u32 v{TA}, {64*i}, v{LANE}")
        a(f"v_mul_u32_u24 v{TB}, 205, v{TA}")
        a(f"v_lshrrev_b32 v{TB}, 11, v{TB}")
        a(f"v_mul_u32_u24 v{WQO+i}, 10, v{TB}")
        a(f"v_sub_u32 v{TA}, v{TA}, v{WQO+i}")
        a(f"v_lshlrev_b32 v{TA}, 4, v{TA}")
        if 0 < i < 4: a(f"v_subrev_u32 v{TA}, {1024*i}, v{TA}")
        a(f"v_mul_u32_u24 v{WQO+i}, 1280, v{TB}")
        a(f"v_add_u32 v{WQO+i}, v{WQO+i}, v{TA}")
SLOT = lambda g: g % 15
L_WQF = 44

def gen(name, st=None, opt=None):
    opt = dict(dict(prioA=2, prioG=0, pattern=4, endstamp=False, xmap="16x2", w0=0, wwarm="c", gp=1, pat="MeeeMeeceececeMeeccM|eeeceecc", hst=0), **(opt or {}))
    a = Asm()
    S_ = (lambda i, cyc=False: st(a, i, cyc)) if st else (lambda i, cyc=False: None)
    a.raw(f".globl {name}\n.p2align 8\n.type {name},@function")
    a.label(name)
    a("s_cmp_ge_u32 s2, 256")
    a("s_cbranch_scc1 L_end")
    if st: st.init(a); S_(0)
    a("s_load_dwordx16 s[64:79], s[0:1], 0")
    a("s_load_dwordx8 s[80:87], s[0:1], 64")
    a("v_lshrrev_b32 v3, 6, v0")
    a(f"v_and_b32 v{LANE}, 63, v0")
    a("v_readfirstlane_b32 s6, v3")
    a(f"v_lshlrev_b32 v{L16}, 4, v{LANE}")
    a(f"v_mov_b32 v{ZERO}, 0")
    if opt["xmap"] == "8x4":
        a("s_bfe_u32 s4, s2, 0x20001"); a("s_lshl_b32 s4, s4, 3"); a("s_lshr_b32 s7, s2, 5"); a("s_add_u32 s4, s4, s7")
        a("s_and_b32 s5, s2, 1"); a("s_lshl_b32 s5, s5, 2"); a("s_bfe_u32 s7, s2, 0x20003"); a("s_add_u32 s5, s5, s7")
        NSH = 8; NSD = 8
    elif opt["xmap"] == "4x8":
        a("s_and_b32 s4, s2, 7"); a("s_lshl_b32 s4, s4, 2"); a("s_lshr_b32 s7, s2, 6"); a("s_add_u32 s4, s4, s7")
        a("s_bfe_u32 s5, s2, 0x30003")
        NSH = 4; NSD = 4
    elif opt["xmap"] == "16x2":
        a("s_bfe_u32 s4, s2, 0x10002"); a("s_lshl_b32 s4, s4, 4"); a("s_lshr_b32 s7, s2, 4"); a("s_add_u32 s4, s4, s7")
        a("s_and_b32 s5, s2, 3"); a("s_lshl_b32 s5, s5, 1"); a("s_bfe_u32 s7, s2, 0x10003"); a("s_add_u32 s5, s5, s7")
        NSH = 16; NSD = 16
    a("s_and_b32 s3, s6, 3")
    a(f"v_lshlrev_b32 v{FWA}, 2, v{LANE}")
    a("s_cmp_lg_u32 s6, 0")
    a("s_cbranch_scc1 L_nozero")
    a(f"ds_write_b32 v{FWA}, v{ZERO}")
    a.label("L_nozero")
    a("s_waitcnt lgkmcnt(0)")
    srd(a, 8, P_X, 2048 * 1280)
    srd(a, 88, P_DBG, 256)
    a("s_cmp_ge_u32 s6, 4")
    a("s_cbranch_scc1 L_g_role")
    ln_group(a, 3, 7, 24, 10, 11)
    a("s_or_b32 s25, s2, s6")
    a("s_cmp_lg_u32 s25, 0")
    a("s_cbranch_scc1 L_notagpub")
    a("s_memrealtime s[60:61]")
    a("s_waitcnt lgkmcnt(0)")
    a("s_or_b32 s60, s60, 1")
    a("v_mov_b32 v8, s60")
    a("s_mov_b64 exec, 1")
    a(f"buffer_store_dword v8, v{ZERO}, s[88:91], 0 offen sc1")
    a("s_mov_b64 exec, -1")
    a.label("L_notagpub")
    a("s_barrier")
    for i in range(10):
        a.vmem(f"buffer_load_dwordx4 {vr(16+4*i,4)}, v10, s[8:11], s7 offen offset:{128*i}", ("x", i))
    vm_a = list(a.vm)
    a("s_branch L_a_role")
    a.label("L_g_role")
    a.vm = []; a.lg = []
    gen_g(a, S_, st, opt, NSH)
    a("s_endpgm")
    a.emit_cold()
    a.label("L_a_role")
    a.vm = vm_a; a.lg = []
    gen_a(a, S_, st, opt, NSH)
    a.emit_cold()
    a.label("L_end")
    a("s_endpgm")
    txt = a.text()
    if opt.get("gwrap"):
        out = []; on = False; low = False
        for l in txt.split("\n"):
            if "@@G_MAIN_BEGIN" in l: on = True; out.append(l); out.append("    s_setprio 3"); continue
            if "@@G_MAIN_END" in l:
                on = False
                if low: out.append("    s_setprio 3"); low = False
            t = l.strip()
            if on:
                if t.startswith("s_setprio"): continue
                if t.startswith("v_mfma"):
                    if not low:
                        out.append(f"    s_setprio {opt.get('glow', 0)}"); low = True
                        if opt.get("gnop") is not None: out.append(f"    s_nop {opt['gnop']}")
                elif low and t and not t.startswith(";"):
                    out.append(f"    s_setprio {opt.get('ghigh', 3)}"); low = False
            out.append(l)
        txt = "\n".join(out)
    if opt.get("allsc"):
        out = []
        for l in txt.split("\n"):
            t = l.strip()
            if t.startswith("buffer_load_dwordx4") and " sc1" not in t and "s[8:11]" not in t:
                l = (l[:-4] + f" {opt['allsc']} lds") if t.endswith(" lds") else l + f" {opt['allsc']}"
            out.append(l)
        txt = "\n".join(out)
    if opt.get("gdrop"):
        out = []; on = False
        for l in txt.split("\n"):
            if "@@G_MAIN_BEGIN" in l: on = True
            if "@@G_MAIN_END" in l: on = False
            t = l.strip()
            if on and "mfma" in opt["gdrop"] and t.startswith("v_mfma"): continue
            if on and "lds" in opt["gdrop"] and (t.startswith("ds_read_b64_tr") or t.startswith("ds_read_b128")): continue
            if on and "dma" in opt["gdrop"] and t.startswith("buffer_load_dwordx4"): continue
            out.append(l)
        txt = "\n".join(out)
    return txt, kdesc(name, 256, 102)

def gen_a(a, S0_, st, opt, NSH):
    QS = {5: 0, 7: 1, 16: 2, 19: 3, 28: 6, 31: 7} if opt.get("qst") else {}
    S_ = (lambda i, cyc=False: S0_(i, cyc) if (not opt.get("qst") or i in (4, 5, 8, 9, 10, 11)) else None)
    X = 16; U = 56; SUM, SQ = 12, 14; TAG = 8; WQA = 7
    WQO = 136
    srd(a, 12, P_WQ, 640 * 1280)
    wq_offsets(a, WQO)
    a("s_lshl_b32 s24, s5, 2")
    a("s_add_u32 s24, s24, s3")
    a("s_mul_i32 s25, s5, 160")
    a("s_mul_i32 s26, s3, 40960")
    a("s_add_u32 s25, s25, s26")
    a("s_mul_i32 s26, s3, 5120")
    a(f"s_add_u32 s26, s26, {L_R1}")
    def wq_one(g4, i, tag):
        def f():
            a(f"s_add_u32 m0, s26, {SLOT(g4)*5120 + (4096 if i == 4 else 0)}")
            a(f"s_add_u32 s27, s25, {g4*40960}")
            ins = f"buffer_load_dwordx4 v{WQO+i}, s[12:15], s27 offen" + (f" offset:{i*1024}" if i < 4 else "") + " lds"
            if tag: a.vmem(ins, tag)
            else:
                l = a.newlabel("g4"); a("s_cmp_lg_u32 s3, 0"); a(f"s_cbranch_scc1 {l}"); a(ins); a.label(l)
        return f
    srd(a, 16, P_WG, 640 * 3072)
    srd(a, 20, P_WU, 640 * 3072)
    late = [wq_one(4, i, None) for i in range(5)] + [wq_one(0, i, "p1") for i in range(5)]
    if not opt.get("nowarm"):
        warm_lane(a, 146, TA, 1280, 640 // NSH // 4, 160, 2)
        warm_lane(a, 147, TA, 3072, max(opt["w0"] // NSH // 4, 1), 384, 3)
        share(a, 32, NSH)
        a(f"s_mul_i32 s33, s32, {opt['w0'] // NSH // 4 * 3072}")
        a(f"s_mul_i32 s32, s32, {640 // NSH // 4 * 1280}")
        a("s_mul_i32 s34, s5, 160"); a("s_add_u32 s32, s32, s34")
        a("s_mul_i32 s34, s5, 384"); a("s_add_u32 s33, s33, s34")
        late = [lambda: a.vmem(f"buffer_load_dword v{DUMMY}, v146, s[12:15], s32 offen", "warm")] + late
        if opt["w0"]: late += [lambda: a.vmem(f"buffer_load_dword v{DUMMY}, v147, s[16:19], s33 offen", "warm"),
                 lambda: a.vmem(f"buffer_load_dword v{DUMMY}, v147, s[20:23], s33 offen", "warm")]
    XA0, XA1, FWQ, NEED, FG, F8 = 152, 153, 154, 9, 144, 145
    a(f"v_and_b32 v{TA}, 7, v{LANE}")
    a(f"v_lshlrev_b32 v{F8}, 2, v{TA}")
    a(f"v_and_b32 v{FAD}, 12, v{F8}")
    a(f"v_add_u32 v{FG}, {L_FLAGG}, v{FAD}")
    a(f"v_lshrrev_b32 v{TB}, 5, v{LANE}")
    a(f"v_bfe_u32 v{WQA}, v{LANE}, 2, 2")
    a(f"v_lshl_add_u32 v{WQA}, v{TB}, 3, v{WQA}")
    a(f"v_mul_u32_u24 v{WQA}, 160, v{WQA}")
    a(f"v_mul_u32_u24 v{XA0}, 528, v{TB}")
    a(f"v_and_b32 v{TB}, 1, v{LANE}")
    a(f"v_lshlrev_b32 v{TB}, 4, v{TB}")
    a(f"v_bfe_u32 v{TA}, v{LANE}, 1, 1")
    a(f"v_lshl_add_u32 v{TB}, v{TA}, 3, v{TB}")
    a(f"v_and_b32 v{TA}, 16, v{LANE}")
    a(f"v_cmp_eq_u32 vcc, 0, v{TA}")
    a(f"v_mov_b32 v{TA}, 32")
    a("s_mul_i32 s30, s3, 40")
    a(f"s_add_u32 s30, s30, {L_R1}")
    a(f"v_cndmask_b32 v{TB}, v{TA}, v{TB}, vcc")
    a(f"v_add3_u32 v{WQA}, v{WQA}, v{TB}, s30")
    a(f"v_and_b32 v{TA}, 31, v{LANE}")
    a(f"v_lshl_add_u32 v{XA0}, v{TA}, 4, v{XA0}")
    a(f"v_add_u32 v{XA0}, {L_XN}, v{XA0}")
    a(f"v_add_u32 v{XA1}, {XNT}, v{XA0}")
    a("s_lshl_b32 s30, s3, 2")
    a(f"v_mov_b32 v{FWQ}, s30")
    WF = lambda k: 176 + 4 * k if k < 20 else 16 + 4 * (k - 20)
    def wq_read(k0, n):
        for k in range(k0, k0 + n):
            for hf in range(2):
                off = SLOT(k//2)*5120+(k%2)*2560+hf*640
                a.lds(f"ds_read_b64_tr_b16 {vr(WF(k)+2*hf,2)}, v{WQA if off < 40960 else 15} offset:{off % 40960}", ("wr", k))
    S_(1)
    def hk(i):
        if i == 0:
            S_(2); a.sprinkle(late, 10)
    ln_stats(a, X, U, 10, SUM, SQ, lambda i: ("x", i), hk)
    a.flush_pend()
    dpp_sum(a, [SUM, SQ], ("quad_perm:[1,0,3,2]", "quad_perm:[2,3,0,1]", "row_half_mirror"))
    ln_finish(a, SUM, SQ)
    a.vmem(f"buffer_load_dword v{TAG}, v{ZERO}, s[88:91], 0 offen sc1", "tag")
    ln_write(a, X, U, SUM, SQ, 11)
    a.wait(vm="p1", lg="all")
    set_flag(a, TA, FWQ, 3)
    S_(3)
    poll_lds(a, TB, FAD, 3, "fl")
    wq_read(0, 10)
    a.wait(lg=("wr", 9))
    set_flag(a, TA, FWQ, 4)
    a(f"v_mov_b32 v14, {L_WQF}")
    a(f"v_add_u32 v15, 40960, v{WQA}")
    QACC = [120, 136]; QF = 96; QD = 3
    a(f"s_setprio {opt['prioA']}")
    srd(a, 16, P_WS, KV_BYTES, WS_KV)
    srd(a, 20, P_WS, O_BYTES, WS_O)
    srd(a, 56, P_WS, FL_BYTES, WS_FL)
    poll_lds(a, TB, F8, 3, "fl")
    S_(4)
    a("s_lshl_b32 s36, s4, 1")
    a("s_mul_i32 s36, s36, 40960")
    a("s_lshr_b32 s37, s24, 3")
    a("s_mul_i32 s37, s37, 10240")
    a("s_add_u32 s36, s36, s37")
    a("s_and_b32 s37, s24, 7")
    a("s_lshl_b32 s38, s37, 10")
    a("s_add_u32 s38, s38, s36")
    a("s_lshr_b32 s39, s37, 1")
    a("s_lshl_b32 s39, s39, 9")
    a("s_and_b32 s37, s37, 1")
    a("s_lshl_b32 s37, s37, 3")
    a("s_add_u32 s39, s39, s37")
    a("s_add_u32 s39, s39, s36")
    a("s_add_u32 s39, s39, 8192")
    a("s_add_u32 s40, s38, 40960")
    a("s_add_u32 s41, s39, 40960")
    def qreads(ks):
        b = QF + (ks % QD) * 8
        a.lds(f"ds_read_b128 {vr(b,4)}, v{XA0} offset:{ks*1056}", ("qa", ks))
        a.lds(f"ds_read_b128 {vr(b+4,4)}, v{XA1} offset:{ks*1056}", ("qa", ks))
    BK2, BV, MX, FG2 = 9, 10, 11, 12
    RA = [13, 14, 15]
    QA = [16 + 4 * i for i in range(8)]; QB = [48 + 2 * i for i in range(8)]
    O = [156 + 12 * i for i in range(8)]
    S = [64, 80]; P = [96, 104]
    K1f = [112, 116, 120]; K2f = [124, 126, 128]; Vf = [[130, 134], [138, 142], [146, 150]]
    BVL = MX
    def kld(buf, so, tag):
        return [lambda: a.vmem(f"buffer_load_dwordx4 {vr(K1f[buf],4)}, v{L16}, s[16:19], {so} offen sc1", tag),
                lambda: a.vmem(f"buffer_load_dwordx2 {vr(K2f[buf],2)}, v{BK2}, s[16:19], {so} offen offset:1024 sc1", tag)]
    def vld(buf, so, tag):
        return [lambda: a.vmem(f"buffer_load_dwordx4 {vr(Vf[buf][0],4)}, v{BVL}, s[16:19], {so} offen offset:1536 sc1", tag),
                lambda: a.vmem(f"buffer_load_dwordx4 {vr(Vf[buf][1],4)}, v{BVL}, s[16:19], {so} offen offset:2304 sc1", tag)]
    def adv():
        return [lambda: (a(f"s_add_u32 s28, s28, {KVSLOT}"), a(f"s_sub_u32 s27, s28, {KV_BYTES}")),
                lambda: (a(f"s_cmp_ge_u32 s28, {KV_BYTES}"), a("s_cselect_b32 s28, s27, s28"))]
    def kv_first():
        for f in kld(0, "s28", ("k", 0)) + vld(0, "s28", ("v", 0)) + adv() + kld(1, "s28", ("k", 1)) + vld(1, "s28", ("v", 1)) + adv(): f()
    NEED = 13
    a("s_bfe_u32 s28, s2, 0x40003")
    a(f"s_mul_i32 s28, s28, {KVSLOT}")
    a("s_mul_i32 s33, s3, 3072")
    a("s_add_u32 s28, s28, s33")
    a("s_lshl_b32 s43, s3, 6")
    a("s_mov_b32 s35, 0")
    a(f"v_lshlrev_b32 v{BK2}, 3, v{LANE}")
    a(f"v_and_b32 v{TA}, 31, v{LANE}")
    a(f"v_min_u32 v{TA}, 21, v{TA}")
    a(f"v_lshlrev_b32 v{TA}, 4, v{TA}")
    a(f"v_lshrrev_b32 v{TB}, 5, v{LANE}")
    a(f"v_mul_u32_u24 v{TB}, 384, v{TB}")
    a(f"v_add_u32 v{MX}, v{TA}, v{TB}")
    a(f"v_lshrrev_b32 v{TA}, 2, v{LANE}")
    a(f"v_lshlrev_b32 v{TA}, 8, v{TA}")
    a(f"v_and_b32 v{TB}, 3, v{LANE}")
    a(f"v_lshl_add_u32 v{NEED}, v{TB}, 4, v{TA}")
    P3 = opt.get('p3r', 18)
    RD = {6 + j: (10 + 2 * j, 2) for j in range(10)}
    RD.update({P3 + j: (30 + 2 * j, 2) for j in range(5)})
    for ks in range(QD - 1): qreads(ks)
    CHK = opt.get("kvchk", ()); CLD = opt.get("kvld", (32,))
    for ks in range(40):
        if ks in QS and QS[ks]: S0_(QS[ks])
        if ks + QD - 1 < 40: qreads(ks + QD - 1)
        if ks == 24:
            a.wait(vm='tag'); tag_check(a, TAG)
        P3R = opt.get('p3r', 18)
        if ks in (5, P3R - 1): a.lds(f"ds_read_b32 v{TB}, v14", "fl")
        if ks == 6: poll_lds(a, TB, 14, 1, "fl", issue=False)
        if ks == P3R: poll_lds(a, TB, 14, 2, "fl", issue=False)
        if ks in RD: wq_read(*RD[ks])
        if ks == opt.get("p3r", 18) + 4: set_flag(a, TA, FWQ, 8)
        if ks == 30: a.lds(f"ds_read_b32 v{TB}, v{FAD}", "fl")
        if ks == 32: poll_lds(a, TB, FAD, 8, "fl", issue=False)
        if ks in CLD:
            a(f"buffer_load_dword v{TAG}, v{NEED}, s[56:59], s43 offen sc1")
        if ks in CHK:
            l = a.newlabel("kvc"); r = a.newlabel("kvr")
            a("s_waitcnt vmcnt(0)")
            a(f"v_cmp_ne_u32 vcc, s62, v{TAG}")
            a("s_cmp_eq_u32 s35, 0")
            a("s_cselect_b64 vcc, vcc, -1")
            a("s_cmp_eq_u64 vcc, 0")
            a(f"s_cbranch_scc0 {r}")
            sv = list(a.vm); kv_first(); a.vm = sv
            a("s_mov_b32 s35, 1")
            a.label(r)
        a.wait(lg=[("qa", ks), ("wr", ks)])
        b = QF + (ks % QD) * 8
        a(f"v_mfma_f32_32x32x16_bf16 {vr(QACC[0],16)}, {vr(WF(ks),4)}, {vr(b,4)}, {vr(QACC[0],16) if ks else 0}")
        if ks >= 20:
            for i in range(5): a(f"v_mov_b32 v{O[0]+5*(ks-20)+i}, 0")
        a(f"v_mfma_f32_32x32x16_bf16 {vr(QACC[1],16)}, {vr(WF(ks),4)}, {vr(b+4,4)}, {vr(QACC[1],16) if ks else 0}")
    S_(5)
    a(f"v_mov_b32 v{FWA}, s30")
    if opt.get("aoff"):
        set_flag(a, TA, FWA, 12); st.flush(a, P_WS, 6, 20); a("s_endpgm")
    a(f"v_lshlrev_b32 v{BK2}, 3, v{LANE}") if False else None
    def owner(i2, sd):
        a(f"s_add_u32 s{sd}, s3, {1+i2}"); a(f"s_and_b32 s{sd}, s{sd}, 3")
    a(f"v_mov_b32 v{BV}, v{NEED}")
    a(f"v_cmp_gt_u32 vcc, 32, v{LANE}")
    a(f"v_mov_b32 v{TA}, 0x{f32hex(QSCALE):08x}")
    a(f"s_mov_b32 s31, 0x{f32hex(QSCALE):08x}")
    a(f"s_mul_i32 s29, s3, {WSLOT}")
    a(f"v_cndmask_b32 v155, 0, v{TA}, vcc")
    a("s_mov_b64 s[60:61], vcc")
    a(f"s_add_u32 s29, s29, {L_R1 + QXO}")
    a(f"v_add_u32 v{FG2}, s29, v{L16}")
    a(f"v_add_u32 v{TB}, s29, v{BK2}")
    for i2 in range(3):
        owner(i2, 32); a(f"s_mul_i32 s32, s32, {WSLOT}"); a(f"s_add_u32 s32, s32, {L_R1 + QXO}")
        a(f"v_add_u32 v{RA[i2]}, s32, v{L16}")
    for t in range(2):
        for i in range(8): a(f"v_mul_f32 v{QACC[t]+i}, s31, v{QACC[t]+i}")
        for i in range(8, 12): a(f"v_mul_f32 v{QACC[t]+i}, v155, v{QACC[t]+i}")
        for i in range(4): a(f"v_cvt_pk_bf16_f32 v{QA[6+t]+i}, v{QACC[t]+2*i}, v{QACC[t]+2*i+1}")
        for i in range(2): a(f"v_cvt_pk_bf16_f32 v{QB[6+t]+i}, v{QACC[t]+8+2*i}, v{QACC[t]+9+2*i}")
        a.lds(f"ds_write_b128 v{FG2}, {vr(QA[6+t],4)} offset:{t*1536}", "qw")
        a.lds(f"ds_write_b64 v{TB}, {vr(QB[6+t],2)} offset:{t*1536+1024}", "qw")
    set_flag(a, TA, FWA, 9)
    a("s_cmp_eq_u32 s35, 1")
    a("s_cbranch_scc1 L_a_kvld")
    a("s_waitcnt vmcnt(0)")
    a(f"v_cmp_ne_u32 vcc, s62, v{TAG}")
    a("s_cmp_eq_u64 vcc, 0")
    a("s_cbranch_scc0 L_a_kvld")
    kv_first()
    a("s_mov_b32 s35, 1")
    a.label("L_a_kvld")
    a.vm = []
    poll_lds(a, TA, FAD, 9, "fl")
    for i2 in range(3):
        for t in range(2):
            a.lds(f"ds_read_b128 {vr(QA[2*i2+t],4)}, v{RA[i2]} offset:{t*1536}", "qr")
        a(f"v_sub_u32 v{TA}, v{RA[i2]}, v{BK2}")
        for t in range(2):
            a.lds(f"ds_read_b64 {vr(QB[2*i2+t],2)}, v{TA} offset:{t*1536+1024}", "qr")
    set_flag(a, TA, FWA, 10)
    a("s_cmp_eq_u32 s35, 1")
    a("s_cbranch_scc1 L_a_kvgo")
    poll_global(a, TAG, 1, BV, 56, "s43", "s62", sleep=4)
    kv_first()
    a.label("L_a_kvgo")
    a.vm = [("k", 0)] * 2 + [("v", 0)] * 2 + [("k", 1)] * 2 + [("v", 1)] * 2
    S_(6)
    srd(a, 92, P_WD, 1536 * 1280); srd(a, 96, P_WO, 640 * 1280)
    warm_lane(a, 154, TA, 1280, 512 // NSH // 4, 320, 3)
    share(a, 32, NSH)
    a("s_and_b32 s37, s5, 3"); a("s_mul_i32 s37, s37, 320")
    a(f"s_mul_i32 s33, s32, {320 // NSH // 4 * 1280}"); a("s_add_u32 s33, s33, s37")
    a(f"s_mul_i32 s35, s32, {512 // NSH // 4 * 1280}"); a("s_add_u32 s35, s35, s37")
    srd(a, 12, P_WS, H_BYTES, WS_H)
    a("s_mul_i32 s25, s4, 196608"); a("s_mul_i32 s26, s5, 12288"); a("s_add_u32 s25, s25, s26")
    a("s_mul_i32 s26, s3, 3072"); a("s_add_u32 s25, s25, s26"); a("s_add_u32 s26, s25, 98304")
    def cold_blk(it, lines):
        def f():
            l = a.newlabel("cw"); r = a.newlabel("cr")
            a(f"s_cmp_eq_u32 s34, {it}"); a(f"s_cbranch_scc1 {l}"); a.label(r)
            a.cold += [f"{l}:"] + ["    " + x for x in lines] + [f"    s_branch {r}"]
        return f
    sr_ = K1f[2]
    SENT = [f"v_mov_b32 v{sr_+i}, -1" for i in range(4)] + [f"buffer_store_dwordx4 {vr(sr_,4)}, v{L16}, s[20:23], s{38+2*t} offen sc1" for t in range(2)] + \
           ["s_mov_b64 exec, s[60:61]"] + [f"buffer_store_dwordx2 {vr(sr_,2)}, v{L16}, s[20:23], s{39+2*t} offen sc1" for t in range(2)] + ["s_mov_b64 exec, -1"]
    if opt.get("hsent"): SENT += [f"buffer_store_dwordx4 {vr(sr_,4)}, v{L16}, s[12:15], s{25+b} offen offset:{t*1024} sc1" for b in range(2) for t in range(3)]
    SFLG = ["s_waitcnt vmcnt(8)", "s_mov_b64 exec, 1", f"v_mov_b32 v{TA}, 12", f"ds_write_b32 v{FWA}, v{TA}", "s_mov_b64 exec, -1"]
    def cold_warm(it, which):
        def f():
            l = a.newlabel("cw"); r = a.newlabel("cr")
            a(f"s_cmp_eq_u32 s34, {it}"); a(f"s_cbranch_scc1 {l}"); a.label(r)
            if which == "d": a.cold += [f"{l}:", "    buffer_load_dword v155, v154, s[92:95], s35 offen", f"    s_add_u32 s35, s35, {512*1280}", f"    s_branch {r}"]
            else: a.cold += [f"{l}:", "    buffer_load_dword v155, v154, s[96:99], s33 offen", f"    s_add_u32 s33, s33, {320*1280}", f"    s_branch {r}"]
        return f
    for i in range(8):
        a(f"v_mov_b32 v{P[1]+i}, 0"); a(f"v_mov_b32 v{Vf[2][0]+i}, 0")
    a(f"s_mov_b32 s42, 0x{f32hex(2.0**100):08x}")
    a(f"v_lshlrev_b32 v{TB}, 2, v{LANE}")
    for i2 in range(3):
        owner(i2, 32); a("s_lshl_b32 s32, s32, 9"); a(f"s_add_u32 s32, s32, {L_MX}")
        a(f"v_add_u32 v{RA[i2]}, s32, v{TB}")
    a("s_lshl_b32 s32, s3, 9"); a(f"s_add_u32 s32, s32, {L_MX}")
    a(f"v_add_u32 v{FG2}, s32, v{TB}")
    def rowmax(t, dst, init):
        s = S[t]
        if init:
            a(f"v_max3_f32 v{dst}, v{s}, v{s+1}, v{s+2}")
            for i in range(3, 15, 2): a(f"v_max3_f32 v{dst}, v{dst}, v{s+i}, v{s+i+1}")
            a(f"v_max_f32 v{dst}, v{dst}, v{s+15}")
        else:
            for i in range(0, 16, 2): a(f"v_max3_f32 v{dst}, v{dst}, v{s+i}, v{s+i+1}")
    def embed(t, m):
        a(f"v_mov_b32 v{TB}, v{m}")
        a("s_nop 1")
        a(f"v_permlane32_swap_b32 v{m}, v{TB}")
        a("s_nop 1")
        a(f"v_max_f32 v{m}, v{m}, v{TB}")
        a(f"v_sub_f32 v{m}, 0, v{m}")
        a(f"v_cvt_pk_bf16_f32 v{TB}, v{m}, v{m}")
        a(f"v_lshlrev_b32 v{TB}, 16, v{TB}")
        a(f"v_sub_f32 v{TB}, v{m}, v{TB}")
        a(f"v_cvt_pk_bf16_f32 v{TB}, v{m}, v{TB}")
        a(f"v_cndmask_b32 v{QB[6+t]}, v{TB}, v{QB[6+t]}, s[60:61]")
    a.wait(vm=("k", 0))
    for t in range(2):
        a(f"v_mfma_f32_32x32x16_bf16 {vr(S[t],16)}, {vr(K1f[0],4)}, {vr(QA[6+t],4)}, 0")
        a(f"v_mfma_f32_32x32x8_bf16 {vr(S[t],16)}, {vr(K2f[0],2)}, {vr(QB[6+t],2)}, {vr(S[t],16)}")
    a("s_nop 7"); a("s_nop 1")
    for t in range(2):
        rowmax(t, TA, True); embed(t, TA)
        a.lds(f"ds_write_b32 v{FG2}, v{QB[6+t]} offset:{t*256}", "mw")
    a.wait(lg="mw")
    set_flag(a, FV, FWA, 11)
    poll_lds(a, FV, FAD, 11, "fl")
    for i2 in range(3):
        for t in range(2):
            a.lds(f"ds_read_b32 v{QB[2*i2+t]}, v{RA[i2]} offset:{t*256}", ("mr", 2 * i2 + t))
    for i2 in range(3):
        owner(i2, 32); a("s_mul_i32 s32, s32, 18432"); a(f"s_add_u32 s32, s32, {L_RED + i2*6144}")
        a(f"v_add_u32 v{RA[i2]}, s32, v{L16}")
    a(f"v_add_u32 v{FG2}, {L_FLAGG}, v{FAD}")
    a("s_mul_i32 s32, s3, 18432")
    a(f"s_add_u32 s32, s32, {L_RED}")
    a(f"v_add_u32 v{BV}, s32, v{L16}")
    a(f"v_mfma_f32_32x32x16_bf16 {vr(S[0],16)}, {vr(K1f[0],4)}, {vr(QA[0],4)}, 0")
    a.wait(lg="all")
    a(f"v_mfma_f32_32x32x8_bf16 {vr(S[0],16)}, {vr(K2f[0],2)}, {vr(QB[0],2)}, {vr(S[0],16)}")
    a("s_mov_b32 s34, 0")
    a("s_nop 7"); a("s_nop 1")
    a.vm = [("v", 0)] * 2 + [("k", 1)] * 2 + [("v", 1)] * 2
    S_(7); S_(10, True)
    pat = opt.get("pat", "MeeeMeeeMeeeM|eeeeeeecccccccc")
    def tile(b, last):
        for j in range(8):
            if opt.get("ts") and not last and (b == 0 or (b == 1 and j == 0)):
                ix = j if b == 0 else 8
                a(f"s_memtime s[{64+2*ix}:{65+2*ix}]")
            fill = []
            if not last:
                b2 = (b + 2) % 3
                if j in (1, 2): fill = [kld(b2, "s28", ("k", b2))[j - 1]]
                if j in (3, 4): fill = [vld(b2, "s28", ("v", b2))[j - 3]]
                if j == 5: fill = adv()
                if j == 6:
                    fill = [] if opt.get("nowarm") else [cold_warm(0, "d")] + ([cold_warm(1, "o")] if b else [])
                    if b == 0: fill += [cold_blk(1, SFLG)]
                if j == 0 and b == 0: fill = [cold_blk(0, SENT)]
            else:
                if j == 0: fill = [lambda: a.lds(f"ds_read_b32 v{FV}, v{FG2}", "fl")]
                if j == 1: fill = [lambda: poll_lds(a, FV, FG2, 4, "fl", issue=False)]
                if 2 <= j <= 7:
                    jj = j - 2
                    fill = [lambda: None] * 3 + [(lambda r=r: a.lds(f"ds_write_b128 v{RA[jj//2]}, {vr(O[jj]+4*r,4)} offset:{(jj%2)*3072+r*1024}", "ow")) for r in range(3)]
            if j == 7 and not last: a.wait(vm=("k", (b + 1) % 3))
            if j == 1: a.wait(vm=("v", b))
            kb = b if j < 7 else (b + 1) % 3
            vb = b if j > 0 else (b - 1) % 3
            aa = j % 2; o = 1 - aa
            s_, p_ = S[aa], P[aa]
            jn, jp = (j + 1) % 8, (j - 1) % 8
            M = [f"v_mfma_f32_32x32x16_bf16 {vr(S[o],16)}, {vr(K1f[kb],4)}, {vr(QA[jn],4)}, 0",
                 f"v_mfma_f32_32x32x8_bf16 {vr(S[o],16)}, {vr(K2f[kb],2)}, {vr(QB[jn],2)}, {vr(S[o],16)}",
                 f"v_mfma_f32_32x32x16_bf16 {vr(O[jp],16)}, {vr(Vf[vb][0],4)}, {vr(P[o],4)}, {vr(O[jp],16)}",
                 f"v_mfma_f32_32x32x16_bf16 {vr(O[jp],16)}, {vr(Vf[vb][1],4)}, {vr(P[o]+4,4)}, {vr(O[jp],16)}"]
            ne = nc = nm = 0
            for ch in (opt['pat2'] if opt.get('pat2') and j % opt.get('p2every', 4) == 0 else pat):
                if ch == "M":
                    if not (last and j == 7 and nm < 2): a(M[nm])
                    nm += 1
                elif ch == "e": a(f"v_exp_f32 v{s_+ne}, v{s_+ne}"); ne += 1
                elif ch == "c": a(f"v_cvt_pk_bf16_f32 v{p_+nc}, v{s_+2*nc}, v{s_+2*nc+1}"); nc += 1
                elif ch == "|": a.sprinkle(fill, opt.get("fevery", 1), "v_")
                elif ch == "<": a("s_setprio 3")
                elif ch == ">": a("s_setprio 0")
            a.flush_pend()
    top_vm = list(a.vm)
    a.raw(".p2align 6")
    a.label("L_a_loop")
    tile(0, False); tile(1, False); tile(2, False)
    if opt.get("its"):
        for it, ix in ((0, 1), (1, 2), (2, 3), (3, 4), (4, 5)):
            l = a.newlabel("it"); a(f"s_cmp_lg_u32 s34, {it}"); a(f"s_cbranch_scc1 {l}"); S0_(ix, True); a(f"s_sub_u32 s{44+ix}, s{44+ix}, s54"); a(f"s_mul_i32 s{44+ix}, s{44+ix}, 100"); a(f"s_add_u32 s{44+ix}, s{44+ix}, s44"); a.label(l)
    a("s_add_u32 s34, s34, 1")
    a("s_cmp_lt_u32 s34, 5")
    a("s_cbranch_scc1 L_a_loop")
    assert a.vm == top_vm, (a.vm, top_vm)
    tile(0, True)
    a("s_nop 0")
    a(f"v_mfma_f32_32x32x16_bf16 {vr(O[7],16)}, {vr(Vf[0][0],4)}, {vr(P[1],4)}, {vr(O[7],16)}")
    a(f"v_mfma_f32_32x32x16_bf16 {vr(O[7],16)}, {vr(Vf[0][1],4)}, {vr(P[1]+4,4)}, {vr(O[7],16)}")
    a.wait(lg="ow")
    set_flag(a, FV, FWA, 13)
    if st:
        S_(8); S_(11, True); a("s_sub_u32 s54, s55, s54"); a("s_mov_b32 s55, 0")
        if opt.get("ts"):
            for i in range(1, 8):
                a(f"s_sub_u32 s{44+i}, s{64+2*i}, s{62+2*i}"); a(f"s_mul_i32 s{44+i}, s{44+i}, 100"); a(f"s_add_u32 s{44+i}, s{44+i}, s44")
    poll_lds(a, FV, FAD, 13, "fl")
    RR = 16
    RR = O[0]
    if opt.get("tst"): S0_(1)
    for src in range(3):
        for t in range(2):
            for r in range(3):
                a.lds(f"ds_read_b128 {vr(RR+24*src+12*t+4*r,4)}, v{BV} offset:{src*6144+t*3072+r*1024}", ("or", src))
    for src in range(3):
        a.wait(lg=("or", src))
        for i in range(0, 24, 2):
            a(f"v_pk_add_f32 {vr(O[6]+i,2)}, {vr(O[6]+i,2)}, {vr(RR+24*src+i,2)}")
    a(f"v_add_f32_e64 v{TA}, |v{O[6]}|, |v{O[6]+1}|")
    for i in range(2, 24): a(f"v_add_f32_e64 v{TA}, v{TA}, |v{O[6]+i}|")
    a(f"v_cmp_ngt_f32 vcc, s42, v{TA}")
    a("s_cmp_eq_u64 vcc, 0")
    a("s_cbranch_scc0 L_a_fallback")
    a.label("L_a_norm")
    if opt.get("tst"): S0_(2)
    a(f"v_mov_b32 v{FG2}, {BIG}")
    a(f"v_cndmask_b32 v{FG2}, v{FG2}, v{L16}, s[60:61]")
    for t in range(2):
        oo = O[6 + t]
        a(f"v_mov_b32 v{TA}, v{oo+8}")
        a(f"v_mov_b32 v{TB}, v{oo+8}")
        a("s_nop 1")
        a(f"v_permlane32_swap_b32 v{TA}, v{TB}")
        a("s_nop 1")
        a(f"v_rcp_f32 v{TB}, v{TB}")
        a("s_nop 0")
        for i in range(12): a(f"v_mul_f32 v{oo+i}, v{oo+i}, v{TB}")
        for i in range(6): a(f"v_cvt_pk_bf16_f32 v{S[t]+i}, v{oo+2*i}, v{oo+2*i+1}")
        a(f"buffer_store_dwordx4 {vr(S[t],4)}, v{L16}, s[20:23], s{38+2*t} offen sc1")
        a(f"buffer_store_dwordx2 {vr(S[t]+4,2)}, v{FG2}, s[20:23], s{39+2*t} offen sc1")
    if opt.get("tst"): S0_(3)
    if st:
        S_(9); st.flush(a, P_WS, 6, 20)
    a("s_endpgm")
    a.label("L_a_fallback")
    a("s_waitcnt vmcnt(0) lgkmcnt(0)")
    M = [RA[0], RA[1]]
    FO = [156, 172]
    for t in range(2):
        a(f"v_mov_b32 v{M[t]}, 0xff800000")
        a(f"v_cndmask_b32 v{QB[6+t]}, v{ZERO}, v{QB[6+t]}, s[60:61]")
    a("s_mov_b32 s43, 0")
    a.label("L_a_fb1")
    for f in kld(0, "s43", None): f()
    a("s_waitcnt vmcnt(0)")
    for t in range(2):
        a(f"v_mfma_f32_32x32x16_bf16 {vr(S[t],16)}, {vr(K1f[0],4)}, {vr(QA[6+t],4)}, 0")
        a(f"v_mfma_f32_32x32x8_bf16 {vr(S[t],16)}, {vr(K2f[0],2)}, {vr(QB[6+t],2)}, {vr(S[t],16)}")
    a("s_nop 7"); a("s_nop 7")
    for t in range(2): rowmax(t, M[t], False)
    a("s_add_u32 s43, s43, 3072")
    a(f"s_cmp_lt_u32 s43, {KV_BYTES}")
    a("s_cbranch_scc1 L_a_fb1")
    NEG = [188, 204]
    for t in range(2):
        a(f"v_mov_b32 v{TB}, v{M[t]}")
        a("s_nop 1")
        a(f"v_permlane32_swap_b32 v{M[t]}, v{TB}")
        a("s_nop 1")
        a(f"v_max_f32 v{M[t]}, v{M[t]}, v{TB}")
        for i in range(16):
            a(f"v_sub_f32 v{NEG[t]+i}, 0, v{M[t]}"); a(f"v_mov_b32 v{FO[t]+i}, 0")
    a("s_mov_b32 s43, 0")
    a.label("L_a_fb2")
    for f in kld(0, "s43", None) + vld(0, "s43", None): f()
    a("s_waitcnt vmcnt(0)")
    for t in range(2):
        a(f"v_mfma_f32_32x32x16_bf16 {vr(S[t],16)}, {vr(K1f[0],4)}, {vr(QA[6+t],4)}, {vr(NEG[t],16)}")
        a(f"v_mfma_f32_32x32x8_bf16 {vr(S[t],16)}, {vr(K2f[0],2)}, {vr(QB[6+t],2)}, {vr(S[t],16)}")
    a("s_nop 7"); a("s_nop 7")
    for t in range(2):
        for r in range(16): a(f"v_exp_f32 v{S[t]+r}, v{S[t]+r}")
        a("s_nop 0")
        for i in range(8): a(f"v_cvt_pk_bf16_f32 v{P[t]+i}, v{S[t]+2*i}, v{S[t]+2*i+1}")
        a("s_nop 1")
        a(f"v_mfma_f32_32x32x16_bf16 {vr(FO[t],16)}, {vr(Vf[0][0],4)}, {vr(P[t],4)}, {vr(FO[t],16)}")
        a(f"v_mfma_f32_32x32x16_bf16 {vr(FO[t],16)}, {vr(Vf[0][1],4)}, {vr(P[t]+4,4)}, {vr(FO[t],16)}")
    a("s_add_u32 s43, s43, 3072")
    a(f"s_cmp_lt_u32 s43, {KV_BYTES}")
    a("s_cbranch_scc1 L_a_fb2")
    a("s_nop 7"); a("s_nop 7")
    for t in range(2):
        for i in range(12): a(f"v_mov_b32 v{O[6+t]+i}, v{FO[t]+i}")
    a("s_branch L_a_norm")

def gen_g(a, S0_, st, opt, NSH):
    E_ = (lambda i: S0_(i)) if opt.get("early") else (lambda i: None)
    S_ = (lambda i, cyc=False: S0_(i, cyc) if (not opt.get("early") or i < 6 or i == 9) else None)
    E_(6)
    TAG = 11
    X = 16; U = 32; SUM, SQ = 12, 14
    a("s_setprio 3")
    a(f"v_lshrrev_b32 v{TA}, 5, v{LANE}")
    a(f"v_mul_u32_u24 v{TA}, 1280, v{TA}")
    a(f"v_and_b32 v{TB}, 31, v{LANE}")
    a(f"v_lshl_add_u32 v56, v{TB}, 4, v{TA}")
    a(f"v_mov_b32 v9, {BIG}")
    a(f"v_cmp_gt_u32 vcc, 16, v{TB}")
    a("s_lshl_b32 s28, s4, 3")
    a("s_add_u32 s28, s28, s5")
    a("v_cndmask_b32 v57, v9, v56, vcc")
    a("s_lshl_b32 s7, s28, 2")
    a("s_add_u32 s7, s7, s3")
    a("s_mul_i32 s7, s7, 2560")
    a("s_mov_b64 s[60:61], vcc")
    a.vmem(f"buffer_load_dwordx4 {vr(X,4)}, v56, s[8:11], s7 offen", ("x", 0))
    a.vmem(f"buffer_load_dwordx4 {vr(X+4,4)}, v56, s[8:11], s7 offen offset:512", ("x", 1))
    a.vmem(f"buffer_load_dwordx4 {vr(X+8,4)}, v57, s[8:11], s7 offen offset:1024", ("x", 2))
    a("s_barrier")
    a("s_cmp_ge_u32 s3, 2")
    a(f"s_cselect_b32 s12, s{P_WV}, s{P_WK}")
    a(f"s_cselect_b32 s13, s{P_WV+1}, s{P_WK+1}")
    a("s_mov_b32 s14, 25600"); a("s_mov_b32 s15, 0x00020000")
    a(f"s_cselect_b32 s24, {L_WV-L_WK}, 0")
    a(f"s_add_u32 s24, s24, {L_WK}")
    a("s_and_b32 s25, s3, 1")
    a("s_lshl_b32 s25, s25, 10")
    a("s_add_u32 s24, s24, s25")
    for j in range(13):
        a(f"s_add_u32 m0, s24, {j*2048}")
        a("s_nop 0")
        a.vmem(f"buffer_load_dwordx4 v{L16}, s[12:15], s25 offen lds", "wkv")
        a("s_add_u32 s25, s25, 2048")
    X2 = 216; U2 = 64
    a(f"v_and_b32 v{TB}, 31, v{LANE}")
    a(f"v_and_b32 v{TA}, 3, v{LANE}")
    a(f"v_lshlrev_b32 v{FAD}, 2, v{TA}")
    a(f"v_add_u32 v{FAD}, {L_FLAGG}, v{FAD}")
    a("s_lshl_b32 s30, s3, 2")
    a(f"s_add_u32 s30, s30, {L_FLAGG}")
    a(f"v_mov_b32 v{FWA}, s30")
    GQ, WA, XA, J, XW = 58, 59, 60, 61, 62
    a(f"v_lshrrev_b32 v{GQ}, 4, v{LANE}")
    a(f"v_bfe_u32 v{WA}, v{LANE}, 2, 2")
    a(f"v_lshl_add_u32 v{WA}, v{GQ}, 3, v{WA}")
    a(f"v_mul_u32_u24 v{WA}, 40, v{WA}")
    a(f"v_lshlrev_b32 v{TA}, 3, v{TA}")
    a("s_cmp_ge_u32 s3, 2")
    a("s_cselect_b32 s24, 0, -1")
    a("s_cselect_b32 s25, 32, 0")
    a("s_bitcmp1_b32 s3, 0")
    a(f"s_cselect_b32 s26, {L_WV-L_WK}, 0")
    a(f"s_add_u32 s26, s26, {L_WK}")
    a("s_add_u32 s25, s25, s26")
    a(f"v_and_b32 v{TA}, s24, v{TA}")
    a(f"v_add3_u32 v{WA}, v{WA}, v{TA}, s25")
    a("s_lshr_b32 s26, s5, 2")
    a(f"s_mul_i32 s26, s26, {XNT}")
    a("s_and_b32 s27, s5, 3")
    a("s_lshl_b32 s27, s27, 7")
    a("s_add_u32 s26, s26, s27")
    a(f"s_add_u32 s26, s26, {L_XN}")
    a(f"v_and_b32 v{TA}, 7, v{LANE}")
    a(f"v_mul_u32_u24 v{XA}, 528, v{GQ}")
    a(f"v_lshl_add_u32 v{XA}, v{TA}, 4, v{XA}")
    a(f"v_add_u32 v{XA}, s26, v{XA}")
    a("s_lshl_b32 s27, s3, 5")
    a("s_add_u32 s27, s27, s26")
    a(f"v_mul_u32_u24 v{XW}, 528, v{TB}")
    a(f"v_lshrrev_b32 v{TA}, 5, v{LANE}")
    a(f"v_lshl_add_u32 v{XW}, v{TA}, 4, v{XW}")
    a(f"v_add_u32 v{XW}, s27, v{XW}")
    srd(a, 24, P_WS, KV_BYTES, WS_KV)
    srd(a, 56, P_WS, FL_BYTES, WS_FL)
    srd(a, 16, P_WG, 640 * 3072)
    srd(a, 20, P_WU, 640 * 3072)
    a("s_lshr_b32 s29, s28, 2")
    a("s_mul_i32 s29, s29, 3072")
    a("s_bfe_u32 s30, s28, 0x10001")
    a("s_and_b32 s31, s28, 1")
    a(f"v_and_b32 v{J}, 15, v{LANE}")
    a("s_bitcmp1_b32 s3, 0")
    a("s_cbranch_scc1 L_g_va")
    a("s_lshl_b32 s32, s30, 4"); a("s_lshl_b32 s33, s31, 2"); a("s_add_u32 s32, s32, s33")
    a(f"v_lshrrev_b32 v30, 2, v{J}")
    a("v_lshlrev_b32 v30, 3, v30")
    a(f"v_and_b32 v28, 3, v{J}")
    a("v_add3_u32 v30, v30, v28, s32")
    a(f"v_lshrrev_b32 v28, 1, v{GQ}")
    a("v_lshlrev_b32 v28, 9, v28")
    a("v_lshl_add_u32 v28, v30, 4, v28")
    a(f"v_and_b32 v31, 1, v{GQ}")
    a("v_lshl_add_u32 v28, v31, 3, v28")
    a("v_lshlrev_b32 v31, 3, v30")
    a(f"v_lshl_add_u32 v31, v{GQ}, 8, v31")
    a("v_add_u32 v31, 1024, v31")
    a(f"v_cmp_gt_u32 vcc, 2, v{GQ}")
    a("v_mov_b32 v29, 0x3f803f80")
    a("v_mov_b32 v57, 0")
    a("v_cndmask_b32 v31, v9, v31, vcc")
    a(f"v_cmp_eq_u32 s[40:41], 1, v{GQ}")
    a("s_cmp_ge_u32 s3, 2")
    a("s_cselect_b64 vcc, -1, 0")
    a("s_cselect_b64 s[40:41], s[40:41], 0")
    a("v_cndmask_b32 v28, v28, v31, vcc")
    a(f"v_cmp_gt_u32 vcc, 8, v{J}")
    a("s_nop 1")
    a("v_cndmask_b32 v28, v9, v28, vcc")
    a("s_branch L_g_vb")
    a.label("L_g_va")
    a("s_mul_i32 s32, s30, 768"); a("s_mul_i32 s33, s31, 384"); a("s_add_u32 s32, s32, s33"); a("s_add_u32 s32, s32, 1536")
    a(f"v_and_b32 v30, 3, v{J}")
    a(f"v_bfe_u32 v28, v{J}, 2, 1")
    a("v_lshl_add_u32 v30, v28, 3, v30")
    a(f"v_bfe_u32 v28, v{J}, 3, 1")
    a("v_lshl_add_u32 v30, v28, 2, v30")
    a(f"v_add_u32 v28, 16, v{J}")
    a("s_cmp_ge_u32 s3, 2")
    a("s_cselect_b64 vcc, -1, 0")
    a("s_cselect_b32 s33, 6, 16")
    a("s_cselect_b32 s34, 4, 99")
    a("s_cselect_b32 s35, 5, 99")
    a("v_cndmask_b32 v30, v30, v28, vcc")
    a("v_lshlrev_b32 v30, 4, v30")
    a(f"v_lshl_add_u32 v30, v{GQ}, 3, v30")
    a("v_add_u32 v30, s32, v30")
    a(f"v_cmp_gt_u32 vcc, s33, v{J}")
    a("v_mov_b32 v29, 0x3f803f80")
    a("s_nop 0")
    a("v_cndmask_b32 v30, v9, v30, vcc")
    a(f"v_cmp_gt_u32 vcc, 2, v{GQ}")
    a("s_nop 1")
    a("v_cndmask_b32 v28, v9, v30, vcc")
    a(f"v_cmp_eq_u32 s[40:41], s35, v{J}")
    a(f"v_cmp_eq_u32 vcc, s34, v{J}")
    a("s_nop 1")
    a(f"v_cndmask_b32 v29, v29, v{ZERO}, s[40:41]")
    a("s_or_b64 s[40:41], vcc, s[40:41]")
    a("v_mov_b32 v57, v29")
    a.label("L_g_vb")
    a("s_min_u32 s42, s3, 2")
    a("s_add_u32 s42, s42, 4")
    ln_group(a, 42, 43, 42, 56, 63)
    wq_offsets(a, 144)
    srd(a, 92, P_WQ, 640 * 1280)
    a("s_mul_i32 s42, s5, 160")
    S_(1)
    def hook(i):
        if i == 0:
            S_(2)
            a.vmem(f"buffer_load_dword v{TAG}, v{ZERO}, s[88:91], 0 offen sc1", "tag")
    ln_stats(a, X, U, 3, SUM, SQ, lambda i: ("x", i), hook)
    dpp_sum(a, [SUM, SQ], ("quad_perm:[1,0,3,2]", "quad_perm:[2,3,0,1]", "row_half_mirror", "row_mirror"))
    a(f"v_mov_b32 v{SUM+1}, v{SUM}"); a(f"v_mov_b32 v{SQ+1}, v{SQ}")
    a("s_nop 1")
    a(f"v_permlane16_swap_b32 v{SUM}, v{SUM+1}")
    a(f"v_permlane16_swap_b32 v{SQ}, v{SQ+1}")
    a("s_nop 1")
    a(f"v_add_f32 v{SUM}, v{SUM}, v{SUM+1}")
    a(f"v_add_f32 v{SQ}, v{SQ}, v{SQ+1}")
    ln_finish(a, SUM, SQ)
    for i in range(3):
        for d in range(4):
            pp = vr(U + 8 * i + 2 * d, 2)
            a(f"v_pk_fma_f32 {pp}, {pp}, {vr(SQ,2)}, {vr(SUM,2)}")
        for d in range(4):
            a(f"v_cvt_pk_bf16_f32 v{X+4*i+d}, v{U+8*i+2*d}, v{U+8*i+2*d+1}")
        if i == 2: a("s_mov_b64 exec, s[60:61]")
        a.lds(f"ds_write_b128 v{XW}, {vr(X+4*i,4)} offset:{i*16896}", "xw")
        if i == 2: a("s_mov_b64 exec, -1")
    for i in range(10):
        a.vmem(f"buffer_load_dwordx4 {vr(X2+4*i,4)}, v56, s[8:11], s43 offen offset:{128*i}", ("x2", i))
    a.wait(vm="wkv")
    set_flag(a, FV, FWA, 1)
    poll_lds(a, FV, FAD, 1, "fl")
    S_(3)
    KA = 16
    def rd(s):
        b = 64 + (s % 10) * 8
        a.lds(f"ds_read_b64_tr_b16 v[{b}:{b+1}], v{WA} offset:{s*1280}", ("g", s))
        a.lds(f"ds_read_b64_tr_b16 v[{b+2}:{b+3}], v{WA} offset:{s*1280+160}", ("g", s))
        a.lds(f"ds_read_b128 v[{b+4}:{b+7}], v{XA} offset:{s*2112}", ("g", s))
    a("s_bitcmp1_b32 s3, 0")
    a("s_cbranch_scc1 L_g_v")
    sv = (list(a.vm), list(a.lg))
    for role in ("k", "v"):
        if role == "v":
            a.label("L_g_v"); a.vm, a.lg = list(sv[0]), list(sv[1])
        for s_ in range(5): rd(s_)
        for s_ in range(20):
            a.wait(lg=("g", s_))
            if s_ + 5 < 20: rd(s_ + 5)
            b = 64 + (s_ % 10) * 8
            cin = vr(KA, 4) if s_ else "0"
            if role == "k": a(f"v_mfma_f32_16x16x32_bf16 {vr(KA,4)}, v[{b}:{b+3}], v[{b+4}:{b+7}], {cin}")
            else: a(f"v_mfma_f32_16x16x32_bf16 {vr(KA,4)}, v[{b+4}:{b+7}], v[{b}:{b+3}], {cin}")
        if role == "k": a("s_branch L_g_kvst")
    a.label("L_g_kvst")
    set_flag(a, FV, FWA, 2)
    a("s_nop 3")
    a(f"v_cvt_pk_bf16_f32 v24, v{KA}, v{KA+1}")
    a(f"v_cvt_pk_bf16_f32 v25, v{KA+2}, v{KA+3}")
    a("v_cndmask_b32 v24, v24, v29, s[40:41]")
    a("v_cndmask_b32 v25, v25, v57, s[40:41]")
    a.vmem("buffer_store_dwordx2 v[24:25], v28, s[24:27], s29 offen sc1", "kvst")
    S_(4)
    def g3_wq(g0, n):
        for g in range(g0, g0 + n):
            a(f"s_add_u32 m0, 0, {L_R1 + SLOT(g)*5120}")
            a(f"s_add_u32 s43, s42, {g*40960}")
            for i in range(4):
                a(f"buffer_load_dwordx4 v{144+i}, s[92:95], s43 offen offset:{i*1024} lds")
            a(f"s_add_u32 m0, 0, {L_R1 + SLOT(g)*5120+4096}")
            a("s_nop 0")
            a(f"buffer_load_dwordx4 v148, s[92:95], s43 offen lds")
    a("s_cmp_eq_u32 s3, 3")
    a("s_cbranch_scc1 L_g_noln")
    ln_stats(a, X2, U2, 10, SUM, SQ, lambda i: ("x2", i))
    dpp_sum(a, [SUM, SQ], ("quad_perm:[1,0,3,2]", "quad_perm:[2,3,0,1]", "row_half_mirror"))
    ln_finish(a, SUM, SQ)
    ln_write(a, X2, U2, SUM, SQ, 63)
    set_flag(a, FV, FWA, 3)
    a("s_waitcnt vmcnt(0)")
    a("s_branch L_g_ln1")
    a.label("L_g_noln")
    a.lg = []
    set_flag(a, FV, FWA, 3)
    poll_lds(a, FV, FAD, 2, "fl")
    g3_wq(5, 10)
    a("s_waitcnt vmcnt(50)")
    a.label("L_g_ln1")
    a.vm = []
    tag_check(a, TAG)
    a(f"v_mov_b32 v{TA}, s62")
    a("s_lshl_b32 s36, s28, 4")
    a("s_mov_b64 exec, 1")
    a(f"v_mov_b32 v{FV}, 1")
    a(f"ds_add_rtn_u32 v{FV}, v{ZERO}, v{FV} offset:{L_CNTKV}")
    a("s_waitcnt lgkmcnt(0)"); a.lg = []
    a(f"v_cmp_eq_u32 vcc, 3, v{FV}")
    a("s_and_b64 exec, exec, vcc")
    a("s_cbranch_execz L_g_nokvflag")
    a(f"buffer_store_dword v{TA}, v{ZERO}, s[56:59], s36 offen sc1")
    a.label("L_g_nokvflag")
    a("s_mov_b64 exec, -1")
    S_(5)
    a("s_cmp_lg_u32 s3, 3")
    a("s_cbranch_scc1 L_g_ln2")
    a(f"v_subrev_u32 v{TB}, {L_FLAGG}, v{FAD}")
    a("s_waitcnt vmcnt(0)")
    set_flag(a, FV, ZERO, 1, off=L_WQF)
    poll_lds(a, FV, TB, 4, "fl")
    g3_wq(15, 5)
    a("s_waitcnt vmcnt(0)")
    set_flag(a, FV, ZERO, 2, off=L_WQF)
    a.label("L_g_ln2")
    WO = [12, 13, 14]; WT, XA0, XA1 = 15, 9, 242
    for i in range(3):
        a(f"v_add_u32 v{WO[i]}, {64*i}, v{LANE}")
        a(f"v_mul_u32_u24 v{TA}, 171, v{WO[i]}")
        a(f"v_lshrrev_b32 v{TA}, 10, v{TA}")
        a(f"v_mul_u32_u24 v{TB}, 6, v{TA}")
        a(f"v_sub_u32 v{TB}, v{WO[i]}, v{TB}")
        a(f"v_mul_u32_u24 v{TA}, 3072, v{TA}")
        a(f"v_lshl_add_u32 v{WO[i]}, v{TB}, 4, v{TA}")
        if i: a(f"v_subrev_u32 v{WO[i]}, {1024*i}, v{WO[i]}")
    a("s_mul_i32 s32, s5, 384")
    a("s_mul_i32 s33, s3, 96")
    a("s_add_u32 s32, s32, s33")
    a(f"s_mul_i32 s33, s3, {WSLOT}")
    a(f"s_add_u32 s33, s33, {L_R1}")
    a("s_waitcnt lgkmcnt(0)"); a.lg = []
    wcount = {}
    def w_parts(u):
        sl = WSO[WMAP(u)]
        def mk(m, i):
            def f():
                if i == 0:
                    a(f"s_add_u32 m0, s33, {sl + m*3200}"); a("s_nop 0")
                a.vmem(f"buffer_load_dwordx4 v{WO[i]}, s[{16+4*m}:{19+4*m}], s32 offen offset:{i*1024} lds", ("w", u))
                if m == 1 and i == 2: a("s_add_u32 s32, s32, 98304")
                wcount[u] = wcount.get(u, 0) + 1
            return f
        return [mk(m, i) for m in range(2) for i in range(3)]
    def gwarm():
        warm(a, [16, 20], 3072, 640 // NSH // 4, 384, ("s5", 384), NSH, TA, 60, 61, 3)
    if opt.get("wwarm") == "b": gwarm()
    if opt.get("wwarm") == "c":
        a(f"v_mov_b32 v{TB}, {L_WQF}")
        poll_lds(a, FV, TB, 2, "fl")
        gwarm()
    AFL = 11
    a(f"v_subrev_u32 v{AFL}, {L_FLAGG}, v{FAD}")
    a(f"v_lshrrev_b32 v{TB}, 5, v{LANE}")
    a(f"v_bfe_u32 v{WT}, v{LANE}, 2, 2")
    a(f"v_lshl_add_u32 v{WT}, v{TB}, 3, v{WT}")
    a(f"v_mul_u32_u24 v{229}, 320, v{WT}")
    a(f"v_mul_u32_u24 v{WT}, 96, v{WT}")
    a(f"v_mul_u32_u24 v{XA0}, 528, v{TB}")
    a(f"v_mul_u32_u24 v{230}, 40, v{TB}")
    a(f"v_and_b32 v{TB}, 1, v{LANE}")
    a(f"v_lshl_add_u32 v{WT}, v{TB}, 4, v{WT}")
    a(f"v_bfe_u32 v{TB}, v{LANE}, 1, 1")
    a(f"v_lshl_add_u32 v{WT}, v{TB}, 3, v{WT}")
    a(f"v_bfe_u32 v{TB}, v{LANE}, 4, 1")
    a(f"v_mul_u32_u24 v{TA}, 3200, v{TB}")
    a(f"v_add3_u32 v{WT}, v{WT}, v{TA}, s33")
    DO = 232; DO2 = 237; XR = 242; DT, PA, OA, DT2 = 252, 253, 254, 255
    a(f"v_and_b32 v{TA}, 3, v{LANE}")
    a(f"v_lshl_add_u32 v{TA}, v{TB}, 2, v{TA}")
    a("s_lshl_b32 s29, s3, 1")
    a(f"v_add_u32 v{TA}, s29, v{TA}")
    a(f"v_and_b32 v{TA}, 7, v{TA}")
    a(f"v_mul_u32_u24 v{TA}, 40, v{TA}")
    a("s_mov_b32 s29, s33")
    a(f"v_add3_u32 v{DT}, v229, v{TA}, s29")
    a(f"v_and_b32 v{TA}, 7, v{LANE}")
    a(f"v_lshlrev_b32 v{PA}, 4, v{TA}")
    a(f"v_and_b32 v{TA}, 31, v{LANE}")
    a(f"v_lshl_add_u32 v{XA0}, v{TA}, 4, v{XA0}")
    a(f"v_add_u32 v{XA0}, {L_XN}, v{XA0}")
    a(f"v_add_u32 v{XA1}, {XNT}, v{XA0}")
    a(f"v_mul_u32_u24 v{TA}, 1280, v{TA}")
    a(f"v_add_u32 v{OA}, v230, v{TA}")
    for i in range(5):
        a(f"v_add_u32 v{TA}, {64*i}, v{LANE}")
        a(f"v_mul_u32_u24 v{TB}, 205, v{TA}")
        a(f"v_lshrrev_b32 v{TB}, 12, v{TB}")
        a(f"v_mul_u32_u24 v{DO+i}, 20, v{TB}")
        a(f"v_sub_u32 v{TA}, v{TA}, v{DO+i}")
        a(f"v_lshlrev_b32 v{TA}, 4, v{TA}")
        if 0 < i < 4: a(f"v_subrev_u32 v{TA}, {1024*i}, v{TA}")
        a(f"v_mul_u32_u24 v{DO+i}, 1280, v{TB}")
        a(f"v_add_u32 v{DO+i}, v{DO+i}, v{TA}")
        a(f"v_lshrrev_b32 v{TB}, 2, v{TB}")
        a(f"v_add_u32 v{TB}, 1, v{TB}")
        a(f"v_mul_u32_u24 v{TB}, 20480, v{TB}")
        a(f"v_add_u32 v{DO2+i}, v{DO+i}, v{TB}")
    srd(a, 24, P_WS, H_BYTES, WS_H)
    srd(a, 12, P_WS, O_BYTES, WS_O)
    srd(a, 92, P_WD, 1536 * 1280)
    srd(a, 96, P_WO, 640 * 1280)
    a("s_mul_i32 s26, s5, 12288") if False else None
    a("s_lshl_b32 s36, s4, 1")
    a("s_mul_i32 s36, s36, 98304")
    a("s_mul_i32 s37, s5, 12288")
    a("s_mul_i32 s7, s3, 3072")
    a("s_add_u32 s7, s7, s37")
    a("s_add_u32 s36, s36, s7")
    a("s_add_u32 s37, s36, 98304")
    a("s_and_b32 s38, s5, 3")
    a(f"v_and_b32 v{TA}, 7, v{LANE}")
    a(f"v_lshlrev_b32 v{TA}, 2, v{TA}")
    poll_lds(a, FV, TA, 3, "fl")
    poll_lds(a, FV, AFL, opt.get("wstart", 8), "fl")
    a(f"s_setprio {opt['prioG']}")
    S_(6)
    a.raw("; @@G_MAIN_BEGIN")
    ACC = [[16 + 16 * (3 * b + t) for t in range(3)] for b in range(2)]
    FR = 112
    def f1parts(k):
        b = FR + (k % 2) * 20
        off = WSO[WMAP(k // 2)] + (k % 2) * 1536
        def B(i): return lambda: a.lds(f"ds_read_b128 {vr(b+4*i,4)}, v{XA1 if i else XA0} offset:{k*1056}", ("fb", k, i))
        def A_(t, hf):
            def f():
                if t == 0 and hf == 0:
                    while wcount.get(k // 2, 0) < 6: pend.pop(0)()
                    a.wait(vm=("w", k // 2))
                a.lds(f"ds_read_b64_tr_b16 {vr(b+8+4*t+2*hf,2)}, v{WT} offset:{off+t*32+hf*384}", ("fa", k, t))
            return f
        return [B(0), A_(0, 0), A_(0, 1), A_(1, 0), A_(1, 1), A_(2, 0), A_(2, 1), B(1)]
    a("s_mul_i32 s38, s38, 320")
    a("s_mul_i32 s39, s7, 20")
    a("s_add_u32 s39, s39, s38")
    a("s_mul_i32 s40, s3, 204800")
    a("s_add_u32 s40, s40, s38")
    a("s_mov_b32 s41, s40")
    def adv_d(so, k):
        if k % 3 == 2:
            a(f"s_add_u32 {so}, {so}, 204800"); a(f"s_sub_u32 s60, {so}, 1966080"); a(f"s_cmp_ge_u32 {so}, 1966080"); a(f"s_cselect_b32 {so}, s60, {so}")
        else: a(f"s_add_u32 {so}, {so}, 20480")
    def d_parts(k):
        sl = DS(k)
        if k < 24: sd, so, vo = "s[92:95]", "s39", DO
        elif k < 32: sd, so, vo = "s[96:99]", "s40", DO
        else: sd, so, vo = "s[96:99]", "s41", DO2
        def mk(i):
            def f():
                if i in (0, 4):
                    a(f"s_add_u32 m0, s29, {sl + (4096 if i == 4 else 0)}"); a("s_nop 0")
                a.vmem(f"buffer_load_dwordx4 v{vo+i}, {sd}, {so} offen" + (f" offset:{i*1024}" if i < 4 else "") + " lds", ("d", k))
                if i == 4:
                    if k < 24 and k % 3 == 2:
                        a("s_add_u32 s39, s39, 204800")
                        a("s_sub_u32 s60, s39, 1966080")
                        a("s_cmp_ge_u32 s39, 1966080")
                        a("s_cselect_b32 s39, s60, s39")
                    else:
                        a(f"s_add_u32 {so}, {so}, {20480 if k < 24 else (25600 if k < 32 else 102400)}")
            return f
        return [mk(i) for i in range(5)]
    def d_dma(k):
        for f in d_parts(k): f()
    a("s_lshl_b32 s30, s4, 9")
    a("s_lshl_b32 s31, s3, 7")
    a("s_add_u32 s30, s30, s31")
    a("s_lshl_b32 s42, s5, 4")
    a("s_add_u32 s42, s42, s30")
    a(f"s_add_u32 s42, s42, {FL_H}")
    a(f"s_add_u32 s30, s30, {FL_H}")
    SFR = 152
    def hflag(w):
        if w: a.wait(vm="hst")
        a("s_mov_b64 exec, 1")
        a.vmem(f"buffer_store_dword v153, v{ZERO}, s[56:59], s42 offen sc1", "hfl")
        a("s_mov_b64 exec, -1")
    PF = 152; NPF = opt.get("npf", 4)
    def pf_parts(k):
        def mk(i):
            def f():
                a.vmem(f"buffer_load_dwordx4 {vr(PF+20*(k-3)+4*i,4)}, v{DO+i}, s[92:95], s34 offen" + (f" offset:{i*1024}" if i < 4 else ""), ("pf", k))
                if i == 4: adv_d("s34", k)
            return f
        return [mk(i) for i in range(5)]
    def pf_write(k):
        def mk(i):
            def f():
                if i == 0: a.wait(vm=("pf", k))
                a.lds(f"ds_write_b128 v{DT2}, {vr(PF+20*(k-3)+4*i,4)} offset:{DS(k)+i*1024}", ("pw", k))
                if i == 4 and k == 2 + NPF: a("s_mov_b32 s39, s34")
            return f
        a.done.add(("d", k))
        return [mk(i) for i in range(5)]
    a(f"v_add_u32 v{DT2}, s29, v{L16}")
    a("s_add_u32 s34, s39, 40960"); adv_d("s34", 2)
    PFL = [f for k in range(3, 3 + NPF) for f in pf_parts(k)]
    pend = []
    for f in w_parts(0): f()
    if opt.get("wstart", 8) >= 6:
        for f in w_parts(1): f()
    else: pend += [lambda: poll_lds(a, FV, AFL, 6, "fl")] + w_parts(1)
    for f in f1parts(0): f()
    for k in range(40):
        b = FR + (k % 2) * 20
        rd_ = f1parts(k + 1) if k + 1 < 40 else []
        if k == 1: pend += [lambda: poll_lds(a, FV, AFL, 10, "fl")] + w_parts(2)
        if k % 2 == 0 and k >= 2 and k // 2 + 2 < 20: pend += w_parts(k // 2 + 2)
        if k % 2 == 1 and k >= opt.get("pfk", 25) and PFL: pend += PFL[:3]; PFL = PFL[3:]
        if k == 36: pend += d_parts(0)
        if k == 38: pend += d_parts(1)
        if opt.get("hsent"):
            if k == 24: pend += [lambda: poll_lds(a, FV, AFL, 12, "fl"), lambda: hflag(False)]
            if k == 34: pend += [lambda: a.vmem(f"buffer_load_dword v{SFR}, v{PA}, s[56:59], s30 offen sc1", "sfr")]
        elif k == 37: pend += [lambda: poll_lds(a, FV, AFL, 12, "fl")]
        if opt.get("f1st") and k in (1, 10, 20, 30): S0_({1: 1, 10: 2, 20: 3, 30: 4}[k])
        cut = [0, 2, 4, 5, 6, 7, 8]
        i = 0
        for bb in range(2):
            for t in range(3):
                a.wait(lg=[("fb", k, bb), ("fa", k, t)])
                a(f"v_mfma_f32_32x32x16_bf16 {vr(ACC[bb][t],16)}, {vr(b+8+4*t,4)}, {vr(b+4*bb,4)}, {vr(ACC[bb][t],16) if k else 0}")
                for f in rd_[cut[i]:cut[i+1]]: f()
                if (i >= 2 or len(pend) > 6) and pend: pend.pop(0)()
                i += 1
    while pend: pend.pop(0)()
    assert not PFL
    d_dma(2)
    set_flag(a, FV, FWA, 4)
    S_(7)
    a("s_cmp_ge_u32 s5, 4")
    a("s_cselect_b64 vcc, -1, 0")
    DA = [16 + 16 * t for t in range(5)]; BF = 136
    if opt.get('gp', 2) >= 1: a('s_setprio 3')
    for b in range(2):
        for t in range(3):
            c = ACC[b][t]
            for r in range(0, 8, 2): a(f"v_pk_mul_f32 {vr(c+r,2)}, {vr(c+r,2)}, {vr(c+8+r,2)}")
            for i in range(4): a(f"v_cvt_pk_bf16_f32 v{c+8+i}, v{c+2*i}, v{c+2*i+1}")
            if opt.get('gp') != 3: a.vmem(f"buffer_store_dwordx4 {vr(c+8,4)}, v{L16}, s[24:27], s{36+b} offen offset:{t*1024} sc1", "hst")
    for t in range(3):
        for i in range(4):
            a(f"v_cndmask_b32 v{BF+4*t+i}, v{ACC[0][t]+8+i}, v{ACC[1][t]+8+i}, vcc")
        a.done.add(("b", t))
    a(f"v_mov_b32 v{TB}, s62")
    if opt.get('gp') == 3:
        a('s_setprio 0')
        for b in range(2):
            for t in range(3):
                a.vmem(f"buffer_store_dwordx4 {vr(ACC[b][t]+8,4)}, v{L16}, s[24:27], s{36+b} offen offset:{t*1024} sc1", "hst")
    a("s_lshl_b32 s36, s4, 1")
    a("s_lshr_b32 s37, s5, 2")
    a("s_add_u32 s36, s36, s37")
    a("s_mul_i32 s43, s36, 40960")
    a("s_add_u32 s43, s43, s38")
    a("s_mul_i32 s37, s3, 80")
    a("s_add_u32 s43, s43, s37")
    a("s_mul_i32 s37, s36, 98304")
    a("s_mul_i32 s36, s36, 40960")
    a("s_mul_i32 s61, s3, 10240")
    a("s_add_u32 s36, s36, s61")
    HS = [64, 65, 66, 67, 68, 69, 70]
    for j in range(1, 8):
        a("s_add_u32 s7, s7, 12288")
        a("s_sub_u32 s61, s7, 98304")
        a("s_cmp_ge_u32 s7, 98304")
        a("s_cselect_b32 s7, s61, s7")
        a(f"s_add_u32 s{HS[j-1]}, s7, s37")
    def h_ld(k): return f"buffer_load_dwordx4 {vr(BF+4*k,4)}, v{L16}, s[24:27], s{HS[k//3-1]} offen offset:{(k%3)*1024} sc1"
    if opt.get("hsent"):
        a.wait(vm="sfr")
        a(f"v_cmp_ne_u32 vcc, s62, v{SFR}")
        a("s_cmp_eq_u64 vcc, 0")
        a("s_cbranch_scc1 L_g_sok")
        sv = list(a.vm); poll_global(a, FV, 1, PA, 56, "s30", "s62"); a.vm = sv
        a.label("L_g_sok")
    if opt.get('gp', 2) == 1: a(f"s_setprio {opt['prioG']}")
    hl = [lambda: a.vmem(f"buffer_load_dwordx4 {vr(XR,4)}, v{OA}, s[8:11], s43 offen", "xr"),
           lambda: a.vmem(f"buffer_load_dwordx4 {vr(XR+4,4)}, v{OA}, s[8:11], s43 offen offset:16", "xr"),
           lambda: a.vmem(f"buffer_load_dwordx2 {vr(XR+8,2)}, v{OA}, s[8:11], s43 offen offset:32", "xr")]
    def valid(regs, reload, nleft, sleep):
        chk = a.newlabel("ck"); rt = a.newlabel("rt"); go = a.newlabel("go")
        a("s_mov_b32 s63, 8192")
        a.label(chk)
        a(f"v_max3_u32 v{TA}, v{regs[0]}, v{regs[1]}, v{regs[2]}")
        r = regs[3:]
        while len(r) >= 2: a(f"v_max3_u32 v{TA}, v{TA}, v{r[0]}, v{r[1]}"); r = r[2:]
        if r: a(f"v_max_u32 v{TA}, v{TA}, v{r[0]}")
        a(f"v_cmp_eq_u32 vcc, -1, v{TA}")
        a("s_cmp_eq_u64 vcc, 0")
        a(f"s_cbranch_scc0 {rt}")
        a.label(go)
        a.cold += [f"{rt}:", "    s_sub_u32 s63, s63, 1", f"    s_cbranch_scc1 {go}", f"    s_sleep {sleep}"] + ["    " + l for l in reload] + [f"    s_waitcnt vmcnt({nleft})", f"    s_branch {chk}"]
    FS = lambda k: (96 + (k % 2) * 20) if k < 24 else [96, 116, 176, 196][k % 4]
    pend_dma = []
    def dparts(k):
        b = FS(k)
        def R(t, hf):
            def f():
                if t == 0 and hf == 0: a.wait(vm=("d", k))
                a.lds(f"ds_read_b64_tr_b16 {vr(b+4*t+2*hf,2)}, v{DT} offset:{DS(k)+t*8+hf*1280}", ("dr", k, t))
            return f
        return [R(t, hf) for t in range(5) for hf in range(2)]
    def dreads(k):
        for f in dparts(k): f()
    def mf(k, t):
        a.wait(vm=("b", k), lg=("dr", k, t))
        a(f"v_mfma_f32_32x32x16_bf16 {vr(DA[t],16)}, {vr(FS(k)+4*t,4)}, {vr(BF+4*(k%24),4)}, {vr(DA[t],16) if k else 0}")
    dreads(0)
    a(f"s_setprio {opt['prioG']}")
    for k in range(24):
        if opt.get("hsent"):
            if k == 1: hl = [(lambda j=j: a.vmem(h_ld(j), ("b", j))) for j in range(3, 24)] + hl
            if k >= 3 and k % 3 == 0:
                if k == 3 and opt.get("hst"): S_(10)
                a.wait(vm=("b", k + 2))
                a("s_setprio 3")
                valid(list(range(BF + 4 * k, BF + 4 * k + 12)), [h_ld(j) for j in range(k, min(k + 9, 24))], min(k + 9, 24) - k - 3, 6)
                a(f"s_setprio {opt['prioG']}")
                if k == 3 and opt.get("hst"): S_(11)
        elif k == 3:
            if opt.get("hst"): S_(10)
            poll_global(a, FV, 1, PA, 56, "s30", "s62")
            if opt.get("hst"): S_(11)
            if NPF: a.wait(lg=("pw", 5))
            for j in range(3, 9): a.vmem(h_ld(j), ("b", j))
            hl += [(lambda j=j: a.vmem(h_ld(j), ("b", j))) for j in range(9, 24)]
        rd_ = dparts(k + 1)
        dm_ = pf_write(k + DN) if k < NPF else d_parts(k + DN)
        if k == 4 and NPF: a.wait(lg=("pw", 2 + NPF))
        if k == 0 and not opt.get("hsent"):
            dm_ = [lambda: (a.wait(vm="hst"), a("s_mov_b64 exec, 1"), a.vmem(f"buffer_store_dword v{TB}, v{ZERO}, s[56:59], s42 offen sc1", "hfl"), a("s_mov_b64 exec, -1"))] + dm_
        cut = [0, 3, 6, 8, 10, 10]; dcut = [0, 0, 1, 2, 4, len(dm_)]
        for t in range(5):
            mf(k, t)
            for f in rd_[cut[t]:cut[t+1]]: f()
            if t == 1: a.wait(lg=("dr", k, 4))
            for f in dm_[dcut[t]:dcut[t+1]]: f()
            nh = 2 if (opt.get("hsent") and k < 3) else 1
            for f in hl[:nh]: f()
            hl = hl[nh:]
    assert not hl
    a.flush_pend()
    for k in (25, 26): dreads(k)
    a.wait(lg=("dr", 24, 4)); d_dma(27)
    a.wait(lg=("dr", 25, 4)); d_dma(28)
    a.wait(lg=("dr", 26, 4)); d_dma(29)
    dreads(27)
    a.wait(lg=("dr", 27, 4)); d_dma(30)
    a.raw("; @@G_MAIN_END")
    S_(8)
    if opt.get("aoff"):
        S_(9); st.flush(a, P_WS, 6, 20); a("s_endpgm")
    a("s_setprio 3")
    a("s_add_u32 s30, s36, 4096"); a("s_add_u32 s31, s36, 8192")
    def o_ld(i): return f"buffer_load_dwordx4 {vr(BF+4*i,4)}, v{L16}, s[12:15], {['s36','s30','s31'][i//4]} offen offset:{(i%4)*1024} sc1"
    for i in range(10): a.vmem(o_ld(i), ("b", 24 + i))
    for k in range(24, 34):
        i = k - 24; bq = BF + 4 * i
        a.wait(vm=("b", k))
        valid([bq, bq + 1, bq + 2, bq + 3], [o_ld(j) for j in range(i, 10)], 9 - i, opt.get("osleep", 2))
        if k == 24 and not opt.get("hst"): S_(10)
        rd_ = dparts(k + 3) if 28 <= k + 3 < 34 else []
        for t in range(5):
            mf(k, t)
            for f in rd_[2*t:2*t+2]: f()
        if k in (26, 27, 28):
            a.wait(lg=("dr", k + 2, 4)); d_dma(k + 2 + DN)
    if not opt.get("hst"): S_(11)
    srd(a, 16, P_OUT, 2048 * 1280)
    OSC = opt.get('osc', '')
    a(f"v_add_u32 v{TA}, s29, v{L16}")
    RS = 96
    a.wait(vm="xr")
    for i in range(10):
        a(f"v_lshlrev_b32 v{RS+2*i}, 16, v{XR+i}")
        a(f"v_and_b32 v{RS+2*i+1}, 0xffff0000, v{XR+i}")
    for gq in range(1, 4):
        for t in range(5):
            a.lds(f"ds_write_b128 v{TA}, {vr(DA[t]+4*gq,4)} offset:{WSO[gq-1]+t*1024}", "rw")
    set_flag(a, FV, FWA, 5)
    if opt.get("tst"): S0_(1)
    for gq in range(1, 4):
        a(f"s_sub_u32 s30, s3, {gq}"); a("s_and_b32 s30, s30, 3"); a(f"s_mul_i32 s30, s30, {WSLOT}"); a(f"s_add_u32 s30, s30, {L_R1 + WSO[gq-1]}")
        a(f"v_add_u32 v{116+gq}, s30, v{L16}")
    for t in range(5):
        for i in range(2): a(f"v_pk_add_f32 {vr(RS+4*t+2*i,2)}, {vr(RS+4*t+2*i,2)}, {vr(DA[t]+2*i,2)}")
    poll_lds(a, FV, FAD, 5, "fl")
    if opt.get("tst"): S0_(2)
    for w in range(1, 4):
        for t in range(5):
            a.lds(f"ds_read_b128 {vr(16+20*w+4*t,4)}, v{116+w} offset:{t*1024}", ("rr", w))
    for w in range(1, 4):
        a.wait(lg=("rr", w))
        for i in range(10):
            a(f"v_pk_add_f32 {vr(RS+2*i,2)}, {vr(RS+2*i,2)}, {vr(16+20*w+2*i,2)}")
    for i in range(10):
        a(f"v_cvt_pk_bf16_f32 v{120+i}, v{RS+2*i}, v{RS+2*i+1}")
    if opt.get("tst"): S0_(3)
    a(f"buffer_store_dwordx4 {vr(120,4)}, v{OA}, s[16:19], s43 offen {OSC}")
    a(f"buffer_store_dwordx4 {vr(124,4)}, v{OA}, s[16:19], s43 offen offset:16 {OSC}")
    a(f"buffer_store_dwordx2 {vr(128,2)}, v{OA}, s[16:19], s43 offen offset:32 {OSC}")
    if st:
        a("s_waitcnt vmcnt(0)"); S_(9); st.flush(a, P_WS, 6, 20)
```

```python
from asmlib import *
import math, struct
def f32hex(x): return struct.unpack("<I", struct.pack("<f", x))[0]
WS_KV = 0x280000;  KV_BYTES = 64 * 3072
WS_FL = 0x2B0000;  FL_BYTES = 0x10000
WS_H  = 0x300000;  H_BYTES = 64 * 96 * 1024
WS_O  = 0x000000;  O_BYTES = 64 * 40 * 1024
FL_KV = 0; FL_H = 0x4000; FL_O = 0x8000
BIG = 0x40000000
L_FLAGA = 0; L_FLAGG = 16; L_CNTKV = 32; L_TAG = 36; L_KVOK = 40
L_XN = 256; XNT = 80 * 528
L_R1 = L_XN + 2 * XNT
KVSLOT = 12288
L_KV = 163840 - 4 * KVSLOT
L_WK = 110592; L_WV = L_WK + 26624
WSLOT = 6272
WSO = [0, 51200, 25600]
WMAP = lambda u: u % 3
DSLOT = 5120; DN = 3
L_RED = 256; L_MX = 161024
DS = lambda k: WSO[(k + 2) % 3]
QXO = 25600
LDS_TOTAL = 163840
QSCALE = (20 ** -0.5) * math.log2(math.e)
P_X, P_WQ, P_WK, P_WV, P_WO, P_BX, P_WG, P_WU, P_WD, P_OUT, P_DBG, P_WS = [64 + 2 * i for i in range(12)]
SPIN = 0x40000
LANE, L16, TA, TB, ZERO = 1, 2, 3, 4, 5
FAD, FWA, FV = 6, 7, 8
DUMMY = 10

def srd(a, d, p, nbytes, add=0):
    if add:
        a(f"s_add_u32 s{d}, s{p}, {add}"); a(f"s_addc_u32 s{d+1}, s{p+1}, 0")
    else:
        a(f"s_mov_b32 s{d}, s{p}"); a(f"s_mov_b32 s{d+1}, s{p+1}")
    a(f"s_mov_b32 s{d+2}, {nbytes}"); a(f"s_mov_b32 s{d+3}, 0x00020000")

def poll_lds(a, vF, vFaddr, need, tag, issue=True):
    ok = a.newlabel("pok"); lp = a.newlabel("plp"); sl = a.newlabel("psl")
    if issue: a.lds(f"ds_read_b32 v{vF}, v{vFaddr}", tag)
    a.wait(lg=tag)
    a(f"v_cmp_gt_u32 vcc, {need}, v{vF}")
    a("s_cmp_eq_u64 vcc, 0")
    a(f"s_cbranch_scc0 {sl}")
    a.label(ok)
    a.cold += [f"{sl}:", f"    s_mov_b32 s63, {SPIN}", f"{lp}:", "    s_sleep 1", f"    ds_read_b32 v{vF}, v{vFaddr}", "    s_waitcnt lgkmcnt(0)",
               "    s_sub_u32 s63, s63, 1", f"    s_cbranch_scc1 {ok}", f"    v_cmp_gt_u32 vcc, {need}, v{vF}", "    s_cmp_eq_u64 vcc, 0",
               f"    s_cbranch_scc0 {lp}", f"    s_branch {ok}"]

def set_flag(a, vtmp, vaddr, val, off=0):
    a("s_mov_b64 exec, 1")
    a(f"v_mov_b32 v{vtmp}, {val}")
    a.lds(f"ds_write_b32 v{vaddr}, v{vtmp}" + (f" offset:{off}" if off else ""), "fw")
    a("s_mov_b64 exec, -1")

def poll_global(a, vdst, n, vaddr, srdn, soffs, stag, sleep=6):
    ok = a.newlabel("gok"); lp = a.newlabel("glp")
    a(f"s_mov_b32 s63, {SPIN // 16}")
    a.label(lp)
    for i in range(n):
        a(f"buffer_load_dword v{vdst+i}, v{vaddr}, s[{srdn}:{srdn+3}], {soffs} offen offset:{i*1024} sc1")
    a("s_waitcnt vmcnt(0)")
    for i in range(n): a(f"v_xor_b32 v{vdst+i}, {stag}, v{vdst+i}")
    for i in range(1, n): a(f"v_or_b32 v{vdst}, v{vdst}, v{vdst+i}")
    a(f"v_cmp_ne_u32 vcc, 0, v{vdst}")
    a("s_cmp_eq_u64 vcc, 0")
    a(f"s_cbranch_scc1 {ok}")
    a(f"s_sleep {sleep}")
    a("s_sub_u32 s63, s63, 1")
    a(f"s_cbranch_scc0 {lp}")
    a.label(ok)
    a.vm = []

def get_tag(a, vT):
    ok = a.newlabel("tok"); lp = a.newlabel("tlp")
    a(f"s_mov_b32 s63, {SPIN}")
    a.label(lp)
    a(f"ds_read_b32 v{vT}, v{ZERO} offset:{L_TAG}")
    a("s_waitcnt lgkmcnt(0)")
    a(f"v_readfirstlane_b32 s62, v{vT}")
    a("s_cmp_lg_u32 s62, 0")
    a(f"s_cbranch_scc1 {ok}")
    a("s_sleep 1")
    a("s_sub_u32 s63, s63, 1")
    a(f"s_cbranch_scc0 {lp}")
    a.label(ok)
    a.lg = []

def warm(a, srdn, stride, rows_per_wave, width, col_expr, NSH, vt, st0, st1, lpr):
    a(f"s_and_b32 s{st0}, s4, {NSH-1}")
    a(f"s_lshl_b32 s{st0}, s{st0}, 2")
    a(f"s_add_u32 s{st0}, s{st0}, s3")
    a(f"s_mul_i32 s{st0}, s{st0}, {rows_per_wave*stride}")
    a(f"s_mul_i32 s{st1}, {col_expr[0]}, {col_expr[1]}")
    a(f"s_add_u32 s{st0}, s{st0}, s{st1}")
    rpi = 64 // lpr
    a(f"v_mul_u32_u24 v{vt+1}, {(512 + lpr - 1) // lpr}, v{LANE}")
    a(f"v_lshrrev_b32 v{vt+1}, 9, v{vt+1}")
    a(f"v_mul_u32_u24 v{vt}, {lpr}, v{vt+1}")
    a(f"v_sub_u32 v{vt}, v{LANE}, v{vt}")
    a(f"v_lshlrev_b32 v{vt}, 7, v{vt}")
    a(f"v_min_u32 v{vt}, {width-4}, v{vt}")
    a(f"v_min_u32 v{vt+1}, {min(rpi, rows_per_wave)-1}, v{vt+1}")
    a(f"v_mul_u32_u24 v{vt+1}, {stride}, v{vt+1}")
    a(f"v_add_u32 v{vt}, v{vt}, v{vt+1}")
    n = (rows_per_wave + rpi - 1) // rpi
    for i in range(n):
        for sd in srdn:
            a.vmem(f"buffer_load_dword v{DUMMY}, v{vt}, s[{sd}:{sd+3}], s{st0} offen", "warm")
        if i + 1 < n:
            step = rpi if (i + 2) * rpi <= rows_per_wave else rows_per_wave - rpi - rpi * i
            a(f"s_add_u32 s{st0}, s{st0}, {step*stride}")

def warm_lane(a, dst, tmp, stride, rows, width, lpr):
    a(f"v_mul_u32_u24 v{tmp}, {(512 + lpr - 1) // lpr}, v{LANE}")
    a(f"v_lshrrev_b32 v{tmp}, 9, v{tmp}")
    a(f"v_mul_u32_u24 v{dst}, {lpr}, v{tmp}")
    a(f"v_sub_u32 v{dst}, v{LANE}, v{dst}")
    a(f"v_lshlrev_b32 v{dst}, 7, v{dst}")
    a(f"v_min_u32 v{dst}, {width-4}, v{dst}")
    a(f"v_min_u32 v{tmp}, {rows-1}, v{tmp}")
    a(f"v_mul_u32_u24 v{tmp}, {stride}, v{tmp}")
    a(f"v_add_u32 v{dst}, v{dst}, v{tmp}")

def share(a, sd, NSH):
    a(f"s_and_b32 s{sd}, s4, {NSH-1}")
    a(f"s_lshl_b32 s{sd}, s{sd}, 2")
    a(f"s_add_u32 s{sd}, s{sd}, s3")

def tag_check(a, vT):
    ok = a.newlabel("tok"); lp = a.newlabel("tlp")
    a(f"s_mov_b32 s63, {SPIN // 16}")
    a.label(lp)
    a(f"v_readfirstlane_b32 s62, v{vT}")
    a("s_cmp_lg_u32 s62, 0")
    a(f"s_cbranch_scc1 {ok}")
    a("s_sleep 4")
    a(f"buffer_load_dword v{vT}, v{ZERO}, s[88:91], 0 offen sc1")
    a("s_waitcnt vmcnt(0)")
    a("s_sub_u32 s63, s63, 1")
    a(f"s_cbranch_scc0 {lp}")
    a.label(ok)

def ln_finish(a, SUM, SQ):
    a(f"v_mul_f32 v{SUM}, 0x{f32hex(1.0/640):08x}, v{SUM}")
    a(f"v_mul_f32 v{SQ}, 0x{f32hex(1.0/640):08x}, v{SQ}")
    a(f"v_fma_f32 v{SQ}, -v{SUM}, v{SUM}, v{SQ}")
    a(f"v_max_f32 v{SQ}, 0, v{SQ}")
    a(f"v_add_f32 v{SQ}, 0x{f32hex(1e-5):08x}, v{SQ}")
    a(f"v_rsq_f32 v{SQ}, v{SQ}")
    a("s_nop 0")
    a(f"v_mul_f32 v{SUM}, v{SUM}, v{SQ}")
    a(f"v_mov_b32 v{SQ+1}, v{SQ}")
    a(f"v_sub_f32 v{SUM}, 0, v{SUM}")
    a(f"v_mov_b32 v{SUM+1}, v{SUM}")

def ln_stats(a, X, U, n, SUM, SQ, tagf, hook=None):
    for i in range(n):
        a.wait(vm=tagf(i))
        if hook: hook(i)
        for d in range(4):
            a(f"v_lshlrev_b32 v{U+8*i+2*d}, 16, v{X+4*i+d}")
            a(f"v_and_b32 v{U+8*i+2*d+1}, 0xffff0000, v{X+4*i+d}")
        for d in range(4):
            p = vr(U + 8 * i + 2 * d, 2)
            if i == 0 and d == 0:
                a(f"v_pk_mul_f32 {vr(SQ,2)}, {p}, {p}")
                a(f"v_pk_add_f32 {vr(SUM,2)}, {p}, {vr(U+2,2)}")
            else:
                if not (i == 0 and d == 1): a(f"v_pk_add_f32 {vr(SUM,2)}, {vr(SUM,2)}, {p}")
                a(f"v_pk_fma_f32 {vr(SQ,2)}, {p}, {p}, {vr(SQ,2)}")
    a(f"v_add_f32 v{SUM}, v{SUM}, v{SUM+1}")
    a(f"v_add_f32 v{SQ}, v{SQ}, v{SQ+1}")
    a("s_nop 0")

def dpp_sum(a, regs, ctls):
    for ctl in ctls:
        for r in regs: a(f"v_add_f32_dpp v{r}, v{r}, v{r} {ctl} row_mask:0xf bank_mask:0xf")
        a("s_nop 0")

def ln_group(a, idx_expr_sgpr, sgl, sld, vgl, vld):
    a(f"s_cmp_ge_u32 s{idx_expr_sgpr}, s5")
    a(f"s_addc_u32 s{sld}, s{idx_expr_sgpr}, 0")
    a(f"s_lshl_b32 s{sgl}, s4, 3")
    a(f"s_add_u32 s{sgl}, s{sgl}, s{sld}")
    a(f"s_mul_i32 s{sgl}, s{sgl}, 10240")
    a(f"v_lshrrev_b32 v{TB}, 3, v{LANE}")
    a(f"v_mul_u32_u24 v{vgl}, 1280, v{TB}")
    a(f"v_and_b32 v{TA}, 7, v{LANE}")
    a(f"v_lshl_add_u32 v{vgl}, v{TA}, 4, v{vgl}")
    a(f"v_mul_u32_u24 v{vld}, 528, v{TA}")
    a(f"v_lshl_add_u32 v{vld}, v{TB}, 4, v{vld}")
    a(f"s_and_b32 s63, s{sld}, 3")
    a("s_lshl_b32 s63, s63, 7")
    a(f"s_lshr_b32 s{sld}, s{sld}, 2")
    a(f"s_mul_i32 s{sld}, s{sld}, {XNT}")
    a(f"s_add_u32 s{sld}, s{sld}, s63")
    a(f"s_add_u32 s{sld}, s{sld}, {L_XN}")
    a(f"v_add_u32 v{vld}, s{sld}, v{vld}")

def ln_write(a, X, U, SUM, SQ, vld):
    for i in range(10):
        for d in range(4):
            pp = vr(U + 8 * i + 2 * d, 2)
            a(f"v_pk_fma_f32 {pp}, {pp}, {vr(SQ,2)}, {vr(SUM,2)}")
        for d in range(4):
            a(f"v_cvt_pk_bf16_f32 v{X+4*i+d}, v{U+8*i+2*d}, v{U+8*i+2*d+1}")
        a.lds(f"ds_write_b128 v{vld}, {vr(X+4*i,4)} offset:{i*4224}", "xw")

def wq_offsets(a, WQO):
    for i in range(5):
        a(f"v_add_u32 v{TA}, {64*i}, v{LANE}")
        a(f"v_mul_u32_u24 v{TB}, 205, v{TA}")
        a(f"v_lshrrev_b32 v{TB}, 11, v{TB}")
        a(f"v_mul_u32_u24 v{WQO+i}, 10, v{TB}")
        a(f"v_sub_u32 v{TA}, v{TA}, v{WQO+i}")
        a(f"v_lshlrev_b32 v{TA}, 4, v{TA}")
        if 0 < i < 4: a(f"v_subrev_u32 v{TA}, {1024*i}, v{TA}")
        a(f"v_mul_u32_u24 v{WQO+i}, 1280, v{TB}")
        a(f"v_add_u32 v{WQO+i}, v{WQO+i}, v{TA}")
SLOT = lambda g: g % 15
L_WQF = 44

def gen(name, st=None, opt=None):
    opt = dict(dict(prioA=2, prioG=0, pattern=4, endstamp=False, xmap="16x2", w0=0, wwarm="c", gp=1, pat="MeeeMeeceececeMeeccM|eeeceecc", hst=0), **(opt or {}))
    a = Asm()
    S_ = (lambda i, cyc=False: st(a, i, cyc)) if st else (lambda i, cyc=False: None)
    a.raw(f".globl {name}\n.p2align 8\n.type {name},@function")
    a.label(name)
    a("s_cmp_ge_u32 s2, 256")
    a("s_cbranch_scc1 L_end")
    if st: st.init(a); S_(0)
    a("s_load_dwordx16 s[64:79], s[0:1], 0")
    a("s_load_dwordx8 s[80:87], s[0:1], 64")
    a("v_lshrrev_b32 v3, 6, v0")
    a(f"v_and_b32 v{LANE}, 63, v0")
    a("v_readfirstlane_b32 s6, v3")
    a(f"v_lshlrev_b32 v{L16}, 4, v{LANE}")
    a(f"v_mov_b32 v{ZERO}, 0")
    if opt["xmap"] == "8x4":
        a("s_bfe_u32 s4, s2, 0x20001"); a("s_lshl_b32 s4, s4, 3"); a("s_lshr_b32 s7, s2, 5"); a("s_add_u32 s4, s4, s7")
        a("s_and_b32 s5, s2, 1"); a("s_lshl_b32 s5, s5, 2"); a("s_bfe_u32 s7, s2, 0x20003"); a("s_add_u32 s5, s5, s7")
        NSH = 8; NSD = 8
    elif opt["xmap"] == "4x8":
        a("s_and_b32 s4, s2, 7"); a("s_lshl_b32 s4, s4, 2"); a("s_lshr_b32 s7, s2, 6"); a("s_add_u32 s4, s4, s7")
        a("s_bfe_u32 s5, s2, 0x30003")
        NSH = 4; NSD = 4
    elif opt["xmap"] == "16x2":
        a("s_bfe_u32 s4, s2, 0x10002"); a("s_lshl_b32 s4, s4, 4"); a("s_lshr_b32 s7, s2, 4"); a("s_add_u32 s4, s4, s7")
        a("s_and_b32 s5, s2, 3"); a("s_lshl_b32 s5, s5, 1"); a("s_bfe_u32 s7, s2, 0x10003"); a("s_add_u32 s5, s5, s7")
        NSH = 16; NSD = 16
    a("s_and_b32 s3, s6, 3")
    a(f"v_lshlrev_b32 v{FWA}, 2, v{LANE}")
    a("s_cmp_lg_u32 s6, 0")
    a("s_cbranch_scc1 L_nozero")
    a(f"ds_write_b32 v{FWA}, v{ZERO}")
    a.label("L_nozero")
    a("s_waitcnt lgkmcnt(0)")
    srd(a, 8, P_X, 2048 * 1280)
    srd(a, 88, P_DBG, 256)
    a("s_cmp_ge_u32 s6, 4")
    a("s_cbranch_scc1 L_g_role")
    ln_group(a, 3, 7, 24, 10, 11)
    a("s_or_b32 s25, s2, s6")
    a("s_cmp_lg_u32 s25, 0")
    a("s_cbranch_scc1 L_notagpub")
    a("s_memrealtime s[60:61]")
    a("s_waitcnt lgkmcnt(0)")
    a("s_or_b32 s60, s60, 1")
    a("v_mov_b32 v8, s60")
    a("s_mov_b64 exec, 1")
    a(f"buffer_store_dword v8, v{ZERO}, s[88:91], 0 offen sc1")
    a("s_mov_b64 exec, -1")
    a.label("L_notagpub")
    a("s_barrier")
    for i in range(10):
        a.vmem(f"buffer_load_dwordx4 {vr(16+4*i,4)}, v10, s[8:11], s7 offen offset:{128*i}", ("x", i))
    if opt.get("tlb"):
        a(f"v_lshlrev_b32 v9, {opt.get('tlbsh', 21)}, v{LANE}")
        for i, (p, n) in enumerate(((P_WS, 0x900000), (P_OUT, 2048 * 1280), (P_WD, 1536 * 1280), (P_WO, 640 * 1280), (P_WG, 640 * 3072), (P_WU, 640 * 3072))):
            srd(a, 92, p, n) if i % 2 == 0 else srd(a, 96, p, n)
            a.vmem(f"buffer_load_dword v8, v9, s[{92 + 4*(i%2)}:{95 + 4*(i%2)}], 0 offen", "tlb")
    vm_a = list(a.vm)
    a("s_branch L_a_role")
    a.label("L_g_role")
    a.vm = []; a.lg = []
    gen_g(a, S_, st, opt, NSH)
    a("s_endpgm")
    a.emit_cold()
    a.label("L_a_role")
    a.vm = vm_a; a.lg = []
    gen_a(a, S_, st, opt, NSH)
    a.emit_cold()
    a.label("L_end")
    a("s_endpgm")
    txt = a.text()
    if opt.get("gwrap"):
        out = []; on = False; low = False
        for l in txt.split("\n"):
            if "@@G_MAIN_BEGIN" in l: on = True; out.append(l); out.append("    s_setprio 3"); continue
            if "@@G_MAIN_END" in l:
                on = False
                if low: out.append("    s_setprio 3"); low = False
            t = l.strip()
            if on:
                if t.startswith("s_setprio"): continue
                if t.startswith("v_mfma"):
                    if not low:
                        out.append(f"    s_setprio {opt.get('glow', 0)}"); low = True
                        if opt.get("gnop") is not None: out.append(f"    s_nop {opt['gnop']}")
                elif low and t and not t.startswith(";"):
                    out.append(f"    s_setprio {opt.get('ghigh', 3)}"); low = False
            out.append(l)
        txt = "\n".join(out)
    if opt.get("allsc"):
        out = []
        for l in txt.split("\n"):
            t = l.strip()
            if t.startswith("buffer_load_dwordx4") and " sc1" not in t and "s[8:11]" not in t:
                l = (l[:-4] + f" {opt['allsc']} lds") if t.endswith(" lds") else l + f" {opt['allsc']}"
            out.append(l)
        txt = "\n".join(out)
    if opt.get("gdrop"):
        out = []; on = False
        for l in txt.split("\n"):
            if "@@G_MAIN_BEGIN" in l: on = True
            if "@@G_MAIN_END" in l: on = False
            t = l.strip()
            if on and "mfma" in opt["gdrop"] and t.startswith("v_mfma"): continue
            if on and "lds" in opt["gdrop"] and (t.startswith("ds_read_b64_tr") or t.startswith("ds_read_b128")): continue
            if on and "dma" in opt["gdrop"] and t.startswith("buffer_load_dwordx4"): continue
            out.append(l)
        txt = "\n".join(out)
    return txt, kdesc(name, 256, 102)

def gen_a(a, S0_, st, opt, NSH):
    QS = {5: 0, 7: 1, 16: 2, 19: 3, 28: 6, 31: 7} if opt.get("qst") else {}
    S_ = (lambda i, cyc=False: S0_(i, cyc) if (not opt.get("qst") or i in (4, 5, 8, 9, 10, 11)) else None)
    X = 16; U = 56; SUM, SQ = 12, 14; TAG = 8; WQA = 7
    WQO = 136
    srd(a, 12, P_WQ, 640 * 1280)
    wq_offsets(a, WQO)
    a("s_lshl_b32 s24, s5, 2")
    a("s_add_u32 s24, s24, s3")
    a("s_mul_i32 s25, s5, 160")
    a("s_mul_i32 s26, s3, 40960")
    a("s_add_u32 s25, s25, s26")
    a("s_mul_i32 s26, s3, 5120")
    a(f"s_add_u32 s26, s26, {L_R1}")
    def wq_one(g4, i, tag):
        def f():
            a(f"s_add_u32 m0, s26, {SLOT(g4)*5120 + (4096 if i == 4 else 0)}")
            a(f"s_add_u32 s27, s25, {g4*40960}")
            ins = f"buffer_load_dwordx4 v{WQO+i}, s[12:15], s27 offen" + (f" offset:{i*1024}" if i < 4 else "") + " lds"
            if tag: a.vmem(ins, tag)
            else:
                l = a.newlabel("g4"); a("s_cmp_lg_u32 s3, 0"); a(f"s_cbranch_scc1 {l}"); a(ins); a.label(l)
        return f
    srd(a, 16, P_WG, 640 * 3072)
    srd(a, 20, P_WU, 640 * 3072)
    late = [wq_one(4, i, None) for i in range(5)] + [wq_one(0, i, "p1") for i in range(5)]
    if not opt.get("nowarm"):
        warm_lane(a, 146, TA, 1280, 640 // NSH // 4, 160, 2)
        warm_lane(a, 147, TA, 3072, max(opt["w0"] // NSH // 4, 1), 384, 3)
        share(a, 32, NSH)
        a(f"s_mul_i32 s33, s32, {opt['w0'] // NSH // 4 * 3072}")
        a(f"s_mul_i32 s32, s32, {640 // NSH // 4 * 1280}")
        a("s_mul_i32 s34, s5, 160"); a("s_add_u32 s32, s32, s34")
        a("s_mul_i32 s34, s5, 384"); a("s_add_u32 s33, s33, s34")
        late = [lambda: a.vmem(f"buffer_load_dword v{DUMMY}, v146, s[12:15], s32 offen", "warm")] + late
        if opt["w0"]: late += [lambda: a.vmem(f"buffer_load_dword v{DUMMY}, v147, s[16:19], s33 offen", "warm"),
                 lambda: a.vmem(f"buffer_load_dword v{DUMMY}, v147, s[20:23], s33 offen", "warm")]
    XA0, XA1, FWQ, NEED, FG, F8 = 152, 153, 154, 9, 144, 145
    a(f"v_and_b32 v{TA}, 7, v{LANE}")
    a(f"v_lshlrev_b32 v{F8}, 2, v{TA}")
    a(f"v_and_b32 v{FAD}, 12, v{F8}")
    a(f"v_add_u32 v{FG}, {L_FLAGG}, v{FAD}")
    a(f"v_lshrrev_b32 v{TB}, 5, v{LANE}")
    a(f"v_bfe_u32 v{WQA}, v{LANE}, 2, 2")
    a(f"v_lshl_add_u32 v{WQA}, v{TB}, 3, v{WQA}")
    a(f"v_mul_u32_u24 v{WQA}, 160, v{WQA}")
    a(f"v_mul_u32_u24 v{XA0}, 528, v{TB}")
    a(f"v_and_b32 v{TB}, 1, v{LANE}")
    a(f"v_lshlrev_b32 v{TB}, 4, v{TB}")
    a(f"v_bfe_u32 v{TA}, v{LANE}, 1, 1")
    a(f"v_lshl_add_u32 v{TB}, v{TA}, 3, v{TB}")
    a(f"v_and_b32 v{TA}, 16, v{LANE}")
    a(f"v_cmp_eq_u32 vcc, 0, v{TA}")
    a(f"v_mov_b32 v{TA}, 32")
    a("s_mul_i32 s30, s3, 40")
    a(f"s_add_u32 s30, s30, {L_R1}")
    a(f"v_cndmask_b32 v{TB}, v{TA}, v{TB}, vcc")
    a(f"v_add3_u32 v{WQA}, v{WQA}, v{TB}, s30")
    a(f"v_and_b32 v{TA}, 31, v{LANE}")
    a(f"v_lshl_add_u32 v{XA0}, v{TA}, 4, v{XA0}")
    a(f"v_add_u32 v{XA0}, {L_XN}, v{XA0}")
    a(f"v_add_u32 v{XA1}, {XNT}, v{XA0}")
    a("s_lshl_b32 s30, s3, 2")
    a(f"v_mov_b32 v{FWQ}, s30")
    WF = lambda k: 176 + 4 * k if k < 20 else 16 + 4 * (k - 20)
    def wq_read(k0, n):
        for k in range(k0, k0 + n):
            for hf in range(2):
                off = SLOT(k//2)*5120+(k%2)*2560+hf*640
                a.lds(f"ds_read_b64_tr_b16 {vr(WF(k)+2*hf,2)}, v{WQA if off < 40960 else 15} offset:{off % 40960}", ("wr", k))
    S_(1)
    def hk(i):
        if i == 0:
            S_(2); a.sprinkle(late, 10)
    ln_stats(a, X, U, 10, SUM, SQ, lambda i: ("x", i), hk)
    a.flush_pend()
    dpp_sum(a, [SUM, SQ], ("quad_perm:[1,0,3,2]", "quad_perm:[2,3,0,1]", "row_half_mirror"))
    ln_finish(a, SUM, SQ)
    a.vmem(f"buffer_load_dword v{TAG}, v{ZERO}, s[88:91], 0 offen sc1", "tag")
    ln_write(a, X, U, SUM, SQ, 11)
    a.wait(vm="p1", lg="all")
    set_flag(a, TA, FWQ, 3)
    S_(3)
    poll_lds(a, TB, FAD, 3, "fl")
    wq_read(0, 10)
    a.wait(lg=("wr", 9))
    set_flag(a, TA, FWQ, 4)
    a(f"v_mov_b32 v14, {L_WQF}")
    a(f"v_add_u32 v15, 40960, v{WQA}")
    QACC = [120, 136]; QF = 96; QD = 3
    a(f"s_setprio {opt['prioA']}")
    srd(a, 16, P_WS, KV_BYTES, WS_KV)
    srd(a, 20, P_WS, O_BYTES, WS_O)
    srd(a, 56, P_WS, FL_BYTES, WS_FL)
    poll_lds(a, TB, F8, 3, "fl")
    S_(4)
    a("s_lshl_b32 s36, s4, 1")
    a("s_mul_i32 s36, s36, 40960")
    a("s_lshr_b32 s37, s24, 3")
    a("s_mul_i32 s37, s37, 10240")
    a("s_add_u32 s36, s36, s37")
    a("s_and_b32 s37, s24, 7")
    a("s_lshl_b32 s38, s37, 10")
    a("s_add_u32 s38, s38, s36")
    a("s_lshr_b32 s39, s37, 1")
    a("s_lshl_b32 s39, s39, 9")
    a("s_and_b32 s37, s37, 1")
    a("s_lshl_b32 s37, s37, 3")
    a("s_add_u32 s39, s39, s37")
    a("s_add_u32 s39, s39, s36")
    a("s_add_u32 s39, s39, 8192")
    a("s_add_u32 s40, s38, 40960")
    a("s_add_u32 s41, s39, 40960")
    def qreads(ks):
        b = QF + (ks % QD) * 8
        a.lds(f"ds_read_b128 {vr(b,4)}, v{XA0} offset:{ks*1056}", ("qa", ks))
        a.lds(f"ds_read_b128 {vr(b+4,4)}, v{XA1} offset:{ks*1056}", ("qa", ks))
    BK2, BV, MX, FG2 = 9, 10, 11, 12
    RA = [13, 14, 15]
    QA = [16 + 4 * i for i in range(8)]; QB = [48 + 2 * i for i in range(8)]
    O = [156 + 12 * i for i in range(8)]
    S = [64, 80]; P = [96, 104]
    K1f = [112, 116, 120]; K2f = [124, 126, 128]; Vf = [[130, 134], [138, 142], [146, 150]]
    BVL = MX
    def kld(buf, so, tag):
        return [lambda: a.vmem(f"buffer_load_dwordx4 {vr(K1f[buf],4)}, v{L16}, s[16:19], {so} offen sc1", tag),
                lambda: a.vmem(f"buffer_load_dwordx2 {vr(K2f[buf],2)}, v{BK2}, s[16:19], {so} offen offset:1024 sc1", tag)]
    def vld(buf, so, tag):
        return [lambda: a.vmem(f"buffer_load_dwordx4 {vr(Vf[buf][0],4)}, v{BVL}, s[16:19], {so} offen offset:1536 sc1", tag),
                lambda: a.vmem(f"buffer_load_dwordx4 {vr(Vf[buf][1],4)}, v{BVL}, s[16:19], {so} offen offset:2304 sc1", tag)]
    def adv():
        return [lambda: (a(f"s_add_u32 s28, s28, {KVSLOT}"), a(f"s_sub_u32 s27, s28, {KV_BYTES}")),
                lambda: (a(f"s_cmp_ge_u32 s28, {KV_BYTES}"), a("s_cselect_b32 s28, s27, s28"))]
    def kv_first():
        for f in kld(0, "s28", ("k", 0)) + vld(0, "s28", ("v", 0)) + adv() + kld(1, "s28", ("k", 1)) + vld(1, "s28", ("v", 1)) + adv(): f()
    NEED = 13
    a("s_bfe_u32 s28, s2, 0x40003")
    a(f"s_mul_i32 s28, s28, {KVSLOT}")
    a("s_mul_i32 s33, s3, 3072")
    a("s_add_u32 s28, s28, s33")
    a("s_lshl_b32 s43, s3, 6")
    a("s_mov_b32 s35, 0")
    a(f"v_lshlrev_b32 v{BK2}, 3, v{LANE}")
    a(f"v_and_b32 v{TA}, 31, v{LANE}")
    a(f"v_min_u32 v{TA}, 21, v{TA}")
    a(f"v_lshlrev_b32 v{TA}, 4, v{TA}")
    a(f"v_lshrrev_b32 v{TB}, 5, v{LANE}")
    a(f"v_mul_u32_u24 v{TB}, 384, v{TB}")
    a(f"v_add_u32 v{MX}, v{TA}, v{TB}")
    a(f"v_lshrrev_b32 v{TA}, 2, v{LANE}")
    a(f"v_lshlrev_b32 v{TA}, 8, v{TA}")
    a(f"v_and_b32 v{TB}, 3, v{LANE}")
    a(f"v_lshl_add_u32 v{NEED}, v{TB}, 4, v{TA}")
    P3 = opt.get('p3r', 18)
    RD = {6 + j: (10 + 2 * j, 2) for j in range(10)}
    RD.update({P3 + j: (30 + 2 * j, 2) for j in range(5)})
    for ks in range(QD - 1): qreads(ks)
    CHK = opt.get("kvchk", ()); CLD = opt.get("kvld", (32,))
    for ks in range(40):
        if ks in QS and QS[ks]: S0_(QS[ks])
        if ks + QD - 1 < 40: qreads(ks + QD - 1)
        if ks == 24:
            a.wait(vm='tag'); tag_check(a, TAG)
        P3R = opt.get('p3r', 18)
        if ks in (5, P3R - 1): a.lds(f"ds_read_b32 v{TB}, v14", "fl")
        if ks == 6: poll_lds(a, TB, 14, 1, "fl", issue=False)
        if ks == P3R: poll_lds(a, TB, 14, 2, "fl", issue=False)
        if ks in RD: wq_read(*RD[ks])
        if ks == opt.get("p3r", 18) + 4: set_flag(a, TA, FWQ, 8)
        if ks == 30: a.lds(f"ds_read_b32 v{TB}, v{FAD}", "fl")
        if ks == 32: poll_lds(a, TB, FAD, 8, "fl", issue=False)
        if ks in CLD:
            a(f"buffer_load_dword v{TAG}, v{NEED}, s[56:59], s43 offen sc1")
        if ks in CHK:
            l = a.newlabel("kvc"); r = a.newlabel("kvr")
            a("s_waitcnt vmcnt(0)")
            a(f"v_cmp_ne_u32 vcc, s62, v{TAG}")
            a("s_cmp_eq_u32 s35, 0")
            a("s_cselect_b64 vcc, vcc, -1")
            a("s_cmp_eq_u64 vcc, 0")
            a(f"s_cbranch_scc0 {r}")
            sv = list(a.vm); kv_first(); a.vm = sv
            a("s_mov_b32 s35, 1")
            a.label(r)
        a.wait(lg=[("qa", ks), ("wr", ks)])
        b = QF + (ks % QD) * 8
        a(f"v_mfma_f32_32x32x16_bf16 {vr(QACC[0],16)}, {vr(WF(ks),4)}, {vr(b,4)}, {vr(QACC[0],16) if ks else 0}")
        if ks >= 20:
            for i in range(5): a(f"v_mov_b32 v{O[0]+5*(ks-20)+i}, 0")
        a(f"v_mfma_f32_32x32x16_bf16 {vr(QACC[1],16)}, {vr(WF(ks),4)}, {vr(b+4,4)}, {vr(QACC[1],16) if ks else 0}")
    S_(5)
    a(f"v_mov_b32 v{FWA}, s30")
    if opt.get("aoff"):
        set_flag(a, TA, FWA, 12); st.flush(a, P_WS, 6, 20); a("s_endpgm")
    a(f"v_lshlrev_b32 v{BK2}, 3, v{LANE}") if False else None
    def owner(i2, sd):
        a(f"s_add_u32 s{sd}, s3, {1+i2}"); a(f"s_and_b32 s{sd}, s{sd}, 3")
    a(f"v_mov_b32 v{BV}, v{NEED}")
    a(f"v_cmp_gt_u32 vcc, 32, v{LANE}")
    a(f"v_mov_b32 v{TA}, 0x{f32hex(QSCALE):08x}")
    a(f"s_mov_b32 s31, 0x{f32hex(QSCALE):08x}")
    a(f"s_mul_i32 s29, s3, {WSLOT}")
    a(f"v_cndmask_b32 v155, 0, v{TA}, vcc")
    a("s_mov_b64 s[60:61], vcc")
    a(f"s_add_u32 s29, s29, {L_R1 + QXO}")
    a(f"v_add_u32 v{FG2}, s29, v{L16}")
    a(f"v_add_u32 v{TB}, s29, v{BK2}")
    for i2 in range(3):
        owner(i2, 32); a(f"s_mul_i32 s32, s32, {WSLOT}"); a(f"s_add_u32 s32, s32, {L_R1 + QXO}")
        a(f"v_add_u32 v{RA[i2]}, s32, v{L16}")
    for t in range(2):
        for i in range(8): a(f"v_mul_f32 v{QACC[t]+i}, s31, v{QACC[t]+i}")
        for i in range(8, 12): a(f"v_mul_f32 v{QACC[t]+i}, v155, v{QACC[t]+i}")
        for i in range(4): a(f"v_cvt_pk_bf16_f32 v{QA[6+t]+i}, v{QACC[t]+2*i}, v{QACC[t]+2*i+1}")
        for i in range(2): a(f"v_cvt_pk_bf16_f32 v{QB[6+t]+i}, v{QACC[t]+8+2*i}, v{QACC[t]+9+2*i}")
        a.lds(f"ds_write_b128 v{FG2}, {vr(QA[6+t],4)} offset:{t*1536}", "qw")
        a.lds(f"ds_write_b64 v{TB}, {vr(QB[6+t],2)} offset:{t*1536+1024}", "qw")
    set_flag(a, TA, FWA, 9)
    a("s_cmp_eq_u32 s35, 1")
    a("s_cbranch_scc1 L_a_kvld")
    a("s_waitcnt vmcnt(0)")
    a(f"v_cmp_ne_u32 vcc, s62, v{TAG}")
    a("s_cmp_eq_u64 vcc, 0")
    a("s_cbranch_scc0 L_a_kvld")
    kv_first()
    a("s_mov_b32 s35, 1")
    a.label("L_a_kvld")
    a.vm = []
    poll_lds(a, TA, FAD, 9, "fl")
    for i2 in range(3):
        for t in range(2):
            a.lds(f"ds_read_b128 {vr(QA[2*i2+t],4)}, v{RA[i2]} offset:{t*1536}", "qr")
        a(f"v_sub_u32 v{TA}, v{RA[i2]}, v{BK2}")
        for t in range(2):
            a.lds(f"ds_read_b64 {vr(QB[2*i2+t],2)}, v{TA} offset:{t*1536+1024}", "qr")
    set_flag(a, TA, FWA, 10)
    a("s_cmp_eq_u32 s35, 1")
    a("s_cbranch_scc1 L_a_kvgo")
    poll_global(a, TAG, 1, BV, 56, "s43", "s62", sleep=4)
    kv_first()
    a.label("L_a_kvgo")
    a.vm = [("k", 0)] * 2 + [("v", 0)] * 2 + [("k", 1)] * 2 + [("v", 1)] * 2
    S_(6)
    srd(a, 92, P_WD, 1536 * 1280); srd(a, 96, P_WO, 640 * 1280)
    warm_lane(a, 154, TA, 1280, 512 // NSH // 4, 320, 3)
    share(a, 32, NSH)
    a("s_and_b32 s37, s5, 3"); a("s_mul_i32 s37, s37, 320")
    a(f"s_mul_i32 s33, s32, {320 // NSH // 4 * 1280}"); a("s_add_u32 s33, s33, s37")
    a(f"s_mul_i32 s35, s32, {512 // NSH // 4 * 1280}"); a("s_add_u32 s35, s35, s37")
    srd(a, 12, P_WS, H_BYTES, WS_H)
    a("s_mul_i32 s25, s4, 196608"); a("s_mul_i32 s26, s5, 12288"); a("s_add_u32 s25, s25, s26")
    a("s_mul_i32 s26, s3, 3072"); a("s_add_u32 s25, s25, s26"); a("s_add_u32 s26, s25, 98304")
    def cold_blk(it, lines):
        def f():
            l = a.newlabel("cw"); r = a.newlabel("cr")
            a(f"s_cmp_eq_u32 s34, {it}"); a(f"s_cbranch_scc1 {l}"); a.label(r)
            a.cold += [f"{l}:"] + ["    " + x for x in lines] + [f"    s_branch {r}"]
        return f
    sr_ = K1f[2]
    SENT = [f"v_mov_b32 v{sr_+i}, -1" for i in range(4)] + [f"buffer_store_dwordx4 {vr(sr_,4)}, v{L16}, s[20:23], s{38+2*t} offen sc1" for t in range(2)] + \
           ["s_mov_b64 exec, s[60:61]"] + [f"buffer_store_dwordx2 {vr(sr_,2)}, v{L16}, s[20:23], s{39+2*t} offen sc1" for t in range(2)] + ["s_mov_b64 exec, -1"]
    if opt.get("hsent"): SENT += [f"buffer_store_dwordx4 {vr(sr_,4)}, v{L16}, s[12:15], s{25+b} offen offset:{t*1024} sc1" for b in range(2) for t in range(3)]
    SFLG = ["s_waitcnt vmcnt(8)", "s_mov_b64 exec, 1", f"v_mov_b32 v{TA}, 12", f"ds_write_b32 v{FWA}, v{TA}", "s_mov_b64 exec, -1"]
    def cold_warm(it, which):
        def f():
            l = a.newlabel("cw"); r = a.newlabel("cr")
            a(f"s_cmp_eq_u32 s34, {it}"); a(f"s_cbranch_scc1 {l}"); a.label(r)
            if which == "d": a.cold += [f"{l}:", "    buffer_load_dword v155, v154, s[92:95], s35 offen", f"    s_add_u32 s35, s35, {512*1280}", f"    s_branch {r}"]
            else: a.cold += [f"{l}:", "    buffer_load_dword v155, v154, s[96:99], s33 offen", f"    s_add_u32 s33, s33, {320*1280}", f"    s_branch {r}"]
        return f
    for i in range(8):
        a(f"v_mov_b32 v{P[1]+i}, 0"); a(f"v_mov_b32 v{Vf[2][0]+i}, 0")
    a(f"s_mov_b32 s42, 0x{f32hex(2.0**100):08x}")
    a(f"v_lshlrev_b32 v{TB}, 2, v{LANE}")
    for i2 in range(3):
        owner(i2, 32); a("s_lshl_b32 s32, s32, 9"); a(f"s_add_u32 s32, s32, {L_MX}")
        a(f"v_add_u32 v{RA[i2]}, s32, v{TB}")
    a("s_lshl_b32 s32, s3, 9"); a(f"s_add_u32 s32, s32, {L_MX}")
    a(f"v_add_u32 v{FG2}, s32, v{TB}")
    def rowmax(t, dst, init):
        s = S[t]
        if init:
            a(f"v_max3_f32 v{dst}, v{s}, v{s+1}, v{s+2}")
            for i in range(3, 15, 2): a(f"v_max3_f32 v{dst}, v{dst}, v{s+i}, v{s+i+1}")
            a(f"v_max_f32 v{dst}, v{dst}, v{s+15}")
        else:
            for i in range(0, 16, 2): a(f"v_max3_f32 v{dst}, v{dst}, v{s+i}, v{s+i+1}")
    def embed(t, m):
        a(f"v_mov_b32 v{TB}, v{m}")
        a("s_nop 1")
        a(f"v_permlane32_swap_b32 v{m}, v{TB}")
        a("s_nop 1")
        a(f"v_max_f32 v{m}, v{m}, v{TB}")
        a(f"v_sub_f32 v{m}, 0, v{m}")
        a(f"v_cvt_pk_bf16_f32 v{TB}, v{m}, v{m}")
        a(f"v_lshlrev_b32 v{TB}, 16, v{TB}")
        a(f"v_sub_f32 v{TB}, v{m}, v{TB}")
        a(f"v_cvt_pk_bf16_f32 v{TB}, v{m}, v{TB}")
        a(f"v_cndmask_b32 v{QB[6+t]}, v{TB}, v{QB[6+t]}, s[60:61]")
    a.wait(vm=("k", 0))
    for t in range(2):
        a(f"v_mfma_f32_32x32x16_bf16 {vr(S[t],16)}, {vr(K1f[0],4)}, {vr(QA[6+t],4)}, 0")
        a(f"v_mfma_f32_32x32x8_bf16 {vr(S[t],16)}, {vr(K2f[0],2)}, {vr(QB[6+t],2)}, {vr(S[t],16)}")
    a("s_nop 7"); a("s_nop 1")
    for t in range(2):
        rowmax(t, TA, True); embed(t, TA)
        a.lds(f"ds_write_b32 v{FG2}, v{QB[6+t]} offset:{t*256}", "mw")
    a.wait(lg="mw")
    set_flag(a, FV, FWA, 11)
    poll_lds(a, FV, FAD, 11, "fl")
    for i2 in range(3):
        for t in range(2):
            a.lds(f"ds_read_b32 v{QB[2*i2+t]}, v{RA[i2]} offset:{t*256}", ("mr", 2 * i2 + t))
    for i2 in range(3):
        owner(i2, 32); a("s_mul_i32 s32, s32, 18432"); a(f"s_add_u32 s32, s32, {L_RED + i2*6144}")
        a(f"v_add_u32 v{RA[i2]}, s32, v{L16}")
    a(f"v_add_u32 v{FG2}, {L_FLAGG}, v{FAD}")
    a("s_mul_i32 s32, s3, 18432")
    a(f"s_add_u32 s32, s32, {L_RED}")
    a(f"v_add_u32 v{BV}, s32, v{L16}")
    a(f"v_mfma_f32_32x32x16_bf16 {vr(S[0],16)}, {vr(K1f[0],4)}, {vr(QA[0],4)}, 0")
    a.wait(lg="all")
    a(f"v_mfma_f32_32x32x8_bf16 {vr(S[0],16)}, {vr(K2f[0],2)}, {vr(QB[0],2)}, {vr(S[0],16)}")
    a("s_mov_b32 s34, 0")
    a("s_nop 7"); a("s_nop 1")
    a.vm = [("v", 0)] * 2 + [("k", 1)] * 2 + [("v", 1)] * 2
    S_(7); S_(10, True)
    pat = opt.get("pat", "MeeeMeeeMeeeM|eeeeeeecccccccc")
    def tile(b, last):
        for j in range(8):
            if opt.get("ts") and not last and (b == 0 or (b == 1 and j == 0)):
                ix = j if b == 0 else 8
                a(f"s_memtime s[{64+2*ix}:{65+2*ix}]")
            fill = []
            if not last:
                b2 = (b + 2) % 3
                if j in (1, 2): fill = [kld(b2, "s28", ("k", b2))[j - 1]]
                if j in (3, 4): fill = [vld(b2, "s28", ("v", b2))[j - 3]]
                if j == 5: fill = adv()
                if j == 6:
                    fill = [] if opt.get("nowarm") else [cold_warm(0, "d")] + ([cold_warm(1, "o")] if b else [])
                    if b == 0: fill += [cold_blk(1, SFLG)]
                if j == 0 and b == 0: fill = [cold_blk(0, SENT)]
            else:
                if j == 0: fill = [lambda: a.lds(f"ds_read_b32 v{FV}, v{FG2}", "fl")]
                if j == 1: fill = [lambda: poll_lds(a, FV, FG2, 4, "fl", issue=False)]
                if 2 <= j <= 7:
                    jj = j - 2
                    fill = [lambda: None] * 3 + [(lambda r=r: a.lds(f"ds_write_b128 v{RA[jj//2]}, {vr(O[jj]+4*r,4)} offset:{(jj%2)*3072+r*1024}", "ow")) for r in range(3)]
            if j == 7 and not last: a.wait(vm=("k", (b + 1) % 3))
            if j == 1: a.wait(vm=("v", b))
            kb = b if j < 7 else (b + 1) % 3
            vb = b if j > 0 else (b - 1) % 3
            aa = j % 2; o = 1 - aa
            s_, p_ = S[aa], P[aa]
            jn, jp = (j + 1) % 8, (j - 1) % 8
            M = [f"v_mfma_f32_32x32x16_bf16 {vr(S[o],16)}, {vr(K1f[kb],4)}, {vr(QA[jn],4)}, 0",
                 f"v_mfma_f32_32x32x8_bf16 {vr(S[o],16)}, {vr(K2f[kb],2)}, {vr(QB[jn],2)}, {vr(S[o],16)}",
                 f"v_mfma_f32_32x32x16_bf16 {vr(O[jp],16)}, {vr(Vf[vb][0],4)}, {vr(P[o],4)}, {vr(O[jp],16)}",
                 f"v_mfma_f32_32x32x16_bf16 {vr(O[jp],16)}, {vr(Vf[vb][1],4)}, {vr(P[o]+4,4)}, {vr(O[jp],16)}"]
            ne = nc = nm = 0
            for ch in (opt['pat2'] if opt.get('pat2') and j % opt.get('p2every', 4) == 0 else pat):
                if ch == "M":
                    if not (last and j == 7 and nm < 2): a(M[nm])
                    nm += 1
                elif ch == "e": a(f"v_exp_f32 v{s_+ne}, v{s_+ne}"); ne += 1
                elif ch == "c": a(f"v_cvt_pk_bf16_f32 v{p_+nc}, v{s_+2*nc}, v{s_+2*nc+1}"); nc += 1
                elif ch == "|": a.sprinkle(fill, opt.get("fevery", 1), "v_")
                elif ch == "<": a("s_setprio 3")
                elif ch == ">": a("s_setprio 0")
            a.flush_pend()
    top_vm = list(a.vm)
    a.raw(".p2align 6")
    a.label("L_a_loop")
    tile(0, False); tile(1, False); tile(2, False)
    if opt.get("its"):
        for it, ix in ((0, 1), (1, 2), (2, 3), (3, 4), (4, 5)):
            l = a.newlabel("it"); a(f"s_cmp_lg_u32 s34, {it}"); a(f"s_cbranch_scc1 {l}"); S0_(ix, True); a(f"s_sub_u32 s{44+ix}, s{44+ix}, s54"); a(f"s_mul_i32 s{44+ix}, s{44+ix}, 100"); a(f"s_add_u32 s{44+ix}, s{44+ix}, s44"); a.label(l)
    a("s_add_u32 s34, s34, 1")
    a("s_cmp_lt_u32 s34, 5")
    a("s_cbranch_scc1 L_a_loop")
    assert a.vm == top_vm, (a.vm, top_vm)
    tile(0, True)
    a("s_nop 0")
    a(f"v_mfma_f32_32x32x16_bf16 {vr(O[7],16)}, {vr(Vf[0][0],4)}, {vr(P[1],4)}, {vr(O[7],16)}")
    a(f"v_mfma_f32_32x32x16_bf16 {vr(O[7],16)}, {vr(Vf[0][1],4)}, {vr(P[1]+4,4)}, {vr(O[7],16)}")
    a.wait(lg="ow")
    set_flag(a, FV, FWA, 13)
    if st:
        S_(8); S_(11, True); a("s_sub_u32 s54, s55, s54"); a("s_mov_b32 s55, 0")
        if opt.get("ts"):
            for i in range(1, 8):
                a(f"s_sub_u32 s{44+i}, s{64+2*i}, s{62+2*i}"); a(f"s_mul_i32 s{44+i}, s{44+i}, 100"); a(f"s_add_u32 s{44+i}, s{44+i}, s44")
    poll_lds(a, FV, FAD, 13, "fl")
    RR = 16
    RR = O[0]
    if opt.get("tst"): S0_(1)
    for src in range(3):
        for t in range(2):
            for r in range(3):
                a.lds(f"ds_read_b128 {vr(RR+24*src+12*t+4*r,4)}, v{BV} offset:{src*6144+t*3072+r*1024}", ("or", src))
    for src in range(3):
        a.wait(lg=("or", src))
        for i in range(0, 24, 2):
            a(f"v_pk_add_f32 {vr(O[6]+i,2)}, {vr(O[6]+i,2)}, {vr(RR+24*src+i,2)}")
    a(f"v_add_f32_e64 v{TA}, |v{O[6]}|, |v{O[6]+1}|")
    for i in range(2, 24): a(f"v_add_f32_e64 v{TA}, v{TA}, |v{O[6]+i}|")
    a(f"v_cmp_ngt_f32 vcc, s42, v{TA}")
    a("s_cmp_eq_u64 vcc, 0")
    a("s_cbranch_scc0 L_a_fallback")
    a.label("L_a_norm")
    if opt.get("tst"): S0_(2)
    a(f"v_mov_b32 v{FG2}, {BIG}")
    a(f"v_cndmask_b32 v{FG2}, v{FG2}, v{L16}, s[60:61]")
    for t in range(2):
        oo = O[6 + t]
        a(f"v_mov_b32 v{TA}, v{oo+8}")
        a(f"v_mov_b32 v{TB}, v{oo+8}")
        a("s_nop 1")
        a(f"v_permlane32_swap_b32 v{TA}, v{TB}")
        a("s_nop 1")
        a(f"v_rcp_f32 v{TB}, v{TB}")
        a("s_nop 0")
        for i in range(12): a(f"v_mul_f32 v{oo+i}, v{oo+i}, v{TB}")
        for i in range(6): a(f"v_cvt_pk_bf16_f32 v{S[t]+i}, v{oo+2*i}, v{oo+2*i+1}")
        a(f"buffer_store_dwordx4 {vr(S[t],4)}, v{L16}, s[20:23], s{38+2*t} offen sc1")
        a(f"buffer_store_dwordx2 {vr(S[t]+4,2)}, v{FG2}, s[20:23], s{39+2*t} offen sc1")
    if opt.get("tst"): S0_(3)
    if st:
        S_(9); st.flush(a, P_WS, 6, 20)
    a("s_endpgm")
    a.label("L_a_fallback")
    a("s_waitcnt vmcnt(0) lgkmcnt(0)")
    M = [RA[0], RA[1]]
    FO = [156, 172]
    for t in range(2):
        a(f"v_mov_b32 v{M[t]}, 0xff800000")
        a(f"v_cndmask_b32 v{QB[6+t]}, v{ZERO}, v{QB[6+t]}, s[60:61]")
    a("s_mov_b32 s43, 0")
    a.label("L_a_fb1")
    for f in kld(0, "s43", None): f()
    a("s_waitcnt vmcnt(0)")
    for t in range(2):
        a(f"v_mfma_f32_32x32x16_bf16 {vr(S[t],16)}, {vr(K1f[0],4)}, {vr(QA[6+t],4)}, 0")
        a(f"v_mfma_f32_32x32x8_bf16 {vr(S[t],16)}, {vr(K2f[0],2)}, {vr(QB[6+t],2)}, {vr(S[t],16)}")
    a("s_nop 7"); a("s_nop 7")
    for t in range(2): rowmax(t, M[t], False)
    a("s_add_u32 s43, s43, 3072")
    a(f"s_cmp_lt_u32 s43, {KV_BYTES}")
    a("s_cbranch_scc1 L_a_fb1")
    NEG = [188, 204]
    for t in range(2):
        a(f"v_mov_b32 v{TB}, v{M[t]}")
        a("s_nop 1")
        a(f"v_permlane32_swap_b32 v{M[t]}, v{TB}")
        a("s_nop 1")
        a(f"v_max_f32 v{M[t]}, v{M[t]}, v{TB}")
        for i in range(16):
            a(f"v_sub_f32 v{NEG[t]+i}, 0, v{M[t]}"); a(f"v_mov_b32 v{FO[t]+i}, 0")
    a("s_mov_b32 s43, 0")
    a.label("L_a_fb2")
    for f in kld(0, "s43", None) + vld(0, "s43", None): f()
    a("s_waitcnt vmcnt(0)")
    for t in range(2):
        a(f"v_mfma_f32_32x32x16_bf16 {vr(S[t],16)}, {vr(K1f[0],4)}, {vr(QA[6+t],4)}, {vr(NEG[t],16)}")
        a(f"v_mfma_f32_32x32x8_bf16 {vr(S[t],16)}, {vr(K2f[0],2)}, {vr(QB[6+t],2)}, {vr(S[t],16)}")
    a("s_nop 7"); a("s_nop 7")
    for t in range(2):
        for r in range(16): a(f"v_exp_f32 v{S[t]+r}, v{S[t]+r}")
        a("s_nop 0")
        for i in range(8): a(f"v_cvt_pk_bf16_f32 v{P[t]+i}, v{S[t]+2*i}, v{S[t]+2*i+1}")
        a("s_nop 1")
        a(f"v_mfma_f32_32x32x16_bf16 {vr(FO[t],16)}, {vr(Vf[0][0],4)}, {vr(P[t],4)}, {vr(FO[t],16)}")
        a(f"v_mfma_f32_32x32x16_bf16 {vr(FO[t],16)}, {vr(Vf[0][1],4)}, {vr(P[t]+4,4)}, {vr(FO[t],16)}")
    a("s_add_u32 s43, s43, 3072")
    a(f"s_cmp_lt_u32 s43, {KV_BYTES}")
    a("s_cbranch_scc1 L_a_fb2")
    a("s_nop 7"); a("s_nop 7")
    for t in range(2):
        for i in range(12): a(f"v_mov_b32 v{O[6+t]+i}, v{FO[t]+i}")
    a("s_branch L_a_norm")

def gen_g(a, S0_, st, opt, NSH):
    E_ = (lambda i: S0_(i)) if opt.get("early") else (lambda i: None)
    S_ = (lambda i, cyc=False: S0_(i, cyc) if (not opt.get("early") or i < 6 or i == 9) else None)
    E_(6)
    TAG = 11
    X = 16; U = 32; SUM, SQ = 12, 14
    a("s_setprio 3")
    a(f"v_lshrrev_b32 v{TA}, 5, v{LANE}")
    a(f"v_mul_u32_u24 v{TA}, 1280, v{TA}")
    a(f"v_and_b32 v{TB}, 31, v{LANE}")
    a(f"v_lshl_add_u32 v56, v{TB}, 4, v{TA}")
    a(f"v_mov_b32 v9, {BIG}")
    a(f"v_cmp_gt_u32 vcc, 16, v{TB}")
    a("s_lshl_b32 s28, s4, 3")
    a("s_add_u32 s28, s28, s5")
    a("v_cndmask_b32 v57, v9, v56, vcc")
    a("s_lshl_b32 s7, s28, 2")
    a("s_add_u32 s7, s7, s3")
    a("s_mul_i32 s7, s7, 2560")
    a("s_mov_b64 s[60:61], vcc")
    a.vmem(f"buffer_load_dwordx4 {vr(X,4)}, v56, s[8:11], s7 offen", ("x", 0))
    a.vmem(f"buffer_load_dwordx4 {vr(X+4,4)}, v56, s[8:11], s7 offen offset:512", ("x", 1))
    a.vmem(f"buffer_load_dwordx4 {vr(X+8,4)}, v57, s[8:11], s7 offen offset:1024", ("x", 2))
    a("s_barrier")
    a("s_cmp_ge_u32 s3, 2")
    a(f"s_cselect_b32 s12, s{P_WV}, s{P_WK}")
    a(f"s_cselect_b32 s13, s{P_WV+1}, s{P_WK+1}")
    a("s_mov_b32 s14, 25600"); a("s_mov_b32 s15, 0x00020000")
    a(f"s_cselect_b32 s24, {L_WV-L_WK}, 0")
    a(f"s_add_u32 s24, s24, {L_WK}")
    a("s_and_b32 s25, s3, 1")
    a("s_lshl_b32 s25, s25, 10")
    a("s_add_u32 s24, s24, s25")
    for j in range(13):
        a(f"s_add_u32 m0, s24, {j*2048}")
        a("s_nop 0")
        a.vmem(f"buffer_load_dwordx4 v{L16}, s[12:15], s25 offen lds", "wkv")
        a("s_add_u32 s25, s25, 2048")
    X2 = 216; U2 = 64
    a(f"v_and_b32 v{TB}, 31, v{LANE}")
    a(f"v_and_b32 v{TA}, 3, v{LANE}")
    a(f"v_lshlrev_b32 v{FAD}, 2, v{TA}")
    a(f"v_add_u32 v{FAD}, {L_FLAGG}, v{FAD}")
    a("s_lshl_b32 s30, s3, 2")
    a(f"s_add_u32 s30, s30, {L_FLAGG}")
    a(f"v_mov_b32 v{FWA}, s30")
    GQ, WA, XA, J, XW = 58, 59, 60, 61, 62
    a(f"v_lshrrev_b32 v{GQ}, 4, v{LANE}")
    a(f"v_bfe_u32 v{WA}, v{LANE}, 2, 2")
    a(f"v_lshl_add_u32 v{WA}, v{GQ}, 3, v{WA}")
    a(f"v_mul_u32_u24 v{WA}, 40, v{WA}")
    a(f"v_lshlrev_b32 v{TA}, 3, v{TA}")
    a("s_cmp_ge_u32 s3, 2")
    a("s_cselect_b32 s24, 0, -1")
    a("s_cselect_b32 s25, 32, 0")
    a("s_bitcmp1_b32 s3, 0")
    a(f"s_cselect_b32 s26, {L_WV-L_WK}, 0")
    a(f"s_add_u32 s26, s26, {L_WK}")
    a("s_add_u32 s25, s25, s26")
    a(f"v_and_b32 v{TA}, s24, v{TA}")
    a(f"v_add3_u32 v{WA}, v{WA}, v{TA}, s25")
    a("s_lshr_b32 s26, s5, 2")
    a(f"s_mul_i32 s26, s26, {XNT}")
    a("s_and_b32 s27, s5, 3")
    a("s_lshl_b32 s27, s27, 7")
    a("s_add_u32 s26, s26, s27")
    a(f"s_add_u32 s26, s26, {L_XN}")
    a(f"v_and_b32 v{TA}, 7, v{LANE}")
    a(f"v_mul_u32_u24 v{XA}, 528, v{GQ}")
    a(f"v_lshl_add_u32 v{XA}, v{TA}, 4, v{XA}")
    a(f"v_add_u32 v{XA}, s26, v{XA}")
    a("s_lshl_b32 s27, s3, 5")
    a("s_add_u32 s27, s27, s26")
    a(f"v_mul_u32_u24 v{XW}, 528, v{TB}")
    a(f"v_lshrrev_b32 v{TA}, 5, v{LANE}")
    a(f"v_lshl_add_u32 v{XW}, v{TA}, 4, v{XW}")
    a(f"v_add_u32 v{XW}, s27, v{XW}")
    srd(a, 24, P_WS, KV_BYTES, WS_KV)
    srd(a, 56, P_WS, FL_BYTES, WS_FL)
    srd(a, 16, P_WG, 640 * 3072)
    srd(a, 20, P_WU, 640 * 3072)
    a("s_lshr_b32 s29, s28, 2")
    a("s_mul_i32 s29, s29, 3072")
    a("s_bfe_u32 s30, s28, 0x10001")
    a("s_and_b32 s31, s28, 1")
    a(f"v_and_b32 v{J}, 15, v{LANE}")
    a("s_bitcmp1_b32 s3, 0")
    a("s_cbranch_scc1 L_g_va")
    a("s_lshl_b32 s32, s30, 4"); a("s_lshl_b32 s33, s31, 2"); a("s_add_u32 s32, s32, s33")
    a(f"v_lshrrev_b32 v30, 2, v{J}")
    a("v_lshlrev_b32 v30, 3, v30")
    a(f"v_and_b32 v28, 3, v{J}")
    a("v_add3_u32 v30, v30, v28, s32")
    a(f"v_lshrrev_b32 v28, 1, v{GQ}")
    a("v_lshlrev_b32 v28, 9, v28")
    a("v_lshl_add_u32 v28, v30, 4, v28")
    a(f"v_and_b32 v31, 1, v{GQ}")
    a("v_lshl_add_u32 v28, v31, 3, v28")
    a("v_lshlrev_b32 v31, 3, v30")
    a(f"v_lshl_add_u32 v31, v{GQ}, 8, v31")
    a("v_add_u32 v31, 1024, v31")
    a(f"v_cmp_gt_u32 vcc, 2, v{GQ}")
    a("v_mov_b32 v29, 0x3f803f80")
    a("v_mov_b32 v57, 0")
    a("v_cndmask_b32 v31, v9, v31, vcc")
    a(f"v_cmp_eq_u32 s[40:41], 1, v{GQ}")
    a("s_cmp_ge_u32 s3, 2")
    a("s_cselect_b64 vcc, -1, 0")
    a("s_cselect_b64 s[40:41], s[40:41], 0")
    a("v_cndmask_b32 v28, v28, v31, vcc")
    a(f"v_cmp_gt_u32 vcc, 8, v{J}")
    a("s_nop 1")
    a("v_cndmask_b32 v28, v9, v28, vcc")
    a("s_branch L_g_vb")
    a.label("L_g_va")
    a("s_mul_i32 s32, s30, 768"); a("s_mul_i32 s33, s31, 384"); a("s_add_u32 s32, s32, s33"); a("s_add_u32 s32, s32, 1536")
    a(f"v_and_b32 v30, 3, v{J}")
    a(f"v_bfe_u32 v28, v{J}, 2, 1")
    a("v_lshl_add_u32 v30, v28, 3, v30")
    a(f"v_bfe_u32 v28, v{J}, 3, 1")
    a("v_lshl_add_u32 v30, v28, 2, v30")
    a(f"v_add_u32 v28, 16, v{J}")
    a("s_cmp_ge_u32 s3, 2")
    a("s_cselect_b64 vcc, -1, 0")
    a("s_cselect_b32 s33, 6, 16")
    a("s_cselect_b32 s34, 4, 99")
    a("s_cselect_b32 s35, 5, 99")
    a("v_cndmask_b32 v30, v30, v28, vcc")
    a("v_lshlrev_b32 v30, 4, v30")
    a(f"v_lshl_add_u32 v30, v{GQ}, 3, v30")
    a("v_add_u32 v30, s32, v30")
    a(f"v_cmp_gt_u32 vcc, s33, v{J}")
    a("v_mov_b32 v29, 0x3f803f80")
    a("s_nop 0")
    a("v_cndmask_b32 v30, v9, v30, vcc")
    a(f"v_cmp_gt_u32 vcc, 2, v{GQ}")
    a("s_nop 1")
    a("v_cndmask_b32 v28, v9, v30, vcc")
    a(f"v_cmp_eq_u32 s[40:41], s35, v{J}")
    a(f"v_cmp_eq_u32 vcc, s34, v{J}")
    a("s_nop 1")
    a(f"v_cndmask_b32 v29, v29, v{ZERO}, s[40:41]")
    a("s_or_b64 s[40:41], vcc, s[40:41]")
    a("v_mov_b32 v57, v29")
    a.label("L_g_vb")
    a("s_min_u32 s42, s3, 2")
    a("s_add_u32 s42, s42, 4")
    ln_group(a, 42, 43, 42, 56, 63)
    wq_offsets(a, 144)
    srd(a, 92, P_WQ, 640 * 1280)
    a("s_mul_i32 s42, s5, 160")
    S_(1)
    def hook(i):
        if i == 0:
            S_(2)
            a.vmem(f"buffer_load_dword v{TAG}, v{ZERO}, s[88:91], 0 offen sc1", "tag")
    ln_stats(a, X, U, 3, SUM, SQ, lambda i: ("x", i), hook)
    dpp_sum(a, [SUM, SQ], ("quad_perm:[1,0,3,2]", "quad_perm:[2,3,0,1]", "row_half_mirror", "row_mirror"))
    a(f"v_mov_b32 v{SUM+1}, v{SUM}"); a(f"v_mov_b32 v{SQ+1}, v{SQ}")
    a("s_nop 1")
    a(f"v_permlane16_swap_b32 v{SUM}, v{SUM+1}")
    a(f"v_permlane16_swap_b32 v{SQ}, v{SQ+1}")
    a("s_nop 1")
    a(f"v_add_f32 v{SUM}, v{SUM}, v{SUM+1}")
    a(f"v_add_f32 v{SQ}, v{SQ}, v{SQ+1}")
    ln_finish(a, SUM, SQ)
    for i in range(3):
        for d in range(4):
            pp = vr(U + 8 * i + 2 * d, 2)
            a(f"v_pk_fma_f32 {pp}, {pp}, {vr(SQ,2)}, {vr(SUM,2)}")
        for d in range(4):
            a(f"v_cvt_pk_bf16_f32 v{X+4*i+d}, v{U+8*i+2*d}, v{U+8*i+2*d+1}")
        if i == 2: a("s_mov_b64 exec, s[60:61]")
        a.lds(f"ds_write_b128 v{XW}, {vr(X+4*i,4)} offset:{i*16896}", "xw")
        if i == 2: a("s_mov_b64 exec, -1")
    for i in range(10):
        a.vmem(f"buffer_load_dwordx4 {vr(X2+4*i,4)}, v56, s[8:11], s43 offen offset:{128*i}", ("x2", i))
    a.wait(vm="wkv")
    set_flag(a, FV, FWA, 1)
    poll_lds(a, FV, FAD, 1, "fl")
    S_(3)
    KA = 16
    def rd(s):
        b = 64 + (s % 10) * 8
        a.lds(f"ds_read_b64_tr_b16 v[{b}:{b+1}], v{WA} offset:{s*1280}", ("g", s))
        a.lds(f"ds_read_b64_tr_b16 v[{b+2}:{b+3}], v{WA} offset:{s*1280+160}", ("g", s))
        a.lds(f"ds_read_b128 v[{b+4}:{b+7}], v{XA} offset:{s*2112}", ("g", s))
    a("s_bitcmp1_b32 s3, 0")
    a("s_cbranch_scc1 L_g_v")
    sv = (list(a.vm), list(a.lg))
    for role in ("k", "v"):
        if role == "v":
            a.label("L_g_v"); a.vm, a.lg = list(sv[0]), list(sv[1])
        for s_ in range(5): rd(s_)
        for s_ in range(20):
            a.wait(lg=("g", s_))
            if s_ + 5 < 20: rd(s_ + 5)
            b = 64 + (s_ % 10) * 8
            cin = vr(KA, 4) if s_ else "0"
            if role == "k": a(f"v_mfma_f32_16x16x32_bf16 {vr(KA,4)}, v[{b}:{b+3}], v[{b+4}:{b+7}], {cin}")
            else: a(f"v_mfma_f32_16x16x32_bf16 {vr(KA,4)}, v[{b+4}:{b+7}], v[{b}:{b+3}], {cin}")
        if role == "k": a("s_branch L_g_kvst")
    a.label("L_g_kvst")
    set_flag(a, FV, FWA, 2)
    a("s_nop 3")
    a(f"v_cvt_pk_bf16_f32 v24, v{KA}, v{KA+1}")
    a(f"v_cvt_pk_bf16_f32 v25, v{KA+2}, v{KA+3}")
    a("v_cndmask_b32 v24, v24, v29, s[40:41]")
    a("v_cndmask_b32 v25, v25, v57, s[40:41]")
    a.vmem("buffer_store_dwordx2 v[24:25], v28, s[24:27], s29 offen sc1", "kvst")
    S_(4)
    def g3_wq(g0, n):
        for g in range(g0, g0 + n):
            a(f"s_add_u32 m0, 0, {L_R1 + SLOT(g)*5120}")
            a(f"s_add_u32 s43, s42, {g*40960}")
            for i in range(4):
                a(f"buffer_load_dwordx4 v{144+i}, s[92:95], s43 offen offset:{i*1024} lds")
            a(f"s_add_u32 m0, 0, {L_R1 + SLOT(g)*5120+4096}")
            a("s_nop 0")
            a(f"buffer_load_dwordx4 v148, s[92:95], s43 offen lds")
    a("s_cmp_eq_u32 s3, 3")
    a("s_cbranch_scc1 L_g_noln")
    ln_stats(a, X2, U2, 10, SUM, SQ, lambda i: ("x2", i))
    dpp_sum(a, [SUM, SQ], ("quad_perm:[1,0,3,2]", "quad_perm:[2,3,0,1]", "row_half_mirror"))
    ln_finish(a, SUM, SQ)
    ln_write(a, X2, U2, SUM, SQ, 63)
    set_flag(a, FV, FWA, 3)
    a("s_waitcnt vmcnt(0)")
    a("s_branch L_g_ln1")
    a.label("L_g_noln")
    a.lg = []
    set_flag(a, FV, FWA, 3)
    poll_lds(a, FV, FAD, 2, "fl")
    g3_wq(5, 10)
    a("s_waitcnt vmcnt(50)")
    a.label("L_g_ln1")
    a.vm = []
    tag_check(a, TAG)
    a(f"v_mov_b32 v{TA}, s62")
    a("s_lshl_b32 s36, s28, 4")
    a("s_mov_b64 exec, 1")
    a(f"v_mov_b32 v{FV}, 1")
    a(f"ds_add_rtn_u32 v{FV}, v{ZERO}, v{FV} offset:{L_CNTKV}")
    a("s_waitcnt lgkmcnt(0)"); a.lg = []
    a(f"v_cmp_eq_u32 vcc, 3, v{FV}")
    a("s_and_b64 exec, exec, vcc")
    a("s_cbranch_execz L_g_nokvflag")
    a(f"buffer_store_dword v{TA}, v{ZERO}, s[56:59], s36 offen sc1")
    a.label("L_g_nokvflag")
    a("s_mov_b64 exec, -1")
    S_(5)
    a("s_cmp_lg_u32 s3, 3")
    a("s_cbranch_scc1 L_g_ln2")
    a(f"v_subrev_u32 v{TB}, {L_FLAGG}, v{FAD}")
    a("s_waitcnt vmcnt(0)")
    set_flag(a, FV, ZERO, 1, off=L_WQF)
    poll_lds(a, FV, TB, 4, "fl")
    g3_wq(15, 5)
    a("s_waitcnt vmcnt(0)")
    set_flag(a, FV, ZERO, 2, off=L_WQF)
    a.label("L_g_ln2")
    WO = [12, 13, 14]; WT, XA0, XA1 = 15, 9, 242
    for i in range(3):
        a(f"v_add_u32 v{WO[i]}, {64*i}, v{LANE}")
        a(f"v_mul_u32_u24 v{TA}, 171, v{WO[i]}")
        a(f"v_lshrrev_b32 v{TA}, 10, v{TA}")
        a(f"v_mul_u32_u24 v{TB}, 6, v{TA}")
        a(f"v_sub_u32 v{TB}, v{WO[i]}, v{TB}")
        a(f"v_mul_u32_u24 v{TA}, 3072, v{TA}")
        a(f"v_lshl_add_u32 v{WO[i]}, v{TB}, 4, v{TA}")
        if i: a(f"v_subrev_u32 v{WO[i]}, {1024*i}, v{WO[i]}")
    a("s_mul_i32 s32, s5, 384")
    a("s_mul_i32 s33, s3, 96")
    a("s_add_u32 s32, s32, s33")
    a(f"s_mul_i32 s33, s3, {WSLOT}")
    a(f"s_add_u32 s33, s33, {L_R1}")
    a("s_waitcnt lgkmcnt(0)"); a.lg = []
    wcount = {}
    def w_parts(u):
        sl = WSO[WMAP(u)]
        def mk(m, i):
            def f():
                if i == 0:
                    a(f"s_add_u32 m0, s33, {sl + m*3200}"); a("s_nop 0")
                a.vmem(f"buffer_load_dwordx4 v{WO[i]}, s[{16+4*m}:{19+4*m}], s32 offen offset:{i*1024} lds", ("w", u))
                if m == 1 and i == 2: a("s_add_u32 s32, s32, 98304")
                wcount[u] = wcount.get(u, 0) + 1
            return f
        return [mk(m, i) for m in range(2) for i in range(3)]
    def gwarm():
        warm(a, [16, 20], 3072, 640 // NSH // 4, 384, ("s5", 384), NSH, TA, 60, 61, 3)
    if opt.get("wwarm") == "b": gwarm()
    if opt.get("wwarm") == "c":
        a(f"v_mov_b32 v{TB}, {L_WQF}")
        poll_lds(a, FV, TB, 2, "fl")
        gwarm()
    AFL = 11
    a(f"v_subrev_u32 v{AFL}, {L_FLAGG}, v{FAD}")
    a(f"v_lshrrev_b32 v{TB}, 5, v{LANE}")
    a(f"v_bfe_u32 v{WT}, v{LANE}, 2, 2")
    a(f"v_lshl_add_u32 v{WT}, v{TB}, 3, v{WT}")
    a(f"v_mul_u32_u24 v{229}, 320, v{WT}")
    a(f"v_mul_u32_u24 v{WT}, 96, v{WT}")
    a(f"v_mul_u32_u24 v{XA0}, 528, v{TB}")
    a(f"v_mul_u32_u24 v{230}, 40, v{TB}")
    a(f"v_and_b32 v{TB}, 1, v{LANE}")
    a(f"v_lshl_add_u32 v{WT}, v{TB}, 4, v{WT}")
    a(f"v_bfe_u32 v{TB}, v{LANE}, 1, 1")
    a(f"v_lshl_add_u32 v{WT}, v{TB}, 3, v{WT}")
    a(f"v_bfe_u32 v{TB}, v{LANE}, 4, 1")
    a(f"v_mul_u32_u24 v{TA}, 3200, v{TB}")
    a(f"v_add3_u32 v{WT}, v{WT}, v{TA}, s33")
    DO = 232; DO2 = 237; XR = 242; DT, PA, OA, DT2 = 252, 253, 254, 255
    a(f"v_and_b32 v{TA}, 3, v{LANE}")
    a(f"v_lshl_add_u32 v{TA}, v{TB}, 2, v{TA}")
    a("s_lshl_b32 s29, s3, 1")
    a(f"v_add_u32 v{TA}, s29, v{TA}")
    a(f"v_and_b32 v{TA}, 7, v{TA}")
    a(f"v_mul_u32_u24 v{TA}, 40, v{TA}")
    a("s_mov_b32 s29, s33")
    a(f"v_add3_u32 v{DT}, v229, v{TA}, s29")
    a(f"v_and_b32 v{TA}, 7, v{LANE}")
    a(f"v_lshlrev_b32 v{PA}, 4, v{TA}")
    a(f"v_and_b32 v{TA}, 31, v{LANE}")
    a(f"v_lshl_add_u32 v{XA0}, v{TA}, 4, v{XA0}")
    a(f"v_add_u32 v{XA0}, {L_XN}, v{XA0}")
    a(f"v_add_u32 v{XA1}, {XNT}, v{XA0}")
    a(f"v_mul_u32_u24 v{TA}, 1280, v{TA}")
    a(f"v_add_u32 v{OA}, v230, v{TA}")
    for i in range(5):
        a(f"v_add_u32 v{TA}, {64*i}, v{LANE}")
        a(f"v_mul_u32_u24 v{TB}, 205, v{TA}")
        a(f"v_lshrrev_b32 v{TB}, 12, v{TB}")
        a(f"v_mul_u32_u24 v{DO+i}, 20, v{TB}")
        a(f"v_sub_u32 v{TA}, v{TA}, v{DO+i}")
        a(f"v_lshlrev_b32 v{TA}, 4, v{TA}")
        if 0 < i < 4: a(f"v_subrev_u32 v{TA}, {1024*i}, v{TA}")
        a(f"v_mul_u32_u24 v{DO+i}, 1280, v{TB}")
        a(f"v_add_u32 v{DO+i}, v{DO+i}, v{TA}")
        a(f"v_lshrrev_b32 v{TB}, 2, v{TB}")
        a(f"v_add_u32 v{TB}, 1, v{TB}")
        a(f"v_mul_u32_u24 v{TB}, 20480, v{TB}")
        a(f"v_add_u32 v{DO2+i}, v{DO+i}, v{TB}")
    srd(a, 24, P_WS, H_BYTES, WS_H)
    srd(a, 12, P_WS, O_BYTES, WS_O)
    srd(a, 92, P_WD, 1536 * 1280)
    srd(a, 96, P_WO, 640 * 1280)
    a("s_mul_i32 s26, s5, 12288") if False else None
    a("s_lshl_b32 s36, s4, 1")
    a("s_mul_i32 s36, s36, 98304")
    a("s_mul_i32 s37, s5, 12288")
    a("s_mul_i32 s7, s3, 3072")
    a("s_add_u32 s7, s7, s37")
    a("s_add_u32 s36, s36, s7")
    a("s_add_u32 s37, s36, 98304")
    a("s_and_b32 s38, s5, 3")
    a(f"v_and_b32 v{TA}, 7, v{LANE}")
    a(f"v_lshlrev_b32 v{TA}, 2, v{TA}")
    poll_lds(a, FV, TA, 3, "fl")
    poll_lds(a, FV, AFL, opt.get("wstart", 8), "fl")
    a(f"s_setprio {opt['prioG']}")
    S_(6)
    a.raw("; @@G_MAIN_BEGIN")
    ACC = [[16 + 16 * (3 * b + t) for t in range(3)] for b in range(2)]
    FR = 112
    def f1parts(k):
        b = FR + (k % 2) * 20
        off = WSO[WMAP(k // 2)] + (k % 2) * 1536
        def B(i): return lambda: a.lds(f"ds_read_b128 {vr(b+4*i,4)}, v{XA1 if i else XA0} offset:{k*1056}", ("fb", k, i))
        def A_(t, hf):
            def f():
                if t == 0 and hf == 0:
                    while wcount.get(k // 2, 0) < 6: pend.pop(0)()
                    a.wait(vm=("w", k // 2))
                a.lds(f"ds_read_b64_tr_b16 {vr(b+8+4*t+2*hf,2)}, v{WT} offset:{off+t*32+hf*384}", ("fa", k, t))
            return f
        return [B(0), A_(0, 0), A_(0, 1), A_(1, 0), A_(1, 1), A_(2, 0), A_(2, 1), B(1)]
    a("s_mul_i32 s38, s38, 320")
    a("s_mul_i32 s39, s7, 20")
    a("s_add_u32 s39, s39, s38")
    a("s_mul_i32 s40, s3, 204800")
    a("s_add_u32 s40, s40, s38")
    a("s_mov_b32 s41, s40")
    def adv_d(so, k):
        if k % 3 == 2:
            a(f"s_add_u32 {so}, {so}, 204800"); a(f"s_sub_u32 s60, {so}, 1966080"); a(f"s_cmp_ge_u32 {so}, 1966080"); a(f"s_cselect_b32 {so}, s60, {so}")
        else: a(f"s_add_u32 {so}, {so}, 20480")
    def d_parts(k):
        sl = DS(k)
        if k < 24: sd, so, vo = "s[92:95]", "s39", DO
        elif k < 32: sd, so, vo = "s[96:99]", "s40", DO
        else: sd, so, vo = "s[96:99]", "s41", DO2
        def mk(i):
            def f():
                if i in (0, 4):
                    a(f"s_add_u32 m0, s29, {sl + (4096 if i == 4 else 0)}"); a("s_nop 0")
                a.vmem(f"buffer_load_dwordx4 v{vo+i}, {sd}, {so} offen" + (f" offset:{i*1024}" if i < 4 else "") + " lds", ("d", k))
                if i == 4:
                    if k < 24 and k % 3 == 2:
                        a("s_add_u32 s39, s39, 204800")
                        a("s_sub_u32 s60, s39, 1966080")
                        a("s_cmp_ge_u32 s39, 1966080")
                        a("s_cselect_b32 s39, s60, s39")
                    else:
                        a(f"s_add_u32 {so}, {so}, {20480 if k < 24 else (25600 if k < 32 else 102400)}")
            return f
        return [mk(i) for i in range(5)]
    def d_dma(k):
        for f in d_parts(k): f()
    a("s_lshl_b32 s30, s4, 9")
    a("s_lshl_b32 s31, s3, 7")
    a("s_add_u32 s30, s30, s31")
    a("s_lshl_b32 s42, s5, 4")
    a("s_add_u32 s42, s42, s30")
    a(f"s_add_u32 s42, s42, {FL_H}")
    a(f"s_add_u32 s30, s30, {FL_H}")
    SFR = 152
    def hflag(w):
        if w: a.wait(vm="hst")
        a("s_mov_b64 exec, 1")
        a.vmem(f"buffer_store_dword v153, v{ZERO}, s[56:59], s42 offen sc1", "hfl")
        a("s_mov_b64 exec, -1")
    PF = 152; NPF = opt.get("npf", 0)
    def pf_parts(k):
        def mk(i):
            def f():
                a.vmem(f"buffer_load_dwordx4 {vr(PF+20*(k-3)+4*i,4)}, v{DO+i}, s[92:95], s34 offen" + (f" offset:{i*1024}" if i < 4 else ""), ("pf", k))
                if i == 4: adv_d("s34", k)
            return f
        return [mk(i) for i in range(5)]
    def pf_write(k):
        def mk(i):
            def f():
                if i == 0: a.wait(vm=("pf", k))
                a.lds(f"ds_write_b128 v{DT2}, {vr(PF+20*(k-3)+4*i,4)} offset:{DS(k)+i*1024}", ("pw", k))
                if i == 4 and k == 2 + NPF: a("s_mov_b32 s39, s34")
            return f
        a.done.add(("d", k))
        return [mk(i) for i in range(5)]
    a(f"v_add_u32 v{DT2}, s29, v{L16}")
    a("s_add_u32 s34, s39, 40960"); adv_d("s34", 2)
    PFL = [f for k in range(3, 3 + NPF) for f in pf_parts(k)]
    pend = []
    for f in w_parts(0): f()
    if opt.get("wstart", 8) >= 6:
        for f in w_parts(1): f()
    else: pend += [lambda: poll_lds(a, FV, AFL, 6, "fl")] + w_parts(1)
    for f in f1parts(0): f()
    for k in range(40):
        b = FR + (k % 2) * 20
        rd_ = f1parts(k + 1) if k + 1 < 40 else []
        if k == 1: pend += [lambda: poll_lds(a, FV, AFL, 10, "fl")] + w_parts(2)
        if k % 2 == 0 and k >= 2 and k // 2 + 2 < 20: pend += w_parts(k // 2 + 2)
        if k % 2 == 1 and k >= opt.get("pfk", 25) and PFL: pend += PFL[:3]; PFL = PFL[3:]
        if k == 36: pend += d_parts(0)
        if k == 38: pend += d_parts(1)
        if opt.get("hsent"):
            if k == 24: pend += [lambda: poll_lds(a, FV, AFL, 12, "fl"), lambda: hflag(False)]
            if k == 34: pend += [lambda: a.vmem(f"buffer_load_dword v{SFR}, v{PA}, s[56:59], s30 offen sc1", "sfr")]
        elif k == 37: pend += [lambda: poll_lds(a, FV, AFL, 12, "fl")]
        if opt.get("f1st") and k in (1, 10, 20, 30): S0_({1: 1, 10: 2, 20: 3, 30: 4}[k])
        cut = [0, 2, 4, 5, 6, 7, 8]
        i = 0
        for bb in range(2):
            for t in range(3):
                a.wait(lg=[("fb", k, bb), ("fa", k, t)])
                a(f"v_mfma_f32_32x32x16_bf16 {vr(ACC[bb][t],16)}, {vr(b+8+4*t,4)}, {vr(b+4*bb,4)}, {vr(ACC[bb][t],16) if k else 0}")
                for f in rd_[cut[i]:cut[i+1]]: f()
                if (i >= 2 or len(pend) > 6) and pend: pend.pop(0)()
                i += 1
    while pend: pend.pop(0)()
    assert not PFL
    d_dma(2)
    set_flag(a, FV, FWA, 4)
    S_(7)
    a("s_cmp_ge_u32 s5, 4")
    a("s_cselect_b64 vcc, -1, 0")
    DA = [16 + 16 * t for t in range(5)]; BF = 136
    if opt.get('gp', 2) >= 1: a('s_setprio 3')
    for b in range(2):
        for t in range(3):
            c = ACC[b][t]
            for r in range(0, 8, 2): a(f"v_pk_mul_f32 {vr(c+r,2)}, {vr(c+r,2)}, {vr(c+8+r,2)}")
            for i in range(4): a(f"v_cvt_pk_bf16_f32 v{c+8+i}, v{c+2*i}, v{c+2*i+1}")
            if opt.get('gp') != 3: a.vmem(f"buffer_store_dwordx4 {vr(c+8,4)}, v{L16}, s[24:27], s{36+b} offen offset:{t*1024} sc1", "hst")
    for t in range(3):
        for i in range(4):
            a(f"v_cndmask_b32 v{BF+4*t+i}, v{ACC[0][t]+8+i}, v{ACC[1][t]+8+i}, vcc")
        a.done.add(("b", t))
    a(f"v_mov_b32 v{TB}, s62")
    if opt.get('gp') == 3:
        a('s_setprio 0')
        for b in range(2):
            for t in range(3):
                a.vmem(f"buffer_store_dwordx4 {vr(ACC[b][t]+8,4)}, v{L16}, s[24:27], s{36+b} offen offset:{t*1024} sc1", "hst")
    a("s_lshl_b32 s36, s4, 1")
    a("s_lshr_b32 s37, s5, 2")
    a("s_add_u32 s36, s36, s37")
    a("s_mul_i32 s43, s36, 40960")
    a("s_add_u32 s43, s43, s38")
    a("s_mul_i32 s37, s3, 80")
    a("s_add_u32 s43, s43, s37")
    a("s_mul_i32 s37, s36, 98304")
    a("s_mul_i32 s36, s36, 40960")
    a("s_mul_i32 s61, s3, 10240")
    a("s_add_u32 s36, s36, s61")
    HS = [64, 65, 66, 67, 68, 69, 70]
    for j in range(1, 8):
        a("s_add_u32 s7, s7, 12288")
        a("s_sub_u32 s61, s7, 98304")
        a("s_cmp_ge_u32 s7, 98304")
        a("s_cselect_b32 s7, s61, s7")
        a(f"s_add_u32 s{HS[j-1]}, s7, s37")
    def h_ld(k): return f"buffer_load_dwordx4 {vr(BF+4*k,4)}, v{L16}, s[24:27], s{HS[k//3-1]} offen offset:{(k%3)*1024} sc1"
    if opt.get("hsent"):
        a.wait(vm="sfr")
        a(f"v_cmp_ne_u32 vcc, s62, v{SFR}")
        a("s_cmp_eq_u64 vcc, 0")
        a("s_cbranch_scc1 L_g_sok")
        sv = list(a.vm); poll_global(a, FV, 1, PA, 56, "s30", "s62"); a.vm = sv
        a.label("L_g_sok")
    if opt.get('gp', 2) == 1: a(f"s_setprio {opt['prioG']}")
    hl = [lambda: a.vmem(f"buffer_load_dwordx4 {vr(XR,4)}, v{OA}, s[8:11], s43 offen", "xr"),
           lambda: a.vmem(f"buffer_load_dwordx4 {vr(XR+4,4)}, v{OA}, s[8:11], s43 offen offset:16", "xr"),
           lambda: a.vmem(f"buffer_load_dwordx2 {vr(XR+8,2)}, v{OA}, s[8:11], s43 offen offset:32", "xr")]
    def valid(regs, reload, nleft, sleep):
        chk = a.newlabel("ck"); rt = a.newlabel("rt"); go = a.newlabel("go")
        a("s_mov_b32 s63, 8192")
        a.label(chk)
        a(f"v_max3_u32 v{TA}, v{regs[0]}, v{regs[1]}, v{regs[2]}")
        r = regs[3:]
        while len(r) >= 2: a(f"v_max3_u32 v{TA}, v{TA}, v{r[0]}, v{r[1]}"); r = r[2:]
        if r: a(f"v_max_u32 v{TA}, v{TA}, v{r[0]}")
        a(f"v_cmp_eq_u32 vcc, -1, v{TA}")
        a("s_cmp_eq_u64 vcc, 0")
        a(f"s_cbranch_scc0 {rt}")
        a.label(go)
        a.cold += [f"{rt}:", "    s_sub_u32 s63, s63, 1", f"    s_cbranch_scc1 {go}", f"    s_sleep {sleep}"] + ["    " + l for l in reload] + [f"    s_waitcnt vmcnt({nleft})", f"    s_branch {chk}"]
    FS = lambda k: (96 + (k % 2) * 20) if k < 24 else [96, 116, 176, 196][k % 4]
    pend_dma = []
    def dparts(k):
        b = FS(k)
        def R(t, hf):
            def f():
                if t == 0 and hf == 0: a.wait(vm=("d", k))
                a.lds(f"ds_read_b64_tr_b16 {vr(b+4*t+2*hf,2)}, v{DT} offset:{DS(k)+t*8+hf*1280}", ("dr", k, t))
            return f
        return [R(t, hf) for t in range(5) for hf in range(2)]
    def dreads(k):
        for f in dparts(k): f()
    def mf(k, t):
        a.wait(vm=("b", k), lg=("dr", k, t))
        a(f"v_mfma_f32_32x32x16_bf16 {vr(DA[t],16)}, {vr(FS(k)+4*t,4)}, {vr(BF+4*(k%24),4)}, {vr(DA[t],16) if k else 0}")
    dreads(0)
    a(f"s_setprio {opt['prioG']}")
    for k in range(24):
        if opt.get("hsent"):
            if k == 1: hl = [(lambda j=j: a.vmem(h_ld(j), ("b", j))) for j in range(3, 24)] + hl
            if k >= 3 and k % 3 == 0:
                if k == 3 and opt.get("hst"): S_(10)
                a.wait(vm=("b", k + 2))
                a("s_setprio 3")
                valid(list(range(BF + 4 * k, BF + 4 * k + 12)), [h_ld(j) for j in range(k, min(k + 9, 24))], min(k + 9, 24) - k - 3, 6)
                a(f"s_setprio {opt['prioG']}")
                if k == 3 and opt.get("hst"): S_(11)
        elif k == 3:
            if opt.get("hst"): S_(10)
            poll_global(a, FV, 1, PA, 56, "s30", "s62")
            if opt.get("hst"): S_(11)
            if NPF: a.wait(lg=("pw", 5))
            for j in range(3, 9): a.vmem(h_ld(j), ("b", j))
            hl += [(lambda j=j: a.vmem(h_ld(j), ("b", j))) for j in range(9, 24)]
        rd_ = dparts(k + 1)
        dm_ = pf_write(k + DN) if k < NPF else d_parts(k + DN)
        if k == 4 and NPF: a.wait(lg=("pw", 2 + NPF))
        if k == 0 and not opt.get("hsent"):
            dm_ = [lambda: (a.wait(vm="hst"), a("s_mov_b64 exec, 1"), a.vmem(f"buffer_store_dword v{TB}, v{ZERO}, s[56:59], s42 offen sc1", "hfl"), a("s_mov_b64 exec, -1"))] + dm_
        cut = [0, 3, 6, 8, 10, 10]; dcut = [0, 0, 1, 2, 4, len(dm_)]
        for t in range(5):
            mf(k, t)
            for f in rd_[cut[t]:cut[t+1]]: f()
            if t == 1: a.wait(lg=("dr", k, 4))
            for f in dm_[dcut[t]:dcut[t+1]]: f()
            nh = 2 if (opt.get("hsent") and k < 3) else 1
            for f in hl[:nh]: f()
            hl = hl[nh:]
    assert not hl
    a.flush_pend()
    for k in (25, 26): dreads(k)
    a.wait(lg=("dr", 24, 4)); d_dma(27)
    a.wait(lg=("dr", 25, 4)); d_dma(28)
    a.wait(lg=("dr", 26, 4)); d_dma(29)
    dreads(27)
    a.wait(lg=("dr", 27, 4)); d_dma(30)
    a.raw("; @@G_MAIN_END")
    S_(8)
    if opt.get("aoff"):
        S_(9); st.flush(a, P_WS, 6, 20); a("s_endpgm")
    a("s_setprio 3")
    a("s_add_u32 s30, s36, 4096"); a("s_add_u32 s31, s36, 8192")
    def o_ld(i): return f"buffer_load_dwordx4 {vr(BF+4*i,4)}, v{L16}, s[12:15], {['s36','s30','s31'][i//4]} offen offset:{(i%4)*1024} sc1"
    for i in range(10): a.vmem(o_ld(i), ("b", 24 + i))
    for k in range(24, 34):
        i = k - 24; bq = BF + 4 * i
        a.wait(vm=("b", k))
        valid([bq, bq + 1, bq + 2, bq + 3], [o_ld(j) for j in range(i, 10)], 9 - i, opt.get("osleep", 2))
        if k == 24 and not opt.get("hst"): S_(10)
        rd_ = dparts(k + 3) if 28 <= k + 3 < 34 else []
        for t in range(5):
            mf(k, t)
            for f in rd_[2*t:2*t+2]: f()
        if k in (26, 27, 28):
            a.wait(lg=("dr", k + 2, 4)); d_dma(k + 2 + DN)
    if not opt.get("hst"): S_(11)
    srd(a, 16, P_OUT, 2048 * 1280)
    OSC = opt.get('osc', '')
    a(f"v_add_u32 v{TA}, s29, v{L16}")
    RS = 96
    a.wait(vm="xr")
    for i in range(10):
        a(f"v_lshlrev_b32 v{RS+2*i}, 16, v{XR+i}")
        a(f"v_and_b32 v{RS+2*i+1}, 0xffff0000, v{XR+i}")
    for gq in range(1, 4):
        for t in range(5):
            a.lds(f"ds_write_b128 v{TA}, {vr(DA[t]+4*gq,4)} offset:{WSO[gq-1]+t*1024}", "rw")
    set_flag(a, FV, FWA, 5)
    if opt.get("tst"): S0_(1)
    for gq in range(1, 4):
        a(f"s_sub_u32 s30, s3, {gq}"); a("s_and_b32 s30, s30, 3"); a(f"s_mul_i32 s30, s30, {WSLOT}"); a(f"s_add_u32 s30, s30, {L_R1 + WSO[gq-1]}")
        a(f"v_add_u32 v{116+gq}, s30, v{L16}")
    for t in range(5):
        for i in range(2): a(f"v_pk_add_f32 {vr(RS+4*t+2*i,2)}, {vr(RS+4*t+2*i,2)}, {vr(DA[t]+2*i,2)}")
    poll_lds(a, FV, FAD, 5, "fl")
    if opt.get("tst"): S0_(2)
    for w in range(1, 4):
        for t in range(5):
            a.lds(f"ds_read_b128 {vr(16+20*w+4*t,4)}, v{116+w} offset:{t*1024}", ("rr", w))
    for w in range(1, 4):
        a.wait(lg=("rr", w))
        for i in range(10):
            a(f"v_pk_add_f32 {vr(RS+2*i,2)}, {vr(RS+2*i,2)}, {vr(16+20*w+2*i,2)}")
    for i in range(10):
        a(f"v_cvt_pk_bf16_f32 v{120+i}, v{RS+2*i}, v{RS+2*i+1}")
    if opt.get("tst"): S0_(3)
    a(f"buffer_store_dwordx4 {vr(120,4)}, v{OA}, s[16:19], s43 offen {OSC}")
    a(f"buffer_store_dwordx4 {vr(124,4)}, v{OA}, s[16:19], s43 offen offset:16 {OSC}")
    a(f"buffer_store_dwordx2 {vr(128,2)}, v{OA}, s[16:19], s43 offen offset:32 {OSC}")
    if st:
        a("s_waitcnt vmcnt(0)"); S_(9); st.flush(a, P_WS, 6, 20)
```

```python
from asmlib import *
import math, struct
def f32hex(x): return struct.unpack("<I", struct.pack("<f", x))[0]
WS_KV = 0x280000;  KV_BYTES = 64 * 3072
WS_FL = 0x2B0000;  FL_BYTES = 0x10000
WS_H  = 0x300000;  H_BYTES = 64 * 96 * 1024
WS_O  = 0x000000;  O_BYTES = 64 * 40 * 1024
FL_KV = 0; FL_H = 0x4000; FL_O = 0x8000
BIG = 0x40000000
L_FLAGA = 0; L_FLAGG = 16; L_CNTKV = 32; L_TAG = 36; L_KVOK = 40
L_XN = 256; XNT = 80 * 528
L_R1 = L_XN + 2 * XNT
KVSLOT = 12288
L_KV = 163840 - 4 * KVSLOT
L_WK = 110592; L_WV = L_WK + 26624
WSLOT = 6272
WSO = [0, 51200, 25600]
WMAP = lambda u: u % 3
DSLOT = 5120; DN = 3
L_RED = 256; L_MX = 161024
DS = lambda k: WSO[(k + 2) % 3]
QXO = 25600
LDS_TOTAL = 163840
QSCALE = (20 ** -0.5) * math.log2(math.e)
P_X, P_WQ, P_WK, P_WV, P_WO, P_BX, P_WG, P_WU, P_WD, P_OUT, P_DBG, P_WS = [64 + 2 * i for i in range(12)]
SPIN = 0x40000
LANE, L16, TA, TB, ZERO = 1, 2, 3, 4, 5
FAD, FWA, FV = 6, 7, 8
DUMMY = 10

def srd(a, d, p, nbytes, add=0):
    if add:
        a(f"s_add_u32 s{d}, s{p}, {add}"); a(f"s_addc_u32 s{d+1}, s{p+1}, 0")
    else:
        a(f"s_mov_b32 s{d}, s{p}"); a(f"s_mov_b32 s{d+1}, s{p+1}")
    a(f"s_mov_b32 s{d+2}, {nbytes}"); a(f"s_mov_b32 s{d+3}, 0x00020000")

def poll_lds(a, vF, vFaddr, need, tag, issue=True):
    ok = a.newlabel("pok"); lp = a.newlabel("plp"); sl = a.newlabel("psl")
    if issue: a.lds(f"ds_read_b32 v{vF}, v{vFaddr}", tag)
    a.wait(lg=tag)
    a(f"v_cmp_gt_u32 vcc, {need}, v{vF}")
    a("s_cmp_eq_u64 vcc, 0")
    a(f"s_cbranch_scc0 {sl}")
    a.label(ok)
    a.cold += [f"{sl}:", f"    s_mov_b32 s63, {SPIN}", f"{lp}:", "    s_sleep 1", f"    ds_read_b32 v{vF}, v{vFaddr}", "    s_waitcnt lgkmcnt(0)",
               "    s_sub_u32 s63, s63, 1", f"    s_cbranch_scc1 {ok}", f"    v_cmp_gt_u32 vcc, {need}, v{vF}", "    s_cmp_eq_u64 vcc, 0",
               f"    s_cbranch_scc0 {lp}", f"    s_branch {ok}"]

def set_flag(a, vtmp, vaddr, val, off=0):
    a("s_mov_b64 exec, 1")
    a(f"v_mov_b32 v{vtmp}, {val}")
    a.lds(f"ds_write_b32 v{vaddr}, v{vtmp}" + (f" offset:{off}" if off else ""), "fw")
    a("s_mov_b64 exec, -1")

def poll_global(a, vdst, n, vaddr, srdn, soffs, stag, sleep=6):
    ok = a.newlabel("gok"); lp = a.newlabel("glp")
    a(f"s_mov_b32 s63, {SPIN // 16}")
    a.label(lp)
    for i in range(n):
        a(f"buffer_load_dword v{vdst+i}, v{vaddr}, s[{srdn}:{srdn+3}], {soffs} offen offset:{i*1024} sc1")
    a("s_waitcnt vmcnt(0)")
    for i in range(n): a(f"v_xor_b32 v{vdst+i}, {stag}, v{vdst+i}")
    for i in range(1, n): a(f"v_or_b32 v{vdst}, v{vdst}, v{vdst+i}")
    a(f"v_cmp_ne_u32 vcc, 0, v{vdst}")
    a("s_cmp_eq_u64 vcc, 0")
    a(f"s_cbranch_scc1 {ok}")
    a(f"s_sleep {sleep}")
    a("s_sub_u32 s63, s63, 1")
    a(f"s_cbranch_scc0 {lp}")
    a.label(ok)
    a.vm = []

def get_tag(a, vT):
    ok = a.newlabel("tok"); lp = a.newlabel("tlp")
    a(f"s_mov_b32 s63, {SPIN}")
    a.label(lp)
    a(f"ds_read_b32 v{vT}, v{ZERO} offset:{L_TAG}")
    a("s_waitcnt lgkmcnt(0)")
    a(f"v_readfirstlane_b32 s62, v{vT}")
    a("s_cmp_lg_u32 s62, 0")
    a(f"s_cbranch_scc1 {ok}")
    a("s_sleep 1")
    a("s_sub_u32 s63, s63, 1")
    a(f"s_cbranch_scc0 {lp}")
    a.label(ok)
    a.lg = []

def warm(a, srdn, stride, rows_per_wave, width, col_expr, NSH, vt, st0, st1, lpr):
    a(f"s_and_b32 s{st0}, s4, {NSH-1}")
    a(f"s_lshl_b32 s{st0}, s{st0}, 2")
    a(f"s_add_u32 s{st0}, s{st0}, s3")
    a(f"s_mul_i32 s{st0}, s{st0}, {rows_per_wave*stride}")
    a(f"s_mul_i32 s{st1}, {col_expr[0]}, {col_expr[1]}")
    a(f"s_add_u32 s{st0}, s{st0}, s{st1}")
    rpi = 64 // lpr
    a(f"v_mul_u32_u24 v{vt+1}, {(512 + lpr - 1) // lpr}, v{LANE}")
    a(f"v_lshrrev_b32 v{vt+1}, 9, v{vt+1}")
    a(f"v_mul_u32_u24 v{vt}, {lpr}, v{vt+1}")
    a(f"v_sub_u32 v{vt}, v{LANE}, v{vt}")
    a(f"v_lshlrev_b32 v{vt}, 7, v{vt}")
    a(f"v_min_u32 v{vt}, {width-4}, v{vt}")
    a(f"v_min_u32 v{vt+1}, {min(rpi, rows_per_wave)-1}, v{vt+1}")
    a(f"v_mul_u32_u24 v{vt+1}, {stride}, v{vt+1}")
    a(f"v_add_u32 v{vt}, v{vt}, v{vt+1}")
    n = (rows_per_wave + rpi - 1) // rpi
    for i in range(n):
        for sd in srdn:
            a.vmem(f"buffer_load_dword v{DUMMY}, v{vt}, s[{sd}:{sd+3}], s{st0} offen", "warm")
        if i + 1 < n:
            step = rpi if (i + 2) * rpi <= rows_per_wave else rows_per_wave - rpi - rpi * i
            a(f"s_add_u32 s{st0}, s{st0}, {step*stride}")

def warm_lane(a, dst, tmp, stride, rows, width, lpr):
    a(f"v_mul_u32_u24 v{tmp}, {(512 + lpr - 1) // lpr}, v{LANE}")
    a(f"v_lshrrev_b32 v{tmp}, 9, v{tmp}")
    a(f"v_mul_u32_u24 v{dst}, {lpr}, v{tmp}")
    a(f"v_sub_u32 v{dst}, v{LANE}, v{dst}")
    a(f"v_lshlrev_b32 v{dst}, 7, v{dst}")
    a(f"v_min_u32 v{dst}, {width-4}, v{dst}")
    a(f"v_min_u32 v{tmp}, {rows-1}, v{tmp}")
    a(f"v_mul_u32_u24 v{tmp}, {stride}, v{tmp}")
    a(f"v_add_u32 v{dst}, v{dst}, v{tmp}")

def share(a, sd, NSH):
    a(f"s_and_b32 s{sd}, s4, {NSH-1}")
    a(f"s_lshl_b32 s{sd}, s{sd}, 2")
    a(f"s_add_u32 s{sd}, s{sd}, s3")

def tag_check(a, vT):
    ok = a.newlabel("tok"); lp = a.newlabel("tlp")
    a(f"s_mov_b32 s63, {SPIN // 16}")
    a.label(lp)
    a(f"v_readfirstlane_b32 s62, v{vT}")
    a("s_cmp_lg_u32 s62, 0")
    a(f"s_cbranch_scc1 {ok}")
    a("s_sleep 4")
    a(f"buffer_load_dword v{vT}, v{ZERO}, s[88:91], 0 offen sc1")
    a("s_waitcnt vmcnt(0)")
    a("s_sub_u32 s63, s63, 1")
    a(f"s_cbranch_scc0 {lp}")
    a.label(ok)

def ln_finish(a, SUM, SQ):
    a(f"v_mul_f32 v{SUM}, 0x{f32hex(1.0/640):08x}, v{SUM}")
    a(f"v_mul_f32 v{SQ}, 0x{f32hex(1.0/640):08x}, v{SQ}")
    a(f"v_fma_f32 v{SQ}, -v{SUM}, v{SUM}, v{SQ}")
    a(f"v_max_f32 v{SQ}, 0, v{SQ}")
    a(f"v_add_f32 v{SQ}, 0x{f32hex(1e-5):08x}, v{SQ}")
    a(f"v_rsq_f32 v{SQ}, v{SQ}")
    a("s_nop 0")
    a(f"v_mul_f32 v{SUM}, v{SUM}, v{SQ}")
    a(f"v_mov_b32 v{SQ+1}, v{SQ}")
    a(f"v_sub_f32 v{SUM}, 0, v{SUM}")
    a(f"v_mov_b32 v{SUM+1}, v{SUM}")

def ln_stats(a, X, U, n, SUM, SQ, tagf, hook=None):
    for i in range(n):
        a.wait(vm=tagf(i))
        if hook: hook(i)
        for d in range(4):
            a(f"v_lshlrev_b32 v{U+8*i+2*d}, 16, v{X+4*i+d}")
            a(f"v_and_b32 v{U+8*i+2*d+1}, 0xffff0000, v{X+4*i+d}")
        for d in range(4):
            p = vr(U + 8 * i + 2 * d, 2)
            if i == 0 and d == 0:
                a(f"v_pk_mul_f32 {vr(SQ,2)}, {p}, {p}")
                a(f"v_pk_add_f32 {vr(SUM,2)}, {p}, {vr(U+2,2)}")
            else:
                if not (i == 0 and d == 1): a(f"v_pk_add_f32 {vr(SUM,2)}, {vr(SUM,2)}, {p}")
                a(f"v_pk_fma_f32 {vr(SQ,2)}, {p}, {p}, {vr(SQ,2)}")
    a(f"v_add_f32 v{SUM}, v{SUM}, v{SUM+1}")
    a(f"v_add_f32 v{SQ}, v{SQ}, v{SQ+1}")
    a("s_nop 0")

def dpp_sum(a, regs, ctls):
    for ctl in ctls:
        for r in regs: a(f"v_add_f32_dpp v{r}, v{r}, v{r} {ctl} row_mask:0xf bank_mask:0xf")
        a("s_nop 0")

def ln_group(a, idx_expr_sgpr, sgl, sld, vgl, vld):
    a(f"s_cmp_ge_u32 s{idx_expr_sgpr}, s5")
    a(f"s_addc_u32 s{sld}, s{idx_expr_sgpr}, 0")
    a(f"s_lshl_b32 s{sgl}, s4, 3")
    a(f"s_add_u32 s{sgl}, s{sgl}, s{sld}")
    a(f"s_mul_i32 s{sgl}, s{sgl}, 10240")
    a(f"v_lshrrev_b32 v{TB}, 3, v{LANE}")
    a(f"v_mul_u32_u24 v{vgl}, 1280, v{TB}")
    a(f"v_and_b32 v{TA}, 7, v{LANE}")
    a(f"v_lshl_add_u32 v{vgl}, v{TA}, 4, v{vgl}")
    a(f"v_mul_u32_u24 v{vld}, 528, v{TA}")
    a(f"v_lshl_add_u32 v{vld}, v{TB}, 4, v{vld}")
    a(f"s_and_b32 s63, s{sld}, 3")
    a("s_lshl_b32 s63, s63, 7")
    a(f"s_lshr_b32 s{sld}, s{sld}, 2")
    a(f"s_mul_i32 s{sld}, s{sld}, {XNT}")
    a(f"s_add_u32 s{sld}, s{sld}, s63")
    a(f"s_add_u32 s{sld}, s{sld}, {L_XN}")
    a(f"v_add_u32 v{vld}, s{sld}, v{vld}")

def ln_write(a, X, U, SUM, SQ, vld):
    for i in range(10):
        for d in range(4):
            pp = vr(U + 8 * i + 2 * d, 2)
            a(f"v_pk_fma_f32 {pp}, {pp}, {vr(SQ,2)}, {vr(SUM,2)}")
        for d in range(4):
            a(f"v_cvt_pk_bf16_f32 v{X+4*i+d}, v{U+8*i+2*d}, v{U+8*i+2*d+1}")
        a.lds(f"ds_write_b128 v{vld}, {vr(X+4*i,4)} offset:{i*4224}", "xw")

def wq_offsets(a, WQO):
    for i in range(5):
        a(f"v_add_u32 v{TA}, {64*i}, v{LANE}")
        a(f"v_mul_u32_u24 v{TB}, 205, v{TA}")
        a(f"v_lshrrev_b32 v{TB}, 11, v{TB}")
        a(f"v_mul_u32_u24 v{WQO+i}, 10, v{TB}")
        a(f"v_sub_u32 v{TA}, v{TA}, v{WQO+i}")
        a(f"v_lshlrev_b32 v{TA}, 4, v{TA}")
        if 0 < i < 4: a(f"v_subrev_u32 v{TA}, {1024*i}, v{TA}")
        a(f"v_mul_u32_u24 v{WQO+i}, 1280, v{TB}")
        a(f"v_add_u32 v{WQO+i}, v{WQO+i}, v{TA}")
SLOT = lambda g: g % 15
L_WQF = 44

def gen(name, st=None, opt=None):
    opt = dict(dict(prioA=2, prioG=0, pattern=4, endstamp=False, xmap="16x2", w0=0, wwarm="c", gp=1, pat="MeeeMeeceececeMeeccM|eeeceecc", hst=0), **(opt or {}))
    a = Asm()
    S_ = (lambda i, cyc=False: st(a, i, cyc)) if st else (lambda i, cyc=False: None)
    a.raw(f".globl {name}\n.p2align 8\n.type {name},@function")
    a.label(name)
    a("s_cmp_ge_u32 s2, 256")
    a("s_cbranch_scc1 L_end")
    if st: st.init(a); S_(0)
    a("s_load_dwordx16 s[64:79], s[0:1], 0")
    a("s_load_dwordx8 s[80:87], s[0:1], 64")
    a("v_lshrrev_b32 v3, 6, v0")
    a(f"v_and_b32 v{LANE}, 63, v0")
    a("v_readfirstlane_b32 s6, v3")
    a(f"v_lshlrev_b32 v{L16}, 4, v{LANE}")
    a(f"v_mov_b32 v{ZERO}, 0")
    if opt["xmap"] == "8x4":
        a("s_bfe_u32 s4, s2, 0x20001"); a("s_lshl_b32 s4, s4, 3"); a("s_lshr_b32 s7, s2, 5"); a("s_add_u32 s4, s4, s7")
        a("s_and_b32 s5, s2, 1"); a("s_lshl_b32 s5, s5, 2"); a("s_bfe_u32 s7, s2, 0x20003"); a("s_add_u32 s5, s5, s7")
        NSH = 8; NSD = 8
    elif opt["xmap"] == "4x8":
        a("s_and_b32 s4, s2, 7"); a("s_lshl_b32 s4, s4, 2"); a("s_lshr_b32 s7, s2, 6"); a("s_add_u32 s4, s4, s7")
        a("s_bfe_u32 s5, s2, 0x30003")
        NSH = 4; NSD = 4
    elif opt["xmap"] == "16x2":
        a("s_bfe_u32 s4, s2, 0x10002"); a("s_lshl_b32 s4, s4, 4"); a("s_lshr_b32 s7, s2, 4"); a("s_add_u32 s4, s4, s7")
        a("s_and_b32 s5, s2, 3"); a("s_lshl_b32 s5, s5, 1"); a("s_bfe_u32 s7, s2, 0x10003"); a("s_add_u32 s5, s5, s7")
        NSH = 16; NSD = 16
    a("s_and_b32 s3, s6, 3")
    a(f"v_lshlrev_b32 v{FWA}, 2, v{LANE}")
    a("s_cmp_lg_u32 s6, 0")
    a("s_cbranch_scc1 L_nozero")
    a(f"ds_write_b32 v{FWA}, v{ZERO}")
    a.label("L_nozero")
    a("s_waitcnt lgkmcnt(0)")
    srd(a, 8, P_X, 2048 * 1280)
    srd(a, 88, P_DBG, 256)
    a("s_cmp_ge_u32 s6, 4")
    a("s_cbranch_scc1 L_g_role")
    ln_group(a, 3, 7, 24, 10, 11)
    a("s_or_b32 s25, s2, s6")
    a("s_cmp_lg_u32 s25, 0")
    a("s_cbranch_scc1 L_notagpub")
    a("s_memrealtime s[60:61]")
    a("s_waitcnt lgkmcnt(0)")
    a("s_or_b32 s60, s60, 1")
    a("v_mov_b32 v8, s60")
    a("s_mov_b64 exec, 1")
    a(f"buffer_store_dword v8, v{ZERO}, s[88:91], 0 offen sc1")
    a("s_mov_b64 exec, -1")
    a.label("L_notagpub")
    if not opt.get("axf"): a("s_barrier")
    for i in range(10):
        a.vmem(f"buffer_load_dwordx4 {vr(16+4*i,4)}, v10, s[8:11], s7 offen offset:{128*i}", ("x", i))
    if opt.get("axf"): a("s_barrier")
    if opt.get("alnp"): a(f"s_setprio {opt['alnp']}")
    if opt.get("tlb"):
        a(f"v_lshlrev_b32 v9, {opt.get('tlbsh', 21)}, v{LANE}")
        for i, (p, n) in enumerate(((P_WS, 0x900000), (P_OUT, 2048 * 1280), (P_WD, 1536 * 1280), (P_WO, 640 * 1280), (P_WG, 640 * 3072), (P_WU, 640 * 3072))):
            srd(a, 92, p, n) if i % 2 == 0 else srd(a, 96, p, n)
            a.vmem(f"buffer_load_dword v8, v9, s[{92 + 4*(i%2)}:{95 + 4*(i%2)}], 0 offen", "tlb")
    vm_a = list(a.vm)
    a("s_branch L_a_role")
    a.label("L_g_role")
    a.vm = []; a.lg = []
    gen_g(a, S_, st, opt, NSH)
    a("s_endpgm")
    a.emit_cold()
    a.label("L_a_role")
    a.vm = vm_a; a.lg = []
    gen_a(a, S_, st, opt, NSH)
    a.emit_cold()
    a.label("L_end")
    a("s_endpgm")
    txt = a.text()
    if opt.get("gwrap"):
        out = []; on = False; low = False
        for l in txt.split("\n"):
            if "@@G_MAIN_BEGIN" in l: on = True; out.append(l); out.append("    s_setprio 3"); continue
            if "@@G_MAIN_END" in l:
                on = False
                if low: out.append("    s_setprio 3"); low = False
            t = l.strip()
            if on:
                if t.startswith("s_setprio"): continue
                if t.startswith("v_mfma"):
                    if not low:
                        out.append(f"    s_setprio {opt.get('glow', 0)}"); low = True
                        if opt.get("gnop") is not None: out.append(f"    s_nop {opt['gnop']}")
                elif low and t and not t.startswith(";"):
                    out.append(f"    s_setprio {opt.get('ghigh', 3)}"); low = False
            out.append(l)
        txt = "\n".join(out)
    if opt.get("allsc"):
        out = []
        for l in txt.split("\n"):
            t = l.strip()
            if t.startswith("buffer_load_dwordx4") and " sc1" not in t and "s[8:11]" not in t:
                l = (l[:-4] + f" {opt['allsc']} lds") if t.endswith(" lds") else l + f" {opt['allsc']}"
            out.append(l)
        txt = "\n".join(out)
    if opt.get("gdrop"):
        out = []; on = False
        for l in txt.split("\n"):
            if "@@G_MAIN_BEGIN" in l: on = True
            if "@@G_MAIN_END" in l: on = False
            t = l.strip()
            if on and "mfma" in opt["gdrop"] and t.startswith("v_mfma"): continue
            if on and "lds" in opt["gdrop"] and (t.startswith("ds_read_b64_tr") or t.startswith("ds_read_b128")): continue
            if on and "dma" in opt["gdrop"] and t.startswith("buffer_load_dwordx4"): continue
            out.append(l)
        txt = "\n".join(out)
    return txt, kdesc(name, 256, 102)

def gen_a(a, S0_, st, opt, NSH):
    QS = {5: 0, 7: 1, 16: 2, 19: 3, 28: 6, 31: 7} if opt.get("qst") else {}
    S_ = (lambda i, cyc=False: S0_(i, cyc) if (not opt.get("qst") or i in (4, 5, 8, 9, 10, 11)) else None)
    X = 16; U = 56; SUM, SQ = 12, 14; TAG = 8; WQA = 7
    WQO = 136
    srd(a, 12, P_WQ, 640 * 1280)
    wq_offsets(a, WQO)
    a("s_lshl_b32 s24, s5, 2")
    a("s_add_u32 s24, s24, s3")
    a("s_mul_i32 s25, s5, 160")
    a("s_mul_i32 s26, s3, 40960")
    a("s_add_u32 s25, s25, s26")
    a("s_mul_i32 s26, s3, 5120")
    a(f"s_add_u32 s26, s26, {L_R1}")
    def wq_one(g4, i, tag):
        def f():
            a(f"s_add_u32 m0, s26, {SLOT(g4)*5120 + (4096 if i == 4 else 0)}")
            a(f"s_add_u32 s27, s25, {g4*40960}")
            ins = f"buffer_load_dwordx4 v{WQO+i}, s[12:15], s27 offen" + (f" offset:{i*1024}" if i < 4 else "") + " lds"
            if tag: a.vmem(ins, tag)
            else:
                l = a.newlabel("g4"); a("s_cmp_lg_u32 s3, 0"); a(f"s_cbranch_scc1 {l}"); a(ins); a.label(l)
        return f
    srd(a, 16, P_WG, 640 * 3072)
    srd(a, 20, P_WU, 640 * 3072)
    late = [wq_one(4, i, None) for i in range(5)] + [wq_one(0, i, "p1") for i in range(5)]
    if not opt.get("nowarm"):
        warm_lane(a, 146, TA, 1280, 640 // NSH // 4, 160, 2)
        warm_lane(a, 147, TA, 3072, max(opt["w0"] // NSH // 4, 1), 384, 3)
        share(a, 32, NSH)
        a(f"s_mul_i32 s33, s32, {opt['w0'] // NSH // 4 * 3072}")
        a(f"s_mul_i32 s32, s32, {640 // NSH // 4 * 1280}")
        a("s_mul_i32 s34, s5, 160"); a("s_add_u32 s32, s32, s34")
        a("s_mul_i32 s34, s5, 384"); a("s_add_u32 s33, s33, s34")
        late = [lambda: a.vmem(f"buffer_load_dword v{DUMMY}, v146, s[12:15], s32 offen", "warm")] + late
        if opt["w0"]: late += [lambda: a.vmem(f"buffer_load_dword v{DUMMY}, v147, s[16:19], s33 offen", "warm"),
                 lambda: a.vmem(f"buffer_load_dword v{DUMMY}, v147, s[20:23], s33 offen", "warm")]
    XA0, XA1, FWQ, NEED, FG, F8 = 152, 153, 154, 9, 144, 145
    a(f"v_and_b32 v{TA}, 7, v{LANE}")
    a(f"v_lshlrev_b32 v{F8}, 2, v{TA}")
    a(f"v_and_b32 v{FAD}, 12, v{F8}")
    a(f"v_add_u32 v{FG}, {L_FLAGG}, v{FAD}")
    a(f"v_lshrrev_b32 v{TB}, 5, v{LANE}")
    a(f"v_bfe_u32 v{WQA}, v{LANE}, 2, 2")
    a(f"v_lshl_add_u32 v{WQA}, v{TB}, 3, v{WQA}")
    a(f"v_mul_u32_u24 v{WQA}, 160, v{WQA}")
    a(f"v_mul_u32_u24 v{XA0}, 528, v{TB}")
    a(f"v_and_b32 v{TB}, 1, v{LANE}")
    a(f"v_lshlrev_b32 v{TB}, 4, v{TB}")
    a(f"v_bfe_u32 v{TA}, v{LANE}, 1, 1")
    a(f"v_lshl_add_u32 v{TB}, v{TA}, 3, v{TB}")
    a(f"v_and_b32 v{TA}, 16, v{LANE}")
    a(f"v_cmp_eq_u32 vcc, 0, v{TA}")
    a(f"v_mov_b32 v{TA}, 32")
    a("s_mul_i32 s30, s3, 40")
    a(f"s_add_u32 s30, s30, {L_R1}")
    a(f"v_cndmask_b32 v{TB}, v{TA}, v{TB}, vcc")
    a(f"v_add3_u32 v{WQA}, v{WQA}, v{TB}, s30")
    a(f"v_and_b32 v{TA}, 31, v{LANE}")
    a(f"v_lshl_add_u32 v{XA0}, v{TA}, 4, v{XA0}")
    a(f"v_add_u32 v{XA0}, {L_XN}, v{XA0}")
    a(f"v_add_u32 v{XA1}, {XNT}, v{XA0}")
    a("s_lshl_b32 s30, s3, 2")
    a(f"v_mov_b32 v{FWQ}, s30")
    WF = lambda k: 176 + 4 * k if k < 20 else 16 + 4 * (k - 20)
    def wq_read(k0, n):
        for k in range(k0, k0 + n):
            for hf in range(2):
                off = SLOT(k//2)*5120+(k%2)*2560+hf*640
                a.lds(f"ds_read_b64_tr_b16 {vr(WF(k)+2*hf,2)}, v{WQA if off < 40960 else 15} offset:{off % 40960}", ("wr", k))
    S_(1)
    def hk(i):
        if i == 0:
            S_(2); a.sprinkle(late, 10)
    ln_stats(a, X, U, 10, SUM, SQ, lambda i: ("x", i), hk)
    a.flush_pend()
    dpp_sum(a, [SUM, SQ], ("quad_perm:[1,0,3,2]", "quad_perm:[2,3,0,1]", "row_half_mirror"))
    ln_finish(a, SUM, SQ)
    a.vmem(f"buffer_load_dword v{TAG}, v{ZERO}, s[88:91], 0 offen sc1", "tag")
    ln_write(a, X, U, SUM, SQ, 11)
    a.wait(vm="p1", lg="all")
    set_flag(a, TA, FWQ, 3)
    S_(3)
    poll_lds(a, TB, FAD, 3, "fl")
    wq_read(0, 10)
    a.wait(lg=("wr", 9))
    set_flag(a, TA, FWQ, 4)
    a(f"v_mov_b32 v14, {L_WQF}")
    a(f"v_add_u32 v15, 40960, v{WQA}")
    QACC = [120, 136]; QF = 96; QD = 3
    a(f"s_setprio {opt['prioA']}")
    srd(a, 16, P_WS, KV_BYTES, WS_KV)
    srd(a, 20, P_WS, O_BYTES, WS_O)
    srd(a, 56, P_WS, FL_BYTES, WS_FL)
    poll_lds(a, TB, F8, 3, "fl")
    S_(4)
    a("s_lshl_b32 s36, s4, 1")
    a("s_mul_i32 s36, s36, 40960")
    a("s_lshr_b32 s37, s24, 3")
    a("s_mul_i32 s37, s37, 10240")
    a("s_add_u32 s36, s36, s37")
    a("s_and_b32 s37, s24, 7")
    a("s_lshl_b32 s38, s37, 10")
    a("s_add_u32 s38, s38, s36")
    a("s_lshr_b32 s39, s37, 1")
    a("s_lshl_b32 s39, s39, 9")
    a("s_and_b32 s37, s37, 1")
    a("s_lshl_b32 s37, s37, 3")
    a("s_add_u32 s39, s39, s37")
    a("s_add_u32 s39, s39, s36")
    a("s_add_u32 s39, s39, 8192")
    a("s_add_u32 s40, s38, 40960")
    a("s_add_u32 s41, s39, 40960")
    def qreads(ks):
        b = QF + (ks % QD) * 8
        a.lds(f"ds_read_b128 {vr(b,4)}, v{XA0} offset:{ks*1056}", ("qa", ks))
        a.lds(f"ds_read_b128 {vr(b+4,4)}, v{XA1} offset:{ks*1056}", ("qa", ks))
    BK2, BV, MX, FG2 = 9, 10, 11, 12
    RA = [13, 14, 15]
    QA = [16 + 4 * i for i in range(8)]; QB = [48 + 2 * i for i in range(8)]
    O = [156 + 12 * i for i in range(8)]
    S = [64, 80]; P = [96, 104]
    K1f = [112, 116, 120]; K2f = [124, 126, 128]; Vf = [[130, 134], [138, 142], [146, 150]]
    BVL = MX
    def kld(buf, so, tag):
        return [lambda: a.vmem(f"buffer_load_dwordx4 {vr(K1f[buf],4)}, v{L16}, s[16:19], {so} offen sc1", tag),
                lambda: a.vmem(f"buffer_load_dwordx2 {vr(K2f[buf],2)}, v{BK2}, s[16:19], {so} offen offset:1024 sc1", tag)]
    def vld(buf, so, tag):
        return [lambda: a.vmem(f"buffer_load_dwordx4 {vr(Vf[buf][0],4)}, v{BVL}, s[16:19], {so} offen offset:1536 sc1", tag),
                lambda: a.vmem(f"buffer_load_dwordx4 {vr(Vf[buf][1],4)}, v{BVL}, s[16:19], {so} offen offset:2304 sc1", tag)]
    def adv():
        return [lambda: (a(f"s_add_u32 s28, s28, {KVSLOT}"), a(f"s_sub_u32 s27, s28, {KV_BYTES}")),
                lambda: (a(f"s_cmp_ge_u32 s28, {KV_BYTES}"), a("s_cselect_b32 s28, s27, s28"))]
    def kv_first():
        for f in kld(0, "s28", ("k", 0)) + vld(0, "s28", ("v", 0)) + adv() + kld(1, "s28", ("k", 1)) + vld(1, "s28", ("v", 1)) + adv(): f()
    NEED = 13
    a("s_bfe_u32 s28, s2, 0x40003")
    a(f"s_mul_i32 s28, s28, {KVSLOT}")
    a("s_mul_i32 s33, s3, 3072")
    a("s_add_u32 s28, s28, s33")
    a("s_lshl_b32 s43, s3, 6")
    a("s_mov_b32 s35, 0")
    a(f"v_lshlrev_b32 v{BK2}, 3, v{LANE}")
    a(f"v_and_b32 v{TA}, 31, v{LANE}")
    a(f"v_min_u32 v{TA}, 21, v{TA}")
    a(f"v_lshlrev_b32 v{TA}, 4, v{TA}")
    a(f"v_lshrrev_b32 v{TB}, 5, v{LANE}")
    a(f"v_mul_u32_u24 v{TB}, 384, v{TB}")
    a(f"v_add_u32 v{MX}, v{TA}, v{TB}")
    a(f"v_lshrrev_b32 v{TA}, 2, v{LANE}")
    a(f"v_lshlrev_b32 v{TA}, 8, v{TA}")
    a(f"v_and_b32 v{TB}, 3, v{LANE}")
    a(f"v_lshl_add_u32 v{NEED}, v{TB}, 4, v{TA}")
    P3 = opt.get('p3r', 18)
    RD = {6 + j: (10 + 2 * j, 2) for j in range(10)}
    RD.update({P3 + j: (30 + 2 * j, 2) for j in range(5)})
    for ks in range(QD - 1): qreads(ks)
    CHK = opt.get("kvchk", ()); CLD = opt.get("kvld", (32,))
    for ks in range(40):
        if ks in QS and QS[ks]: S0_(QS[ks])
        if ks + QD - 1 < 40: qreads(ks + QD - 1)
        if ks == 24:
            a.wait(vm='tag'); tag_check(a, TAG)
        P3R = opt.get('p3r', 18)
        if ks in (5, P3R - 1): a.lds(f"ds_read_b32 v{TB}, v14", "fl")
        if ks == 6: poll_lds(a, TB, 14, 1, "fl", issue=False)
        if ks == P3R: poll_lds(a, TB, 14, 2, "fl", issue=False)
        if ks in RD: wq_read(*RD[ks])
        if ks == opt.get("p3r", 18) + 4: set_flag(a, TA, FWQ, 8)
        if ks == 30: a.lds(f"ds_read_b32 v{TB}, v{FAD}", "fl")
        if ks == 32: poll_lds(a, TB, FAD, 8, "fl", issue=False)
        if ks in CLD:
            a(f"buffer_load_dword v{TAG}, v{NEED}, s[56:59], s43 offen sc1")
        if ks in CHK:
            l = a.newlabel("kvc"); r = a.newlabel("kvr")
            a("s_waitcnt vmcnt(0)")
            a(f"v_cmp_ne_u32 vcc, s62, v{TAG}")
            a("s_cmp_eq_u32 s35, 0")
            a("s_cselect_b64 vcc, vcc, -1")
            a("s_cmp_eq_u64 vcc, 0")
            a(f"s_cbranch_scc0 {r}")
            sv = list(a.vm); kv_first(); a.vm = sv
            a("s_mov_b32 s35, 1")
            a.label(r)
        a.wait(lg=[("qa", ks), ("wr", ks)])
        b = QF + (ks % QD) * 8
        a(f"v_mfma_f32_32x32x16_bf16 {vr(QACC[0],16)}, {vr(WF(ks),4)}, {vr(b,4)}, {vr(QACC[0],16) if ks else 0}")
        if ks >= 20:
            for i in range(5): a(f"v_mov_b32 v{O[0]+5*(ks-20)+i}, 0")
        a(f"v_mfma_f32_32x32x16_bf16 {vr(QACC[1],16)}, {vr(WF(ks),4)}, {vr(b+4,4)}, {vr(QACC[1],16) if ks else 0}")
    S_(5)
    a(f"v_mov_b32 v{FWA}, s30")
    if opt.get("aoff"):
        set_flag(a, TA, FWA, 12); st.flush(a, P_WS, 6, 20); a("s_endpgm")
    a(f"v_lshlrev_b32 v{BK2}, 3, v{LANE}") if False else None
    def owner(i2, sd):
        a(f"s_add_u32 s{sd}, s3, {1+i2}"); a(f"s_and_b32 s{sd}, s{sd}, 3")
    a(f"v_mov_b32 v{BV}, v{NEED}")
    a(f"v_cmp_gt_u32 vcc, 32, v{LANE}")
    a(f"v_mov_b32 v{TA}, 0x{f32hex(QSCALE):08x}")
    a(f"s_mov_b32 s31, 0x{f32hex(QSCALE):08x}")
    a(f"s_mul_i32 s29, s3, {WSLOT}")
    a(f"v_cndmask_b32 v155, 0, v{TA}, vcc")
    a("s_mov_b64 s[60:61], vcc")
    a(f"s_add_u32 s29, s29, {L_R1 + QXO}")
    a(f"v_add_u32 v{FG2}, s29, v{L16}")
    a(f"v_add_u32 v{TB}, s29, v{BK2}")
    for i2 in range(3):
        owner(i2, 32); a(f"s_mul_i32 s32, s32, {WSLOT}"); a(f"s_add_u32 s32, s32, {L_R1 + QXO}")
        a(f"v_add_u32 v{RA[i2]}, s32, v{L16}")
    for t in range(2):
        for i in range(8): a(f"v_mul_f32 v{QACC[t]+i}, s31, v{QACC[t]+i}")
        for i in range(8, 12): a(f"v_mul_f32 v{QACC[t]+i}, v155, v{QACC[t]+i}")
        for i in range(4): a(f"v_cvt_pk_bf16_f32 v{QA[6+t]+i}, v{QACC[t]+2*i}, v{QACC[t]+2*i+1}")
        for i in range(2): a(f"v_cvt_pk_bf16_f32 v{QB[6+t]+i}, v{QACC[t]+8+2*i}, v{QACC[t]+9+2*i}")
        a.lds(f"ds_write_b128 v{FG2}, {vr(QA[6+t],4)} offset:{t*1536}", "qw")
        a.lds(f"ds_write_b64 v{TB}, {vr(QB[6+t],2)} offset:{t*1536+1024}", "qw")
    set_flag(a, TA, FWA, 9)
    a("s_cmp_eq_u32 s35, 1")
    a("s_cbranch_scc1 L_a_kvld")
    a("s_waitcnt vmcnt(0)")
    a(f"v_cmp_ne_u32 vcc, s62, v{TAG}")
    a("s_cmp_eq_u64 vcc, 0")
    a("s_cbranch_scc0 L_a_kvld")
    kv_first()
    a("s_mov_b32 s35, 1")
    a.label("L_a_kvld")
    a.vm = []
    poll_lds(a, TA, FAD, 9, "fl")
    for i2 in range(3):
        for t in range(2):
            a.lds(f"ds_read_b128 {vr(QA[2*i2+t],4)}, v{RA[i2]} offset:{t*1536}", "qr")
        a(f"v_sub_u32 v{TA}, v{RA[i2]}, v{BK2}")
        for t in range(2):
            a.lds(f"ds_read_b64 {vr(QB[2*i2+t],2)}, v{TA} offset:{t*1536+1024}", "qr")
    set_flag(a, TA, FWA, 10)
    a("s_cmp_eq_u32 s35, 1")
    a("s_cbranch_scc1 L_a_kvgo")
    poll_global(a, TAG, 1, BV, 56, "s43", "s62", sleep=4)
    kv_first()
    a.label("L_a_kvgo")
    a.vm = [("k", 0)] * 2 + [("v", 0)] * 2 + [("k", 1)] * 2 + [("v", 1)] * 2
    S_(6)
    srd(a, 92, P_WD, 1536 * 1280); srd(a, 96, P_WO, 640 * 1280)
    warm_lane(a, 154, TA, 1280, 512 // NSH // 4, 320, 3)
    share(a, 32, NSH)
    a("s_and_b32 s37, s5, 3"); a("s_mul_i32 s37, s37, 320")
    a(f"s_mul_i32 s33, s32, {320 // NSH // 4 * 1280}"); a("s_add_u32 s33, s33, s37")
    a(f"s_mul_i32 s35, s32, {512 // NSH // 4 * 1280}"); a("s_add_u32 s35, s35, s37")
    srd(a, 12, P_WS, H_BYTES, WS_H)
    a("s_mul_i32 s25, s4, 196608"); a("s_mul_i32 s26, s5, 12288"); a("s_add_u32 s25, s25, s26")
    a("s_mul_i32 s26, s3, 3072"); a("s_add_u32 s25, s25, s26"); a("s_add_u32 s26, s25, 98304")
    def cold_blk(it, lines):
        def f():
            l = a.newlabel("cw"); r = a.newlabel("cr")
            a(f"s_cmp_eq_u32 s34, {it}"); a(f"s_cbranch_scc1 {l}"); a.label(r)
            a.cold += [f"{l}:"] + ["    " + x for x in lines] + [f"    s_branch {r}"]
        return f
    sr_ = K1f[2]
    SENT = [f"v_mov_b32 v{sr_+i}, -1" for i in range(4)] + [f"buffer_store_dwordx4 {vr(sr_,4)}, v{L16}, s[20:23], s{38+2*t} offen sc1" for t in range(2)] + \
           ["s_mov_b64 exec, s[60:61]"] + [f"buffer_store_dwordx2 {vr(sr_,2)}, v{L16}, s[20:23], s{39+2*t} offen sc1" for t in range(2)] + ["s_mov_b64 exec, -1"]
    if opt.get("hsent"): SENT += [f"buffer_store_dwordx4 {vr(sr_,4)}, v{L16}, s[12:15], s{25+b} offen offset:{t*1024} sc1" for b in range(2) for t in range(3)]
    SFLG = ["s_waitcnt vmcnt(8)", "s_mov_b64 exec, 1", f"v_mov_b32 v{TA}, 12", f"ds_write_b32 v{FWA}, v{TA}", "s_mov_b64 exec, -1"]
    def cold_warm(it, which):
        def f():
            l = a.newlabel("cw"); r = a.newlabel("cr")
            a(f"s_cmp_eq_u32 s34, {it}"); a(f"s_cbranch_scc1 {l}"); a.label(r)
            if which == "d": a.cold += [f"{l}:", "    buffer_load_dword v155, v154, s[92:95], s35 offen", f"    s_add_u32 s35, s35, {512*1280}", f"    s_branch {r}"]
            else: a.cold += [f"{l}:", "    buffer_load_dword v155, v154, s[96:99], s33 offen", f"    s_add_u32 s33, s33, {320*1280}", f"    s_branch {r}"]
        return f
    for i in range(8):
        a(f"v_mov_b32 v{P[1]+i}, 0"); a(f"v_mov_b32 v{Vf[2][0]+i}, 0")
    a(f"s_mov_b32 s42, 0x{f32hex(2.0**100):08x}")
    a(f"v_lshlrev_b32 v{TB}, 2, v{LANE}")
    for i2 in range(3):
        owner(i2, 32); a("s_lshl_b32 s32, s32, 9"); a(f"s_add_u32 s32, s32, {L_MX}")
        a(f"v_add_u32 v{RA[i2]}, s32, v{TB}")
    a("s_lshl_b32 s32, s3, 9"); a(f"s_add_u32 s32, s32, {L_MX}")
    a(f"v_add_u32 v{FG2}, s32, v{TB}")
    def rowmax(t, dst, init):
        s = S[t]
        if init:
            a(f"v_max3_f32 v{dst}, v{s}, v{s+1}, v{s+2}")
            for i in range(3, 15, 2): a(f"v_max3_f32 v{dst}, v{dst}, v{s+i}, v{s+i+1}")
            a(f"v_max_f32 v{dst}, v{dst}, v{s+15}")
        else:
            for i in range(0, 16, 2): a(f"v_max3_f32 v{dst}, v{dst}, v{s+i}, v{s+i+1}")
    def embed(t, m):
        a(f"v_mov_b32 v{TB}, v{m}")
        a("s_nop 1")
        a(f"v_permlane32_swap_b32 v{m}, v{TB}")
        a("s_nop 1")
        a(f"v_max_f32 v{m}, v{m}, v{TB}")
        a(f"v_sub_f32 v{m}, 0, v{m}")
        a(f"v_cvt_pk_bf16_f32 v{TB}, v{m}, v{m}")
        a(f"v_lshlrev_b32 v{TB}, 16, v{TB}")
        a(f"v_sub_f32 v{TB}, v{m}, v{TB}")
        a(f"v_cvt_pk_bf16_f32 v{TB}, v{m}, v{TB}")
        a(f"v_cndmask_b32 v{QB[6+t]}, v{TB}, v{QB[6+t]}, s[60:61]")
    a.wait(vm=("k", 0))
    for t in range(2):
        a(f"v_mfma_f32_32x32x16_bf16 {vr(S[t],16)}, {vr(K1f[0],4)}, {vr(QA[6+t],4)}, 0")
        a(f"v_mfma_f32_32x32x8_bf16 {vr(S[t],16)}, {vr(K2f[0],2)}, {vr(QB[6+t],2)}, {vr(S[t],16)}")
    a("s_nop 7"); a("s_nop 1")
    for t in range(2):
        rowmax(t, TA, True); embed(t, TA)
        a.lds(f"ds_write_b32 v{FG2}, v{QB[6+t]} offset:{t*256}", "mw")
    a.wait(lg="mw")
    set_flag(a, FV, FWA, 11)
    poll_lds(a, FV, FAD, 11, "fl")
    for i2 in range(3):
        for t in range(2):
            a.lds(f"ds_read_b32 v{QB[2*i2+t]}, v{RA[i2]} offset:{t*256}", ("mr", 2 * i2 + t))
    for i2 in range(3):
        owner(i2, 32); a("s_mul_i32 s32, s32, 18432"); a(f"s_add_u32 s32, s32, {L_RED + i2*6144}")
        a(f"v_add_u32 v{RA[i2]}, s32, v{L16}")
    a(f"v_add_u32 v{FG2}, {L_FLAGG}, v{FAD}")
    a("s_mul_i32 s32, s3, 18432")
    a(f"s_add_u32 s32, s32, {L_RED}")
    a(f"v_add_u32 v{BV}, s32, v{L16}")
    a(f"v_mfma_f32_32x32x16_bf16 {vr(S[0],16)}, {vr(K1f[0],4)}, {vr(QA[0],4)}, 0")
    a.wait(lg="all")
    a(f"v_mfma_f32_32x32x8_bf16 {vr(S[0],16)}, {vr(K2f[0],2)}, {vr(QB[0],2)}, {vr(S[0],16)}")
    a("s_mov_b32 s34, 0")
    a("s_nop 7"); a("s_nop 1")
    a.vm = [("v", 0)] * 2 + [("k", 1)] * 2 + [("v", 1)] * 2
    S_(7); S_(10, True)
    pat = opt.get("pat", "MeeeMeeeMeeeM|eeeeeeecccccccc")
    def tile(b, last):
        for j in range(8):
            if opt.get("ts") and not last and (b == 0 or (b == 1 and j == 0)):
                ix = j if b == 0 else 8
                a(f"s_memtime s[{64+2*ix}:{65+2*ix}]")
            fill = []
            if not last:
                b2 = (b + 2) % 3
                if j in (1, 2): fill = [kld(b2, "s28", ("k", b2))[j - 1]]
                if j in (3, 4): fill = [vld(b2, "s28", ("v", b2))[j - 3]]
                if j == 5: fill = adv()
                if j == 6:
                    fill = [] if opt.get("nowarm") else [cold_warm(0, "d")] + ([cold_warm(1, "o")] if b else [])
                    if b == 0: fill += [cold_blk(1, SFLG)]
                if j == 0 and b == 0: fill = [cold_blk(0, SENT)]
            else:
                if j == 0: fill = [lambda: a.lds(f"ds_read_b32 v{FV}, v{FG2}", "fl")]
                if j == 1: fill = [lambda: poll_lds(a, FV, FG2, 4, "fl", issue=False)]
                if 2 <= j <= 7:
                    jj = j - 2
                    fill = [lambda: None] * 3 + [(lambda r=r: a.lds(f"ds_write_b128 v{RA[jj//2]}, {vr(O[jj]+4*r,4)} offset:{(jj%2)*3072+r*1024}", "ow")) for r in range(3)]
            if j == 7 and not last: a.wait(vm=("k", (b + 1) % 3))
            if j == 1: a.wait(vm=("v", b))
            kb = b if j < 7 else (b + 1) % 3
            vb = b if j > 0 else (b - 1) % 3
            aa = j % 2; o = 1 - aa
            s_, p_ = S[aa], P[aa]
            jn, jp = (j + 1) % 8, (j - 1) % 8
            M = [f"v_mfma_f32_32x32x16_bf16 {vr(S[o],16)}, {vr(K1f[kb],4)}, {vr(QA[jn],4)}, 0",
                 f"v_mfma_f32_32x32x8_bf16 {vr(S[o],16)}, {vr(K2f[kb],2)}, {vr(QB[jn],2)}, {vr(S[o],16)}",
                 f"v_mfma_f32_32x32x16_bf16 {vr(O[jp],16)}, {vr(Vf[vb][0],4)}, {vr(P[o],4)}, {vr(O[jp],16)}",
                 f"v_mfma_f32_32x32x16_bf16 {vr(O[jp],16)}, {vr(Vf[vb][1],4)}, {vr(P[o]+4,4)}, {vr(O[jp],16)}"]
            ne = nc = nm = 0
            for ch in (opt['pat2'] if opt.get('pat2') and j % opt.get('p2every', 4) == 0 else pat):
                if ch == "M":
                    if not (last and j == 7 and nm < 2): a(M[nm])
                    nm += 1
                elif ch == "e": a(f"v_exp_f32 v{s_+ne}, v{s_+ne}"); ne += 1
                elif ch == "c": a(f"v_cvt_pk_bf16_f32 v{p_+nc}, v{s_+2*nc}, v{s_+2*nc+1}"); nc += 1
                elif ch == "|": a.sprinkle(fill, opt.get("fevery", 1), "v_")
                elif ch == "<": a("s_setprio 3")
                elif ch == ">": a("s_setprio 0")
            a.flush_pend()
    top_vm = list(a.vm)
    a.raw(".p2align 6")
    a.label("L_a_loop")
    tile(0, False); tile(1, False); tile(2, False)
    if opt.get("its"):
        for it, ix in ((0, 1), (1, 2), (2, 3), (3, 4), (4, 5)):
            l = a.newlabel("it"); a(f"s_cmp_lg_u32 s34, {it}"); a(f"s_cbranch_scc1 {l}"); S0_(ix, True); a(f"s_sub_u32 s{44+ix}, s{44+ix}, s54"); a(f"s_mul_i32 s{44+ix}, s{44+ix}, 100"); a(f"s_add_u32 s{44+ix}, s{44+ix}, s44"); a.label(l)
    a("s_add_u32 s34, s34, 1")
    a("s_cmp_lt_u32 s34, 5")
    a("s_cbranch_scc1 L_a_loop")
    assert a.vm == top_vm, (a.vm, top_vm)
    tile(0, True)
    a("s_nop 0")
    a(f"v_mfma_f32_32x32x16_bf16 {vr(O[7],16)}, {vr(Vf[0][0],4)}, {vr(P[1],4)}, {vr(O[7],16)}")
    a(f"v_mfma_f32_32x32x16_bf16 {vr(O[7],16)}, {vr(Vf[0][1],4)}, {vr(P[1]+4,4)}, {vr(O[7],16)}")
    a.wait(lg="ow")
    set_flag(a, FV, FWA, 13)
    if st:
        S_(8); S_(11, True); a("s_sub_u32 s54, s55, s54"); a("s_mov_b32 s55, 0")
        if opt.get("ts"):
            for i in range(1, 8):
                a(f"s_sub_u32 s{44+i}, s{64+2*i}, s{62+2*i}"); a(f"s_mul_i32 s{44+i}, s{44+i}, 100"); a(f"s_add_u32 s{44+i}, s{44+i}, s44")
    poll_lds(a, FV, FAD, 13, "fl")
    RR = 16
    RR = O[0]
    if opt.get("tst"): S0_(1)
    for src in range(3):
        for t in range(2):
            for r in range(3):
                a.lds(f"ds_read_b128 {vr(RR+24*src+12*t+4*r,4)}, v{BV} offset:{src*6144+t*3072+r*1024}", ("or", src))
    for src in range(3):
        a.wait(lg=("or", src))
        for i in range(0, 24, 2):
            a(f"v_pk_add_f32 {vr(O[6]+i,2)}, {vr(O[6]+i,2)}, {vr(RR+24*src+i,2)}")
    a(f"v_add_f32_e64 v{TA}, |v{O[6]}|, |v{O[6]+1}|")
    for i in range(2, 24): a(f"v_add_f32_e64 v{TA}, v{TA}, |v{O[6]+i}|")
    a(f"v_cmp_ngt_f32 vcc, s42, v{TA}")
    a("s_cmp_eq_u64 vcc, 0")
    a("s_cbranch_scc0 L_a_fallback")
    a.label("L_a_norm")
    if opt.get("tst"): S0_(2)
    a(f"v_mov_b32 v{FG2}, {BIG}")
    a(f"v_cndmask_b32 v{FG2}, v{FG2}, v{L16}, s[60:61]")
    for t in range(2):
        oo = O[6 + t]
        a(f"v_mov_b32 v{TA}, v{oo+8}")
        a(f"v_mov_b32 v{TB}, v{oo+8}")
        a("s_nop 1")
        a(f"v_permlane32_swap_b32 v{TA}, v{TB}")
        a("s_nop 1")
        a(f"v_rcp_f32 v{TB}, v{TB}")
        a("s_nop 0")
        for i in range(12): a(f"v_mul_f32 v{oo+i}, v{oo+i}, v{TB}")
        for i in range(6): a(f"v_cvt_pk_bf16_f32 v{S[t]+i}, v{oo+2*i}, v{oo+2*i+1}")
        a(f"buffer_store_dwordx4 {vr(S[t],4)}, v{L16}, s[20:23], s{38+2*t} offen sc1")
        a(f"buffer_store_dwordx2 {vr(S[t]+4,2)}, v{FG2}, s[20:23], s{39+2*t} offen sc1")
    if opt.get("tst"): S0_(3)
    if st:
        S_(9); st.flush(a, P_WS, 6, 20)
    a("s_endpgm")
    a.label("L_a_fallback")
    a("s_waitcnt vmcnt(0) lgkmcnt(0)")
    M = [RA[0], RA[1]]
    FO = [156, 172]
    for t in range(2):
        a(f"v_mov_b32 v{M[t]}, 0xff800000")
        a(f"v_cndmask_b32 v{QB[6+t]}, v{ZERO}, v{QB[6+t]}, s[60:61]")
    a("s_mov_b32 s43, 0")
    a.label("L_a_fb1")
    for f in kld(0, "s43", None): f()
    a("s_waitcnt vmcnt(0)")
    for t in range(2):
        a(f"v_mfma_f32_32x32x16_bf16 {vr(S[t],16)}, {vr(K1f[0],4)}, {vr(QA[6+t],4)}, 0")
        a(f"v_mfma_f32_32x32x8_bf16 {vr(S[t],16)}, {vr(K2f[0],2)}, {vr(QB[6+t],2)}, {vr(S[t],16)}")
    a("s_nop 7"); a("s_nop 7")
    for t in range(2): rowmax(t, M[t], False)
    a("s_add_u32 s43, s43, 3072")
    a(f"s_cmp_lt_u32 s43, {KV_BYTES}")
    a("s_cbranch_scc1 L_a_fb1")
    NEG = [188, 204]
    for t in range(2):
        a(f"v_mov_b32 v{TB}, v{M[t]}")
        a("s_nop 1")
        a(f"v_permlane32_swap_b32 v{M[t]}, v{TB}")
        a("s_nop 1")
        a(f"v_max_f32 v{M[t]}, v{M[t]}, v{TB}")
        for i in range(16):
            a(f"v_sub_f32 v{NEG[t]+i}, 0, v{M[t]}"); a(f"v_mov_b32 v{FO[t]+i}, 0")
    a("s_mov_b32 s43, 0")
    a.label("L_a_fb2")
    for f in kld(0, "s43", None) + vld(0, "s43", None): f()
    a("s_waitcnt vmcnt(0)")
    for t in range(2):
        a(f"v_mfma_f32_32x32x16_bf16 {vr(S[t],16)}, {vr(K1f[0],4)}, {vr(QA[6+t],4)}, {vr(NEG[t],16)}")
        a(f"v_mfma_f32_32x32x8_bf16 {vr(S[t],16)}, {vr(K2f[0],2)}, {vr(QB[6+t],2)}, {vr(S[t],16)}")
    a("s_nop 7"); a("s_nop 7")
    for t in range(2):
        for r in range(16): a(f"v_exp_f32 v{S[t]+r}, v{S[t]+r}")
        a("s_nop 0")
        for i in range(8): a(f"v_cvt_pk_bf16_f32 v{P[t]+i}, v{S[t]+2*i}, v{S[t]+2*i+1}")
        a("s_nop 1")
        a(f"v_mfma_f32_32x32x16_bf16 {vr(FO[t],16)}, {vr(Vf[0][0],4)}, {vr(P[t],4)}, {vr(FO[t],16)}")
        a(f"v_mfma_f32_32x32x16_bf16 {vr(FO[t],16)}, {vr(Vf[0][1],4)}, {vr(P[t]+4,4)}, {vr(FO[t],16)}")
    a("s_add_u32 s43, s43, 3072")
    a(f"s_cmp_lt_u32 s43, {KV_BYTES}")
    a("s_cbranch_scc1 L_a_fb2")
    a("s_nop 7"); a("s_nop 7")
    for t in range(2):
        for i in range(12): a(f"v_mov_b32 v{O[6+t]+i}, v{FO[t]+i}")
    a("s_branch L_a_norm")

def gen_g(a, S0_, st, opt, NSH):
    E_ = (lambda i: S0_(i)) if opt.get("early") else (lambda i: None)
    S_ = (lambda i, cyc=False: S0_(i, cyc) if (not opt.get("early") or i < 6 or i == 9) else None)
    E_(6)
    TAG = 11
    X = 16; U = 32; SUM, SQ = 12, 14
    a(f"s_setprio {opt.get('gfp', 3)}")
    a(f"v_lshrrev_b32 v{TA}, 5, v{LANE}")
    a(f"v_mul_u32_u24 v{TA}, 1280, v{TA}")
    a(f"v_and_b32 v{TB}, 31, v{LANE}")
    a(f"v_lshl_add_u32 v56, v{TB}, 4, v{TA}")
    a(f"v_mov_b32 v9, {BIG}")
    a(f"v_cmp_gt_u32 vcc, 16, v{TB}")
    a("s_lshl_b32 s28, s4, 3")
    a("s_add_u32 s28, s28, s5")
    a("v_cndmask_b32 v57, v9, v56, vcc")
    a("s_lshl_b32 s7, s28, 2")
    a("s_add_u32 s7, s7, s3")
    a("s_mul_i32 s7, s7, 2560")
    a("s_mov_b64 s[60:61], vcc")
    a.vmem(f"buffer_load_dwordx4 {vr(X,4)}, v56, s[8:11], s7 offen", ("x", 0))
    a.vmem(f"buffer_load_dwordx4 {vr(X+4,4)}, v56, s[8:11], s7 offen offset:512", ("x", 1))
    a.vmem(f"buffer_load_dwordx4 {vr(X+8,4)}, v57, s[8:11], s7 offen offset:1024", ("x", 2))
    a("s_barrier")
    a("s_cmp_ge_u32 s3, 2")
    a(f"s_cselect_b32 s12, s{P_WV}, s{P_WK}")
    a(f"s_cselect_b32 s13, s{P_WV+1}, s{P_WK+1}")
    a("s_mov_b32 s14, 25600"); a("s_mov_b32 s15, 0x00020000")
    a(f"s_cselect_b32 s24, {L_WV-L_WK}, 0")
    a(f"s_add_u32 s24, s24, {L_WK}")
    a("s_and_b32 s25, s3, 1")
    a("s_lshl_b32 s25, s25, 10")
    a("s_add_u32 s24, s24, s25")
    for j in range(13):
        a(f"s_add_u32 m0, s24, {j*2048}")
        a("s_nop 0")
        a.vmem(f"buffer_load_dwordx4 v{L16}, s[12:15], s25 offen lds", "wkv")
        a("s_add_u32 s25, s25, 2048")
    X2 = 216; U2 = 64
    a(f"v_and_b32 v{TB}, 31, v{LANE}")
    a(f"v_and_b32 v{TA}, 3, v{LANE}")
    a(f"v_lshlrev_b32 v{FAD}, 2, v{TA}")
    a(f"v_add_u32 v{FAD}, {L_FLAGG}, v{FAD}")
    a("s_lshl_b32 s30, s3, 2")
    a(f"s_add_u32 s30, s30, {L_FLAGG}")
    a(f"v_mov_b32 v{FWA}, s30")
    GQ, WA, XA, J, XW = 58, 59, 60, 61, 62
    a(f"v_lshrrev_b32 v{GQ}, 4, v{LANE}")
    a(f"v_bfe_u32 v{WA}, v{LANE}, 2, 2")
    a(f"v_lshl_add_u32 v{WA}, v{GQ}, 3, v{WA}")
    a(f"v_mul_u32_u24 v{WA}, 40, v{WA}")
    a(f"v_lshlrev_b32 v{TA}, 3, v{TA}")
    a("s_cmp_ge_u32 s3, 2")
    a("s_cselect_b32 s24, 0, -1")
    a("s_cselect_b32 s25, 32, 0")
    a("s_bitcmp1_b32 s3, 0")
    a(f"s_cselect_b32 s26, {L_WV-L_WK}, 0")
    a(f"s_add_u32 s26, s26, {L_WK}")
    a("s_add_u32 s25, s25, s26")
    a(f"v_and_b32 v{TA}, s24, v{TA}")
    a(f"v_add3_u32 v{WA}, v{WA}, v{TA}, s25")
    a("s_lshr_b32 s26, s5, 2")
    a(f"s_mul_i32 s26, s26, {XNT}")
    a("s_and_b32 s27, s5, 3")
    a("s_lshl_b32 s27, s27, 7")
    a("s_add_u32 s26, s26, s27")
    a(f"s_add_u32 s26, s26, {L_XN}")
    a(f"v_and_b32 v{TA}, 7, v{LANE}")
    a(f"v_mul_u32_u24 v{XA}, 528, v{GQ}")
    a(f"v_lshl_add_u32 v{XA}, v{TA}, 4, v{XA}")
    a(f"v_add_u32 v{XA}, s26, v{XA}")
    a("s_lshl_b32 s27, s3, 5")
    a("s_add_u32 s27, s27, s26")
    a(f"v_mul_u32_u24 v{XW}, 528, v{TB}")
    a(f"v_lshrrev_b32 v{TA}, 5, v{LANE}")
    a(f"v_lshl_add_u32 v{XW}, v{TA}, 4, v{XW}")
    a(f"v_add_u32 v{XW}, s27, v{XW}")
    srd(a, 24, P_WS, KV_BYTES, WS_KV)
    srd(a, 56, P_WS, FL_BYTES, WS_FL)
    srd(a, 16, P_WG, 640 * 3072)
    srd(a, 20, P_WU, 640 * 3072)
    a("s_lshr_b32 s29, s28, 2")
    a("s_mul_i32 s29, s29, 3072")
    a("s_bfe_u32 s30, s28, 0x10001")
    a("s_and_b32 s31, s28, 1")
    a(f"v_and_b32 v{J}, 15, v{LANE}")
    a("s_bitcmp1_b32 s3, 0")
    a("s_cbranch_scc1 L_g_va")
    a("s_lshl_b32 s32, s30, 4"); a("s_lshl_b32 s33, s31, 2"); a("s_add_u32 s32, s32, s33")
    a(f"v_lshrrev_b32 v30, 2, v{J}")
    a("v_lshlrev_b32 v30, 3, v30")
    a(f"v_and_b32 v28, 3, v{J}")
    a("v_add3_u32 v30, v30, v28, s32")
    a(f"v_lshrrev_b32 v28, 1, v{GQ}")
    a("v_lshlrev_b32 v28, 9, v28")
    a("v_lshl_add_u32 v28, v30, 4, v28")
    a(f"v_and_b32 v31, 1, v{GQ}")
    a("v_lshl_add_u32 v28, v31, 3, v28")
    a("v_lshlrev_b32 v31, 3, v30")
    a(f"v_lshl_add_u32 v31, v{GQ}, 8, v31")
    a("v_add_u32 v31, 1024, v31")
    a(f"v_cmp_gt_u32 vcc, 2, v{GQ}")
    a("v_mov_b32 v29, 0x3f803f80")
    a("v_mov_b32 v57, 0")
    a("v_cndmask_b32 v31, v9, v31, vcc")
    a(f"v_cmp_eq_u32 s[40:41], 1, v{GQ}")
    a("s_cmp_ge_u32 s3, 2")
    a("s_cselect_b64 vcc, -1, 0")
    a("s_cselect_b64 s[40:41], s[40:41], 0")
    a("v_cndmask_b32 v28, v28, v31, vcc")
    a(f"v_cmp_gt_u32 vcc, 8, v{J}")
    a("s_nop 1")
    a("v_cndmask_b32 v28, v9, v28, vcc")
    a("s_branch L_g_vb")
    a.label("L_g_va")
    a("s_mul_i32 s32, s30, 768"); a("s_mul_i32 s33, s31, 384"); a("s_add_u32 s32, s32, s33"); a("s_add_u32 s32, s32, 1536")
    a(f"v_and_b32 v30, 3, v{J}")
    a(f"v_bfe_u32 v28, v{J}, 2, 1")
    a("v_lshl_add_u32 v30, v28, 3, v30")
    a(f"v_bfe_u32 v28, v{J}, 3, 1")
    a("v_lshl_add_u32 v30, v28, 2, v30")
    a(f"v_add_u32 v28, 16, v{J}")
    a("s_cmp_ge_u32 s3, 2")
    a("s_cselect_b64 vcc, -1, 0")
    a("s_cselect_b32 s33, 6, 16")
    a("s_cselect_b32 s34, 4, 99")
    a("s_cselect_b32 s35, 5, 99")
    a("v_cndmask_b32 v30, v30, v28, vcc")
    a("v_lshlrev_b32 v30, 4, v30")
    a(f"v_lshl_add_u32 v30, v{GQ}, 3, v30")
    a("v_add_u32 v30, s32, v30")
    a(f"v_cmp_gt_u32 vcc, s33, v{J}")
    a("v_mov_b32 v29, 0x3f803f80")
    a("s_nop 0")
    a("v_cndmask_b32 v30, v9, v30, vcc")
    a(f"v_cmp_gt_u32 vcc, 2, v{GQ}")
    a("s_nop 1")
    a("v_cndmask_b32 v28, v9, v30, vcc")
    a(f"v_cmp_eq_u32 s[40:41], s35, v{J}")
    a(f"v_cmp_eq_u32 vcc, s34, v{J}")
    a("s_nop 1")
    a(f"v_cndmask_b32 v29, v29, v{ZERO}, s[40:41]")
    a("s_or_b64 s[40:41], vcc, s[40:41]")
    a("v_mov_b32 v57, v29")
    a.label("L_g_vb")
    a("s_min_u32 s42, s3, 2")
    a("s_add_u32 s42, s42, 4")
    ln_group(a, 42, 43, 42, 56, 63)
    wq_offsets(a, 144)
    srd(a, 92, P_WQ, 640 * 1280)
    a("s_mul_i32 s42, s5, 160")
    S_(1)
    def hook(i):
        if i == 0:
            S_(2)
            a.vmem(f"buffer_load_dword v{TAG}, v{ZERO}, s[88:91], 0 offen sc1", "tag")
    ln_stats(a, X, U, 3, SUM, SQ, lambda i: ("x", i), hook)
    dpp_sum(a, [SUM, SQ], ("quad_perm:[1,0,3,2]", "quad_perm:[2,3,0,1]", "row_half_mirror", "row_mirror"))
    a(f"v_mov_b32 v{SUM+1}, v{SUM}"); a(f"v_mov_b32 v{SQ+1}, v{SQ}")
    a("s_nop 1")
    a(f"v_permlane16_swap_b32 v{SUM}, v{SUM+1}")
    a(f"v_permlane16_swap_b32 v{SQ}, v{SQ+1}")
    a("s_nop 1")
    a(f"v_add_f32 v{SUM}, v{SUM}, v{SUM+1}")
    a(f"v_add_f32 v{SQ}, v{SQ}, v{SQ+1}")
    ln_finish(a, SUM, SQ)
    for i in range(3):
        for d in range(4):
            pp = vr(U + 8 * i + 2 * d, 2)
            a(f"v_pk_fma_f32 {pp}, {pp}, {vr(SQ,2)}, {vr(SUM,2)}")
        for d in range(4):
            a(f"v_cvt_pk_bf16_f32 v{X+4*i+d}, v{U+8*i+2*d}, v{U+8*i+2*d+1}")
        if i == 2: a("s_mov_b64 exec, s[60:61]")
        a.lds(f"ds_write_b128 v{XW}, {vr(X+4*i,4)} offset:{i*16896}", "xw")
        if i == 2: a("s_mov_b64 exec, -1")
    for i in range(10):
        a.vmem(f"buffer_load_dwordx4 {vr(X2+4*i,4)}, v56, s[8:11], s43 offen offset:{128*i}", ("x2", i))
    a.wait(vm="wkv")
    set_flag(a, FV, FWA, 1)
    poll_lds(a, FV, FAD, 1, "fl")
    S_(3)
    KA = 16
    def rd(s):
        b = 64 + (s % 10) * 8
        a.lds(f"ds_read_b64_tr_b16 v[{b}:{b+1}], v{WA} offset:{s*1280}", ("g", s))
        a.lds(f"ds_read_b64_tr_b16 v[{b+2}:{b+3}], v{WA} offset:{s*1280+160}", ("g", s))
        a.lds(f"ds_read_b128 v[{b+4}:{b+7}], v{XA} offset:{s*2112}", ("g", s))
    a("s_bitcmp1_b32 s3, 0")
    a("s_cbranch_scc1 L_g_v")
    sv = (list(a.vm), list(a.lg))
    for role in ("k", "v"):
        if role == "v":
            a.label("L_g_v"); a.vm, a.lg = list(sv[0]), list(sv[1])
        for s_ in range(5): rd(s_)
        for s_ in range(20):
            a.wait(lg=("g", s_))
            if s_ + 5 < 20: rd(s_ + 5)
            b = 64 + (s_ % 10) * 8
            cin = vr(KA, 4) if s_ else "0"
            if role == "k": a(f"v_mfma_f32_16x16x32_bf16 {vr(KA,4)}, v[{b}:{b+3}], v[{b+4}:{b+7}], {cin}")
            else: a(f"v_mfma_f32_16x16x32_bf16 {vr(KA,4)}, v[{b+4}:{b+7}], v[{b}:{b+3}], {cin}")
        if role == "k": a("s_branch L_g_kvst")
    a.label("L_g_kvst")
    set_flag(a, FV, FWA, 2)
    a("s_nop 3")
    a(f"v_cvt_pk_bf16_f32 v24, v{KA}, v{KA+1}")
    a(f"v_cvt_pk_bf16_f32 v25, v{KA+2}, v{KA+3}")
    a("v_cndmask_b32 v24, v24, v29, s[40:41]")
    a("v_cndmask_b32 v25, v25, v57, s[40:41]")
    a.vmem("buffer_store_dwordx2 v[24:25], v28, s[24:27], s29 offen sc1", "kvst")
    S_(4)
    def g3_wq(g0, n):
        for g in range(g0, g0 + n):
            a(f"s_add_u32 m0, 0, {L_R1 + SLOT(g)*5120}")
            a(f"s_add_u32 s43, s42, {g*40960}")
            for i in range(4):
                a(f"buffer_load_dwordx4 v{144+i}, s[92:95], s43 offen offset:{i*1024} lds")
            a(f"s_add_u32 m0, 0, {L_R1 + SLOT(g)*5120+4096}")
            a("s_nop 0")
            a(f"buffer_load_dwordx4 v148, s[92:95], s43 offen lds")
    a("s_cmp_eq_u32 s3, 3")
    a("s_cbranch_scc1 L_g_noln")
    ln_stats(a, X2, U2, 10, SUM, SQ, lambda i: ("x2", i))
    dpp_sum(a, [SUM, SQ], ("quad_perm:[1,0,3,2]", "quad_perm:[2,3,0,1]", "row_half_mirror"))
    ln_finish(a, SUM, SQ)
    ln_write(a, X2, U2, SUM, SQ, 63)
    set_flag(a, FV, FWA, 3)
    a("s_waitcnt vmcnt(0)")
    a("s_branch L_g_ln1")
    a.label("L_g_noln")
    a.lg = []
    set_flag(a, FV, FWA, 3)
    poll_lds(a, FV, FAD, 2, "fl")
    g3_wq(5, 10)
    a("s_waitcnt vmcnt(50)")
    a.label("L_g_ln1")
    a.vm = []
    tag_check(a, TAG)
    a(f"v_mov_b32 v{TA}, s62")
    a("s_lshl_b32 s36, s28, 4")
    a("s_mov_b64 exec, 1")
    a(f"v_mov_b32 v{FV}, 1")
    a(f"ds_add_rtn_u32 v{FV}, v{ZERO}, v{FV} offset:{L_CNTKV}")
    a("s_waitcnt lgkmcnt(0)"); a.lg = []
    a(f"v_cmp_eq_u32 vcc, 3, v{FV}")
    a("s_and_b64 exec, exec, vcc")
    a("s_cbranch_execz L_g_nokvflag")
    a(f"buffer_store_dword v{TA}, v{ZERO}, s[56:59], s36 offen sc1")
    a.label("L_g_nokvflag")
    a("s_mov_b64 exec, -1")
    S_(5)
    a("s_cmp_lg_u32 s3, 3")
    a("s_cbranch_scc1 L_g_ln2")
    a(f"v_subrev_u32 v{TB}, {L_FLAGG}, v{FAD}")
    a("s_waitcnt vmcnt(0)")
    set_flag(a, FV, ZERO, 1, off=L_WQF)
    poll_lds(a, FV, TB, 4, "fl")
    g3_wq(15, 5)
    a("s_waitcnt vmcnt(0)")
    set_flag(a, FV, ZERO, 2, off=L_WQF)
    a.label("L_g_ln2")
    WO = [12, 13, 14]; WT, XA0, XA1 = 15, 9, 242
    for i in range(3):
        a(f"v_add_u32 v{WO[i]}, {64*i}, v{LANE}")
        a(f"v_mul_u32_u24 v{TA}, 171, v{WO[i]}")
        a(f"v_lshrrev_b32 v{TA}, 10, v{TA}")
        a(f"v_mul_u32_u24 v{TB}, 6, v{TA}")
        a(f"v_sub_u32 v{TB}, v{WO[i]}, v{TB}")
        a(f"v_mul_u32_u24 v{TA}, 3072, v{TA}")
        a(f"v_lshl_add_u32 v{WO[i]}, v{TB}, 4, v{TA}")
        if i: a(f"v_subrev_u32 v{WO[i]}, {1024*i}, v{WO[i]}")
    a("s_mul_i32 s32, s5, 384")
    a("s_mul_i32 s33, s3, 96")
    a("s_add_u32 s32, s32, s33")
    a(f"s_mul_i32 s33, s3, {WSLOT}")
    a(f"s_add_u32 s33, s33, {L_R1}")
    a("s_waitcnt lgkmcnt(0)"); a.lg = []
    wcount = {}
    def w_parts(u):
        sl = WSO[WMAP(u)]
        def mk(m, i):
            def f():
                if i == 0:
                    a(f"s_add_u32 m0, s33, {sl + m*3200}"); a("s_nop 0")
                a.vmem(f"buffer_load_dwordx4 v{WO[i]}, s[{16+4*m}:{19+4*m}], s32 offen offset:{i*1024} lds", ("w", u))
                if m == 1 and i == 2: a("s_add_u32 s32, s32, 98304")
                wcount[u] = wcount.get(u, 0) + 1
            return f
        return [mk(m, i) for m in range(2) for i in range(3)]
    def gwarm():
        warm(a, [16, 20], 3072, 640 // NSH // 4, 384, ("s5", 384), NSH, TA, 60, 61, 3)
    if opt.get("wwarm") == "b": gwarm()
    if opt.get("wwarm") == "c":
        a(f"v_mov_b32 v{TB}, {L_WQF}")
        poll_lds(a, FV, TB, 2, "fl")
        gwarm()
    AFL = 11
    a(f"v_subrev_u32 v{AFL}, {L_FLAGG}, v{FAD}")
    a(f"v_lshrrev_b32 v{TB}, 5, v{LANE}")
    a(f"v_bfe_u32 v{WT}, v{LANE}, 2, 2")
    a(f"v_lshl_add_u32 v{WT}, v{TB}, 3, v{WT}")
    a(f"v_mul_u32_u24 v{229}, 320, v{WT}")
    a(f"v_mul_u32_u24 v{WT}, 96, v{WT}")
    a(f"v_mul_u32_u24 v{XA0}, 528, v{TB}")
    a(f"v_mul_u32_u24 v{230}, 40, v{TB}")
    a(f"v_and_b32 v{TB}, 1, v{LANE}")
    a(f"v_lshl_add_u32 v{WT}, v{TB}, 4, v{WT}")
    a(f"v_bfe_u32 v{TB}, v{LANE}, 1, 1")
    a(f"v_lshl_add_u32 v{WT}, v{TB}, 3, v{WT}")
    a(f"v_bfe_u32 v{TB}, v{LANE}, 4, 1")
    a(f"v_mul_u32_u24 v{TA}, 3200, v{TB}")
    a(f"v_add3_u32 v{WT}, v{WT}, v{TA}, s33")
    DO = 232; DO2 = 237; XR = 242; DT, PA, OA, DT2 = 252, 253, 254, 255
    a(f"v_and_b32 v{TA}, 3, v{LANE}")
    a(f"v_lshl_add_u32 v{TA}, v{TB}, 2, v{TA}")
    a("s_lshl_b32 s29, s3, 1")
    a(f"v_add_u32 v{TA}, s29, v{TA}")
    a(f"v_and_b32 v{TA}, 7, v{TA}")
    a(f"v_mul_u32_u24 v{TA}, 40, v{TA}")
    a("s_mov_b32 s29, s33")
    a(f"v_add3_u32 v{DT}, v229, v{TA}, s29")
    a(f"v_and_b32 v{TA}, 7, v{LANE}")
    a(f"v_lshlrev_b32 v{PA}, 4, v{TA}")
    a(f"v_and_b32 v{TA}, 31, v{LANE}")
    a(f"v_lshl_add_u32 v{XA0}, v{TA}, 4, v{XA0}")
    a(f"v_add_u32 v{XA0}, {L_XN}, v{XA0}")
    a(f"v_add_u32 v{XA1}, {XNT}, v{XA0}")
    a(f"v_mul_u32_u24 v{TA}, 1280, v{TA}")
    a(f"v_add_u32 v{OA}, v230, v{TA}")
    for i in range(5):
        a(f"v_add_u32 v{TA}, {64*i}, v{LANE}")
        a(f"v_mul_u32_u24 v{TB}, 205, v{TA}")
        a(f"v_lshrrev_b32 v{TB}, 12, v{TB}")
        a(f"v_mul_u32_u24 v{DO+i}, 20, v{TB}")
        a(f"v_sub_u32 v{TA}, v{TA}, v{DO+i}")
        a(f"v_lshlrev_b32 v{TA}, 4, v{TA}")
        if 0 < i < 4: a(f"v_subrev_u32 v{TA}, {1024*i}, v{TA}")
        a(f"v_mul_u32_u24 v{DO+i}, 1280, v{TB}")
        a(f"v_add_u32 v{DO+i}, v{DO+i}, v{TA}")
        a(f"v_lshrrev_b32 v{TB}, 2, v{TB}")
        a(f"v_add_u32 v{TB}, 1, v{TB}")
        a(f"v_mul_u32_u24 v{TB}, 20480, v{TB}")
        a(f"v_add_u32 v{DO2+i}, v{DO+i}, v{TB}")
    srd(a, 24, P_WS, H_BYTES, WS_H)
    srd(a, 12, P_WS, O_BYTES, WS_O)
    srd(a, 92, P_WD, 1536 * 1280)
    srd(a, 96, P_WO, 640 * 1280)
    a("s_mul_i32 s26, s5, 12288") if False else None
    a("s_lshl_b32 s36, s4, 1")
    a("s_mul_i32 s36, s36, 98304")
    a("s_mul_i32 s37, s5, 12288")
    a("s_mul_i32 s7, s3, 3072")
    a("s_add_u32 s7, s7, s37")
    a("s_add_u32 s36, s36, s7")
    a("s_add_u32 s37, s36, 98304")
    a("s_and_b32 s38, s5, 3")
    a(f"v_and_b32 v{TA}, 7, v{LANE}")
    a(f"v_lshlrev_b32 v{TA}, 2, v{TA}")
    poll_lds(a, FV, TA, 3, "fl")
    poll_lds(a, FV, AFL, opt.get("wstart", 8), "fl")
    a(f"s_setprio {opt['prioG']}")
    S_(6)
    a.raw("; @@G_MAIN_BEGIN")
    ACC = [[16 + 16 * (3 * b + t) for t in range(3)] for b in range(2)]
    FR = 112
    def f1parts(k):
        b = FR + (k % 2) * 20
        off = WSO[WMAP(k // 2)] + (k % 2) * 1536
        def B(i): return lambda: a.lds(f"ds_read_b128 {vr(b+4*i,4)}, v{XA1 if i else XA0} offset:{k*1056}", ("fb", k, i))
        def A_(t, hf):
            def f():
                if t == 0 and hf == 0:
                    while wcount.get(k // 2, 0) < 6: pend.pop(0)()
                    a.wait(vm=("w", k // 2))
                a.lds(f"ds_read_b64_tr_b16 {vr(b+8+4*t+2*hf,2)}, v{WT} offset:{off+t*32+hf*384}", ("fa", k, t))
            return f
        return [B(0), A_(0, 0), A_(0, 1), A_(1, 0), A_(1, 1), A_(2, 0), A_(2, 1), B(1)]
    a("s_mul_i32 s38, s38, 320")
    a("s_mul_i32 s39, s7, 20")
    a("s_add_u32 s39, s39, s38")
    a("s_mul_i32 s40, s3, 204800")
    a("s_add_u32 s40, s40, s38")
    a("s_mov_b32 s41, s40")
    def adv_d(so, k):
        if k % 3 == 2:
            a(f"s_add_u32 {so}, {so}, 204800"); a(f"s_sub_u32 s60, {so}, 1966080"); a(f"s_cmp_ge_u32 {so}, 1966080"); a(f"s_cselect_b32 {so}, s60, {so}")
        else: a(f"s_add_u32 {so}, {so}, 20480")
    def d_parts(k):
        sl = DS(k)
        if k < 24: sd, so, vo = "s[92:95]", "s39", DO
        elif k < 32: sd, so, vo = "s[96:99]", "s40", DO
        else: sd, so, vo = "s[96:99]", "s41", DO2
        def mk(i):
            def f():
                if i in (0, 4):
                    a(f"s_add_u32 m0, s29, {sl + (4096 if i == 4 else 0)}"); a("s_nop 0")
                a.vmem(f"buffer_load_dwordx4 v{vo+i}, {sd}, {so} offen" + (f" offset:{i*1024}" if i < 4 else "") + " lds", ("d", k))
                if i == 4:
                    if k < 24 and k % 3 == 2:
                        a("s_add_u32 s39, s39, 204800")
                        a("s_sub_u32 s60, s39, 1966080")
                        a("s_cmp_ge_u32 s39, 1966080")
                        a("s_cselect_b32 s39, s60, s39")
                    else:
                        a(f"s_add_u32 {so}, {so}, {20480 if k < 24 else (25600 if k < 32 else 102400)}")
            return f
        return [mk(i) for i in range(5)]
    def d_dma(k):
        for f in d_parts(k): f()
    a("s_lshl_b32 s30, s4, 9")
    a("s_lshl_b32 s31, s3, 7")
    a("s_add_u32 s30, s30, s31")
    a("s_lshl_b32 s42, s5, 4")
    a("s_add_u32 s42, s42, s30")
    a(f"s_add_u32 s42, s42, {FL_H}")
    a(f"s_add_u32 s30, s30, {FL_H}")
    SFR = 152
    a(f"v_mov_b32 v153, s62")
    def hflag(w):
        if w: a.wait(vm="hst")
        a("s_mov_b64 exec, 1")
        a.vmem(f"buffer_store_dword v153, v{ZERO}, s[56:59], s42 offen sc1", "hfl")
        a("s_mov_b64 exec, -1")
    PF = 152; NPF = opt.get("npf", 0)
    def pf_parts(k):
        def mk(i):
            def f():
                a.vmem(f"buffer_load_dwordx4 {vr(PF+20*(k-3)+4*i,4)}, v{DO+i}, s[92:95], s34 offen" + (f" offset:{i*1024}" if i < 4 else ""), ("pf", k))
                if i == 4: adv_d("s34", k)
            return f
        return [mk(i) for i in range(5)]
    def pf_write(k):
        def mk(i):
            def f():
                if i == 0: a.wait(vm=("pf", k))
                a.lds(f"ds_write_b128 v{DT2}, {vr(PF+20*(k-3)+4*i,4)} offset:{DS(k)+i*1024}", ("pw", k))
                if i == 4 and k == 2 + NPF: a("s_mov_b32 s39, s34")
            return f
        a.done.add(("d", k))
        return [mk(i) for i in range(5)]
    a(f"v_add_u32 v{DT2}, s29, v{L16}")
    a("s_add_u32 s34, s39, 40960"); adv_d("s34", 2)
    PFL = [f for k in range(3, 3 + NPF) for f in pf_parts(k)]
    pend = []
    for f in w_parts(0): f()
    if opt.get("wstart", 8) >= 6:
        for f in w_parts(1): f()
    else: pend += [lambda: poll_lds(a, FV, AFL, 6, "fl")] + w_parts(1)
    for f in f1parts(0): f()
    for k in range(40):
        b = FR + (k % 2) * 20
        rd_ = f1parts(k + 1) if k + 1 < 40 else []
        if k == 1: pend += [lambda: poll_lds(a, FV, AFL, 10, "fl")] + w_parts(2)
        if k % 2 == 0 and k >= 2 and k // 2 + 2 < 20: pend += w_parts(k // 2 + 2)
        if k % 2 == 1 and k >= opt.get("pfk", 25) and PFL: pend += PFL[:3]; PFL = PFL[3:]
        if k == 36: pend += d_parts(0)
        if k == 38: pend += d_parts(1)
        if opt.get("hsent"):
            if k == 24: pend += [lambda: poll_lds(a, FV, AFL, 12, "fl"), lambda: hflag(False)]
            if k == 34: pend += [lambda: a.vmem(f"buffer_load_dword v{SFR}, v{PA}, s[56:59], s30 offen sc1", "sfr")]
        elif k == 37: pend += [lambda: poll_lds(a, FV, AFL, 12, "fl")]
        if opt.get("f1st") and k in (1, 10, 20, 30): S0_({1: 1, 10: 2, 20: 3, 30: 4}[k])
        cut = [0, 2, 4, 5, 6, 7, 8]
        i = 0
        for bb in range(2):
            for t in range(3):
                a.wait(lg=[("fb", k, bb), ("fa", k, t)])
                a(f"v_mfma_f32_32x32x16_bf16 {vr(ACC[bb][t],16)}, {vr(b+8+4*t,4)}, {vr(b+4*bb,4)}, {vr(ACC[bb][t],16) if k else 0}")
                for f in rd_[cut[i]:cut[i+1]]: f()
                if (i >= 2 or len(pend) > 6) and pend: pend.pop(0)()
                i += 1
    while pend: pend.pop(0)()
    assert not PFL
    d_dma(2)
    set_flag(a, FV, FWA, 4)
    S_(7)
    a("s_cmp_ge_u32 s5, 4")
    a("s_cselect_b64 vcc, -1, 0")
    DA = [16 + 16 * t for t in range(5)]; BF = 136
    if opt.get('gp', 2) >= 1: a('s_setprio 3')
    for b in range(2):
        for t in range(3):
            c = ACC[b][t]
            for r in range(0, 8, 2): a(f"v_pk_mul_f32 {vr(c+r,2)}, {vr(c+r,2)}, {vr(c+8+r,2)}")
            for i in range(4): a(f"v_cvt_pk_bf16_f32 v{c+8+i}, v{c+2*i}, v{c+2*i+1}")
            if opt.get('gp') != 3: a.vmem(f"buffer_store_dwordx4 {vr(c+8,4)}, v{L16}, s[24:27], s{36+b} offen offset:{t*1024} sc1", "hst")
    for t in range(3):
        for i in range(4):
            a(f"v_cndmask_b32 v{BF+4*t+i}, v{ACC[0][t]+8+i}, v{ACC[1][t]+8+i}, vcc")
        a.done.add(("b", t))
    a(f"v_mov_b32 v{TB}, s62")
    if opt.get('gp') == 3:
        a('s_setprio 0')
        for b in range(2):
            for t in range(3):
                a.vmem(f"buffer_store_dwordx4 {vr(ACC[b][t]+8,4)}, v{L16}, s[24:27], s{36+b} offen offset:{t*1024} sc1", "hst")
    a("s_lshl_b32 s36, s4, 1")
    a("s_lshr_b32 s37, s5, 2")
    a("s_add_u32 s36, s36, s37")
    a("s_mul_i32 s43, s36, 40960")
    a("s_add_u32 s43, s43, s38")
    a("s_mul_i32 s37, s3, 80")
    a("s_add_u32 s43, s43, s37")
    a("s_mul_i32 s37, s36, 98304")
    a("s_mul_i32 s36, s36, 40960")
    a("s_mul_i32 s61, s3, 10240")
    a("s_add_u32 s36, s36, s61")
    HS = [64, 65, 66, 67, 68, 69, 70]
    for j in range(1, 8):
        a("s_add_u32 s7, s7, 12288")
        a("s_sub_u32 s61, s7, 98304")
        a("s_cmp_ge_u32 s7, 98304")
        a("s_cselect_b32 s7, s61, s7")
        a(f"s_add_u32 s{HS[j-1]}, s7, s37")
    def h_ld(k): return f"buffer_load_dwordx4 {vr(BF+4*k,4)}, v{L16}, s[24:27], s{HS[k//3-1]} offen offset:{(k%3)*1024} sc1"
    if opt.get("hsent"):
        a.wait(vm="sfr")
        a(f"v_cmp_ne_u32 vcc, s62, v{SFR}")
        a("s_cmp_eq_u64 vcc, 0")
        a("s_cbranch_scc1 L_g_sok")
        sv = list(a.vm); poll_global(a, FV, 1, PA, 56, "s30", "s62"); a.vm = sv
        a.label("L_g_sok")
    if opt.get('gp', 2) == 1: a(f"s_setprio {opt['prioG']}")
    hl = [lambda: a.vmem(f"buffer_load_dwordx4 {vr(XR,4)}, v{OA}, s[8:11], s43 offen", "xr"),
           lambda: a.vmem(f"buffer_load_dwordx4 {vr(XR+4,4)}, v{OA}, s[8:11], s43 offen offset:16", "xr"),
           lambda: a.vmem(f"buffer_load_dwordx2 {vr(XR+8,2)}, v{OA}, s[8:11], s43 offen offset:32", "xr")]
    def valid(regs, reload, nleft, sleep, lowspin=False):
        chk = a.newlabel("ck"); rt = a.newlabel("rt"); go = a.newlabel("go")
        a("s_mov_b32 s63, 8192")
        a.label(chk)
        a(f"v_max3_u32 v{TA}, v{regs[0]}, v{regs[1]}, v{regs[2]}")
        r = regs[3:]
        while len(r) >= 2: a(f"v_max3_u32 v{TA}, v{TA}, v{r[0]}, v{r[1]}"); r = r[2:]
        if r: a(f"v_max_u32 v{TA}, v{TA}, v{r[0]}")
        a(f"v_cmp_eq_u32 vcc, -1, v{TA}")
        a("s_cmp_eq_u64 vcc, 0")
        a(f"s_cbranch_scc0 {rt}")
        a.label(go)
        a.cold += [f"{rt}:", "    s_sub_u32 s63, s63, 1", f"    s_cbranch_scc1 {go}"] + (["    s_setprio 0"] if lowspin else []) + [f"    s_sleep {sleep}"] + ["    " + l for l in reload] + [f"    s_waitcnt vmcnt({nleft})"] + (["    s_setprio 3"] if lowspin else []) + [f"    s_branch {chk}"]
    FS = lambda k: (96 + (k % 2) * 20) if k < 24 else [96, 116, 176, 196][k % 4]
    pend_dma = []
    def dparts(k):
        b = FS(k)
        def R(t, hf):
            def f():
                if t == 0 and hf == 0: a.wait(vm=("d", k))
                a.lds(f"ds_read_b64_tr_b16 {vr(b+4*t+2*hf,2)}, v{DT} offset:{DS(k)+t*8+hf*1280}", ("dr", k, t))
            return f
        return [R(t, hf) for t in range(5) for hf in range(2)]
    def dreads(k):
        for f in dparts(k): f()
    def mf(k, t):
        a.wait(vm=("b", k), lg=("dr", k, t))
        a(f"v_mfma_f32_32x32x16_bf16 {vr(DA[t],16)}, {vr(FS(k)+4*t,4)}, {vr(BF+4*(k%24),4)}, {vr(DA[t],16) if k else 0}")
    dreads(0)
    a(f"s_setprio {opt['prioG']}")
    for k in range(24):
        if opt.get("hsent"):
            if k == 1: hl = [(lambda j=j: a.vmem(h_ld(j), ("b", j))) for j in range(3, 24)] + hl
            if k >= 3 and k % 3 == 0:
                if k == 3 and opt.get("hst"): S_(10)
                a.wait(vm=("b", k + 2))
                a("s_setprio 3")
                valid(list(range(BF + 4 * k, BF + 4 * k + 12)), [h_ld(j) for j in range(k, min(k + 9, 24))], min(k + 9, 24) - k - 3, 6, True)
                a(f"s_setprio {opt['prioG']}")
                if k == 3 and opt.get("hst"): S_(11)
        elif k == 3:
            if opt.get("hst"): S_(10)
            poll_global(a, FV, 1, PA, 56, "s30", "s62")
            if opt.get("hst"): S_(11)
            if NPF: a.wait(lg=("pw", 5))
            for j in range(3, 9): a.vmem(h_ld(j), ("b", j))
            hl += [(lambda j=j: a.vmem(h_ld(j), ("b", j))) for j in range(9, 24)]
        rd_ = dparts(k + 1)
        dm_ = pf_write(k + DN) if k < NPF else d_parts(k + DN)
        if k == 4 and NPF: a.wait(lg=("pw", 2 + NPF))
        if k == 0 and not opt.get("hsent"):
            dm_ = [lambda: (a.wait(vm="hst"), a("s_mov_b64 exec, 1"), a.vmem(f"buffer_store_dword v{TB}, v{ZERO}, s[56:59], s42 offen sc1", "hfl"), a("s_mov_b64 exec, -1"))] + dm_
        cut = [0, 3, 6, 8, 10, 10]; dcut = [0, 0, 1, 2, 4, len(dm_)]
        for t in range(5):
            mf(k, t)
            for f in rd_[cut[t]:cut[t+1]]: f()
            if t == 1: a.wait(lg=("dr", k, 4))
            for f in dm_[dcut[t]:dcut[t+1]]: f()
            nh = 2 if (opt.get("hsent") and k < 3) else 1
            for f in hl[:nh]: f()
            hl = hl[nh:]
    assert not hl
    a.flush_pend()
    for k in (25, 26): dreads(k)
    a.wait(lg=("dr", 24, 4)); d_dma(27)
    a.wait(lg=("dr", 25, 4)); d_dma(28)
    a.wait(lg=("dr", 26, 4)); d_dma(29)
    dreads(27)
    a.wait(lg=("dr", 27, 4)); d_dma(30)
    a.raw("; @@G_MAIN_END")
    S_(8)
    if opt.get("aoff"):
        S_(9); st.flush(a, P_WS, 6, 20); a("s_endpgm")
    a("s_setprio 3")
    a("s_add_u32 s30, s36, 4096"); a("s_add_u32 s31, s36, 8192")
    def o_ld(i): return f"buffer_load_dwordx4 {vr(BF+4*i,4)}, v{L16}, s[12:15], {['s36','s30','s31'][i//4]} offen offset:{(i%4)*1024} sc1"
    for i in range(10): a.vmem(o_ld(i), ("b", 24 + i))
    for k in range(24, 34):
        i = k - 24; bq = BF + 4 * i
        a.wait(vm=("b", k))
        valid([bq, bq + 1, bq + 2, bq + 3], [o_ld(j) for j in range(i, 10)], 9 - i, opt.get("osleep", 2))
        if k == 24 and not opt.get("hst"): S_(10)
        rd_ = dparts(k + 3) if 28 <= k + 3 < 34 else []
        for t in range(5):
            mf(k, t)
            for f in rd_[2*t:2*t+2]: f()
        if k in (26, 27, 28):
            a.wait(lg=("dr", k + 2, 4)); d_dma(k + 2 + DN)
    if not opt.get("hst"): S_(11)
    srd(a, 16, P_OUT, 2048 * 1280)
    OSC = opt.get('osc', '')
    a(f"v_add_u32 v{TA}, s29, v{L16}")
    RS = 96
    a.wait(vm="xr")
    for i in range(10):
        a(f"v_lshlrev_b32 v{RS+2*i}, 16, v{XR+i}")
        a(f"v_and_b32 v{RS+2*i+1}, 0xffff0000, v{XR+i}")
    for gq in range(1, 4):
        for t in range(5):
            a.lds(f"ds_write_b128 v{TA}, {vr(DA[t]+4*gq,4)} offset:{WSO[gq-1]+t*1024}", "rw")
    set_flag(a, FV, FWA, 5)
    if opt.get("tst"): S0_(1)
    for gq in range(1, 4):
        a(f"s_sub_u32 s30, s3, {gq}"); a("s_and_b32 s30, s30, 3"); a(f"s_mul_i32 s30, s30, {WSLOT}"); a(f"s_add_u32 s30, s30, {L_R1 + WSO[gq-1]}")
        a(f"v_add_u32 v{116+gq}, s30, v{L16}")
    for t in range(5):
        for i in range(2): a(f"v_pk_add_f32 {vr(RS+4*t+2*i,2)}, {vr(RS+4*t+2*i,2)}, {vr(DA[t]+2*i,2)}")
    poll_lds(a, FV, FAD, 5, "fl")
    if opt.get("tst"): S0_(2)
    for w in range(1, 4):
        for t in range(5):
            a.lds(f"ds_read_b128 {vr(16+20*w+4*t,4)}, v{116+w} offset:{t*1024}", ("rr", w))
    for w in range(1, 4):
        a.wait(lg=("rr", w))
        for i in range(10):
            a(f"v_pk_add_f32 {vr(RS+2*i,2)}, {vr(RS+2*i,2)}, {vr(16+20*w+2*i,2)}")
    for i in range(10):
        a(f"v_cvt_pk_bf16_f32 v{120+i}, v{RS+2*i}, v{RS+2*i+1}")
    if opt.get("tst"): S0_(3)
    a(f"buffer_store_dwordx4 {vr(120,4)}, v{OA}, s[16:19], s43 offen {OSC}")
    a(f"buffer_store_dwordx4 {vr(124,4)}, v{OA}, s[16:19], s43 offen offset:16 {OSC}")
    a(f"buffer_store_dwordx2 {vr(128,2)}, v{OA}, s[16:19], s43 offen offset:32 {OSC}")
    if st:
        a("s_waitcnt vmcnt(0)"); S_(9); st.flush(a, P_WS, 6, 20)
```

```python
from asmlib import *
import math, struct
def f32hex(x): return struct.unpack("<I", struct.pack("<f", x))[0]
WS_KV = 0x280000;  KV_BYTES = 64 * 3072
WS_FL = 0x2B0000;  FL_BYTES = 0x10000
WS_H  = 0x300000;  H_BYTES = 64 * 96 * 1024
WS_O  = 0x000000;  O_BYTES = 64 * 40 * 1024
FL_KV = 0; FL_H = 0x4000; FL_O = 0x8000
BIG = 0x40000000
L_FLAGA = 0; L_FLAGG = 16; L_CNTKV = 32; L_TAG = 36; L_KVOK = 40
L_XN = 256; XNT = 80 * 528
L_R1 = L_XN + 2 * XNT
KVSLOT = 12288
L_KV = 163840 - 4 * KVSLOT
L_WK = 110592; L_WV = L_WK + 26624
WSLOT = 6272
WSO = [0, 51200, 25600]
WMAP = lambda u: u % 3
DSLOT = 5120; DN = 3
L_RED = 256; L_MX = 161024
DS = lambda k: WSO[(k + 2) % 3]
QXO = 25600
LDS_TOTAL = 163840
QSCALE = (20 ** -0.5) * math.log2(math.e)
P_X, P_WQ, P_WK, P_WV, P_WO, P_BX, P_WG, P_WU, P_WD, P_OUT, P_DBG, P_WS = [64 + 2 * i for i in range(12)]
SPIN = 0x40000
LANE, L16, TA, TB, ZERO = 1, 2, 3, 4, 5
FAD, FWA, FV = 6, 7, 8
DUMMY = 10

def srd(a, d, p, nbytes, add=0):
    if add:
        a(f"s_add_u32 s{d}, s{p}, {add}"); a(f"s_addc_u32 s{d+1}, s{p+1}, 0")
    else:
        a(f"s_mov_b32 s{d}, s{p}"); a(f"s_mov_b32 s{d+1}, s{p+1}")
    a(f"s_mov_b32 s{d+2}, {nbytes}"); a(f"s_mov_b32 s{d+3}, 0x00020000")

def poll_lds(a, vF, vFaddr, need, tag, issue=True):
    ok = a.newlabel("pok"); lp = a.newlabel("plp"); sl = a.newlabel("psl")
    if issue: a.lds(f"ds_read_b32 v{vF}, v{vFaddr}", tag)
    a.wait(lg=tag)
    a(f"v_cmp_gt_u32 vcc, {need}, v{vF}")
    a("s_cmp_eq_u64 vcc, 0")
    a(f"s_cbranch_scc0 {sl}")
    a.label(ok)
    a.cold += [f"{sl}:", f"    s_mov_b32 s63, {SPIN}", f"{lp}:", "    s_sleep 1", f"    ds_read_b32 v{vF}, v{vFaddr}", "    s_waitcnt lgkmcnt(0)",
               "    s_sub_u32 s63, s63, 1", f"    s_cbranch_scc1 {ok}", f"    v_cmp_gt_u32 vcc, {need}, v{vF}", "    s_cmp_eq_u64 vcc, 0",
               f"    s_cbranch_scc0 {lp}", f"    s_branch {ok}"]

def set_flag(a, vtmp, vaddr, val, off=0):
    a("s_mov_b64 exec, 1")
    a(f"v_mov_b32 v{vtmp}, {val}")
    a.lds(f"ds_write_b32 v{vaddr}, v{vtmp}" + (f" offset:{off}" if off else ""), "fw")
    a("s_mov_b64 exec, -1")

def poll_global(a, vdst, n, vaddr, srdn, soffs, stag, sleep=6):
    ok = a.newlabel("gok"); lp = a.newlabel("glp")
    a(f"s_mov_b32 s63, {SPIN // 16}")
    a.label(lp)
    for i in range(n):
        a(f"buffer_load_dword v{vdst+i}, v{vaddr}, s[{srdn}:{srdn+3}], {soffs} offen offset:{i*1024} sc1")
    a("s_waitcnt vmcnt(0)")
    for i in range(n): a(f"v_xor_b32 v{vdst+i}, {stag}, v{vdst+i}")
    for i in range(1, n): a(f"v_or_b32 v{vdst}, v{vdst}, v{vdst+i}")
    a(f"v_cmp_ne_u32 vcc, 0, v{vdst}")
    a("s_cmp_eq_u64 vcc, 0")
    a(f"s_cbranch_scc1 {ok}")
    a(f"s_sleep {sleep}")
    a("s_sub_u32 s63, s63, 1")
    a(f"s_cbranch_scc0 {lp}")
    a.label(ok)
    a.vm = []

def get_tag(a, vT):
    ok = a.newlabel("tok"); lp = a.newlabel("tlp")
    a(f"s_mov_b32 s63, {SPIN}")
    a.label(lp)
    a(f"ds_read_b32 v{vT}, v{ZERO} offset:{L_TAG}")
    a("s_waitcnt lgkmcnt(0)")
    a(f"v_readfirstlane_b32 s62, v{vT}")
    a("s_cmp_lg_u32 s62, 0")
    a(f"s_cbranch_scc1 {ok}")
    a("s_sleep 1")
    a("s_sub_u32 s63, s63, 1")
    a(f"s_cbranch_scc0 {lp}")
    a.label(ok)
    a.lg = []

def warm(a, srdn, stride, rows_per_wave, width, col_expr, NSH, vt, st0, st1, lpr):
    a(f"s_and_b32 s{st0}, s4, {NSH-1}")
    a(f"s_lshl_b32 s{st0}, s{st0}, 2")
    a(f"s_add_u32 s{st0}, s{st0}, s3")
    a(f"s_mul_i32 s{st0}, s{st0}, {rows_per_wave*stride}")
    a(f"s_mul_i32 s{st1}, {col_expr[0]}, {col_expr[1]}")
    a(f"s_add_u32 s{st0}, s{st0}, s{st1}")
    rpi = 64 // lpr
    a(f"v_mul_u32_u24 v{vt+1}, {(512 + lpr - 1) // lpr}, v{LANE}")
    a(f"v_lshrrev_b32 v{vt+1}, 9, v{vt+1}")
    a(f"v_mul_u32_u24 v{vt}, {lpr}, v{vt+1}")
    a(f"v_sub_u32 v{vt}, v{LANE}, v{vt}")
    a(f"v_lshlrev_b32 v{vt}, 7, v{vt}")
    a(f"v_min_u32 v{vt}, {width-4}, v{vt}")
    a(f"v_min_u32 v{vt+1}, {min(rpi, rows_per_wave)-1}, v{vt+1}")
    a(f"v_mul_u32_u24 v{vt+1}, {stride}, v{vt+1}")
    a(f"v_add_u32 v{vt}, v{vt}, v{vt+1}")
    n = (rows_per_wave + rpi - 1) // rpi
    for i in range(n):
        for sd in srdn:
            a.vmem(f"buffer_load_dword v{DUMMY}, v{vt}, s[{sd}:{sd+3}], s{st0} offen", "warm")
        if i + 1 < n:
            step = rpi if (i + 2) * rpi <= rows_per_wave else rows_per_wave - rpi - rpi * i
            a(f"s_add_u32 s{st0}, s{st0}, {step*stride}")

def warm_lane(a, dst, tmp, stride, rows, width, lpr):
    a(f"v_mul_u32_u24 v{tmp}, {(512 + lpr - 1) // lpr}, v{LANE}")
    a(f"v_lshrrev_b32 v{tmp}, 9, v{tmp}")
    a(f"v_mul_u32_u24 v{dst}, {lpr}, v{tmp}")
    a(f"v_sub_u32 v{dst}, v{LANE}, v{dst}")
    a(f"v_lshlrev_b32 v{dst}, 7, v{dst}")
    a(f"v_min_u32 v{dst}, {width-4}, v{dst}")
    a(f"v_min_u32 v{tmp}, {rows-1}, v{tmp}")
    a(f"v_mul_u32_u24 v{tmp}, {stride}, v{tmp}")
    a(f"v_add_u32 v{dst}, v{dst}, v{tmp}")

def share(a, sd, NSH):
    a(f"s_and_b32 s{sd}, s4, {NSH-1}")
    a(f"s_lshl_b32 s{sd}, s{sd}, 2")
    a(f"s_add_u32 s{sd}, s{sd}, s3")

def tag_check(a, vT):
    ok = a.newlabel("tok"); lp = a.newlabel("tlp")
    a(f"s_mov_b32 s63, {SPIN // 16}")
    a.label(lp)
    a(f"v_readfirstlane_b32 s62, v{vT}")
    a("s_cmp_lg_u32 s62, 0")
    a(f"s_cbranch_scc1 {ok}")
    a("s_sleep 4")
    a(f"buffer_load_dword v{vT}, v{ZERO}, s[88:91], 0 offen sc1")
    a("s_waitcnt vmcnt(0)")
    a("s_sub_u32 s63, s63, 1")
    a(f"s_cbranch_scc0 {lp}")
    a.label(ok)

def ln_finish(a, SUM, SQ):
    a(f"v_mul_f32 v{SUM}, 0x{f32hex(1.0/640):08x}, v{SUM}")
    a(f"v_mul_f32 v{SQ}, 0x{f32hex(1.0/640):08x}, v{SQ}")
    a(f"v_fma_f32 v{SQ}, -v{SUM}, v{SUM}, v{SQ}")
    a(f"v_max_f32 v{SQ}, 0, v{SQ}")
    a(f"v_add_f32 v{SQ}, 0x{f32hex(1e-5):08x}, v{SQ}")
    a(f"v_rsq_f32 v{SQ}, v{SQ}")
    a("s_nop 0")
    a(f"v_mul_f32 v{SUM}, v{SUM}, v{SQ}")
    a(f"v_mov_b32 v{SQ+1}, v{SQ}")
    a(f"v_sub_f32 v{SUM}, 0, v{SUM}")
    a(f"v_mov_b32 v{SUM+1}, v{SUM}")

def ln_stats(a, X, U, n, SUM, SQ, tagf, hook=None):
    for i in range(n):
        a.wait(vm=tagf(i))
        if hook: hook(i)
        for d in range(4):
            a(f"v_lshlrev_b32 v{U+8*i+2*d}, 16, v{X+4*i+d}")
            a(f"v_and_b32 v{U+8*i+2*d+1}, 0xffff0000, v{X+4*i+d}")
        for d in range(4):
            p = vr(U + 8 * i + 2 * d, 2)
            if i == 0 and d == 0:
                a(f"v_pk_mul_f32 {vr(SQ,2)}, {p}, {p}")
                a(f"v_pk_add_f32 {vr(SUM,2)}, {p}, {vr(U+2,2)}")
            else:
                if not (i == 0 and d == 1): a(f"v_pk_add_f32 {vr(SUM,2)}, {vr(SUM,2)}, {p}")
                a(f"v_pk_fma_f32 {vr(SQ,2)}, {p}, {p}, {vr(SQ,2)}")
    a(f"v_add_f32 v{SUM}, v{SUM}, v{SUM+1}")
    a(f"v_add_f32 v{SQ}, v{SQ}, v{SQ+1}")
    a("s_nop 0")

def dpp_sum(a, regs, ctls):
    for ctl in ctls:
        for r in regs: a(f"v_add_f32_dpp v{r}, v{r}, v{r} {ctl} row_mask:0xf bank_mask:0xf")
        a("s_nop 0")

def ln_group(a, idx_expr_sgpr, sgl, sld, vgl, vld):
    a(f"s_cmp_ge_u32 s{idx_expr_sgpr}, s5")
    a(f"s_addc_u32 s{sld}, s{idx_expr_sgpr}, 0")
    a(f"s_lshl_b32 s{sgl}, s4, 3")
    a(f"s_add_u32 s{sgl}, s{sgl}, s{sld}")
    a(f"s_mul_i32 s{sgl}, s{sgl}, 10240")
    a(f"v_lshrrev_b32 v{TB}, 3, v{LANE}")
    a(f"v_mul_u32_u24 v{vgl}, 1280, v{TB}")
    a(f"v_and_b32 v{TA}, 7, v{LANE}")
    a(f"v_lshl_add_u32 v{vgl}, v{TA}, 4, v{vgl}")
    a(f"v_mul_u32_u24 v{vld}, 528, v{TA}")
    a(f"v_lshl_add_u32 v{vld}, v{TB}, 4, v{vld}")
    a(f"s_and_b32 s63, s{sld}, 3")
    a("s_lshl_b32 s63, s63, 7")
    a(f"s_lshr_b32 s{sld}, s{sld}, 2")
    a(f"s_mul_i32 s{sld}, s{sld}, {XNT}")
    a(f"s_add_u32 s{sld}, s{sld}, s63")
    a(f"s_add_u32 s{sld}, s{sld}, {L_XN}")
    a(f"v_add_u32 v{vld}, s{sld}, v{vld}")

def ln_write(a, X, U, SUM, SQ, vld):
    for i in range(10):
        for d in range(4):
            pp = vr(U + 8 * i + 2 * d, 2)
            a(f"v_pk_fma_f32 {pp}, {pp}, {vr(SQ,2)}, {vr(SUM,2)}")
        for d in range(4):
            a(f"v_cvt_pk_bf16_f32 v{X+4*i+d}, v{U+8*i+2*d}, v{U+8*i+2*d+1}")
        a.lds(f"ds_write_b128 v{vld}, {vr(X+4*i,4)} offset:{i*4224}", "xw")

def wq_offsets(a, WQO):
    for i in range(5):
        a(f"v_add_u32 v{TA}, {64*i}, v{LANE}")
        a(f"v_mul_u32_u24 v{TB}, 205, v{TA}")
        a(f"v_lshrrev_b32 v{TB}, 11, v{TB}")
        a(f"v_mul_u32_u24 v{WQO+i}, 10, v{TB}")
        a(f"v_sub_u32 v{TA}, v{TA}, v{WQO+i}")
        a(f"v_lshlrev_b32 v{TA}, 4, v{TA}")
        if 0 < i < 4: a(f"v_subrev_u32 v{TA}, {1024*i}, v{TA}")
        a(f"v_mul_u32_u24 v{WQO+i}, 1280, v{TB}")
        a(f"v_add_u32 v{WQO+i}, v{WQO+i}, v{TA}")
SLOT = lambda g: g % 15
L_WQF = 44

def gen(name, st=None, opt=None):
    opt = dict(dict(prioA=2, prioG=0, pattern=4, endstamp=False, xmap="16x2", axf=1, alnp=3, gfp=1, w0=0, wwarm="c", gp=1, pat="MeeeMeeceececeMeeccM|eeeceecc", hst=0), **(opt or {}))
    a = Asm()
    S_ = (lambda i, cyc=False: st(a, i, cyc)) if st else (lambda i, cyc=False: None)
    a.raw(f".globl {name}\n.p2align 8\n.type {name},@function")
    a.label(name)
    a("s_cmp_ge_u32 s2, 256")
    a("s_cbranch_scc1 L_end")
    if st: st.init(a); S_(0)
    a("s_load_dwordx16 s[64:79], s[0:1], 0")
    a("s_load_dwordx8 s[80:87], s[0:1], 64")
    a("v_lshrrev_b32 v3, 6, v0")
    a(f"v_and_b32 v{LANE}, 63, v0")
    a("v_readfirstlane_b32 s6, v3")
    a(f"v_lshlrev_b32 v{L16}, 4, v{LANE}")
    a(f"v_mov_b32 v{ZERO}, 0")
    if opt["xmap"] == "8x4":
        a("s_bfe_u32 s4, s2, 0x20001"); a("s_lshl_b32 s4, s4, 3"); a("s_lshr_b32 s7, s2, 5"); a("s_add_u32 s4, s4, s7")
        a("s_and_b32 s5, s2, 1"); a("s_lshl_b32 s5, s5, 2"); a("s_bfe_u32 s7, s2, 0x20003"); a("s_add_u32 s5, s5, s7")
        NSH = 8; NSD = 8
    elif opt["xmap"] == "4x8":
        a("s_and_b32 s4, s2, 7"); a("s_lshl_b32 s4, s4, 2"); a("s_lshr_b32 s7, s2, 6"); a("s_add_u32 s4, s4, s7")
        a("s_bfe_u32 s5, s2, 0x30003")
        NSH = 4; NSD = 4
    elif opt["xmap"] == "16x2":
        a("s_bfe_u32 s4, s2, 0x10002"); a("s_lshl_b32 s4, s4, 4"); a("s_lshr_b32 s7, s2, 4"); a("s_add_u32 s4, s4, s7")
        a("s_and_b32 s5, s2, 3"); a("s_lshl_b32 s5, s5, 1"); a("s_bfe_u32 s7, s2, 0x10003"); a("s_add_u32 s5, s5, s7")
        NSH = 16; NSD = 16
    a("s_and_b32 s3, s6, 3")
    a(f"v_lshlrev_b32 v{FWA}, 2, v{LANE}")
    a("s_cmp_lg_u32 s6, 0")
    a("s_cbranch_scc1 L_nozero")
    a(f"ds_write_b32 v{FWA}, v{ZERO}")
    a.label("L_nozero")
    a("s_waitcnt lgkmcnt(0)")
    srd(a, 8, P_X, 2048 * 1280)
    srd(a, 88, P_DBG, 256)
    a("s_cmp_ge_u32 s6, 4")
    a("s_cbranch_scc1 L_g_role")
    ln_group(a, 3, 7, 24, 10, 11)
    a("s_or_b32 s25, s2, s6")
    a("s_cmp_lg_u32 s25, 0")
    a("s_cbranch_scc1 L_notagpub")
    a("s_memrealtime s[60:61]")
    a("s_waitcnt lgkmcnt(0)")
    a("s_or_b32 s60, s60, 1")
    a("v_mov_b32 v8, s60")
    a("s_mov_b64 exec, 1")
    a(f"buffer_store_dword v8, v{ZERO}, s[88:91], 0 offen sc1")
    a("s_mov_b64 exec, -1")
    a.label("L_notagpub")
    if not opt.get("axf"): a("s_barrier")
    for i in range(10):
        a.vmem(f"buffer_load_dwordx4 {vr(16+4*i,4)}, v10, s[8:11], s7 offen offset:{128*i}", ("x", i))
    if opt.get("axf"): a("s_barrier")
    if opt.get("alnp"): a(f"s_setprio {opt['alnp']}")
    if opt.get("tlb"):
        a(f"v_lshlrev_b32 v9, {opt.get('tlbsh', 21)}, v{LANE}")
        for i, (p, n) in enumerate(((P_WS, 0x900000), (P_OUT, 2048 * 1280), (P_WD, 1536 * 1280), (P_WO, 640 * 1280), (P_WG, 640 * 3072), (P_WU, 640 * 3072))):
            srd(a, 92, p, n) if i % 2 == 0 else srd(a, 96, p, n)
            a.vmem(f"buffer_load_dword v8, v9, s[{92 + 4*(i%2)}:{95 + 4*(i%2)}], 0 offen", "tlb")
    vm_a = list(a.vm)
    a("s_branch L_a_role")
    a.label("L_g_role")
    a.vm = []; a.lg = []
    gen_g(a, S_, st, opt, NSH)
    a("s_endpgm")
    a.emit_cold()
    a.label("L_a_role")
    a.vm = vm_a; a.lg = []
    gen_a(a, S_, st, opt, NSH)
    a.emit_cold()
    a.label("L_end")
    a("s_endpgm")
    txt = a.text()
    if opt.get("gwrap"):
        out = []; on = False; low = False
        for l in txt.split("\n"):
            if "@@G_MAIN_BEGIN" in l: on = True; out.append(l); out.append("    s_setprio 3"); continue
            if "@@G_MAIN_END" in l:
                on = False
                if low: out.append("    s_setprio 3"); low = False
            t = l.strip()
            if on:
                if t.startswith("s_setprio"): continue
                if t.startswith("v_mfma"):
                    if not low:
                        out.append(f"    s_setprio {opt.get('glow', 0)}"); low = True
                        if opt.get("gnop") is not None: out.append(f"    s_nop {opt['gnop']}")
                elif low and t and not t.startswith(";"):
                    out.append(f"    s_setprio {opt.get('ghigh', 3)}"); low = False
            out.append(l)
        txt = "\n".join(out)
    if opt.get("selsc"):
        out = []
        for l in txt.split("\n"):
            t = l.strip()
            for srd_, fl in opt["selsc"].items():
                if t.startswith("buffer_load_dwordx4") and t.endswith(" lds") and srd_ in t and " sc1" not in t:
                    l = l[:-4] + f" {fl} lds"
            out.append(l)
        txt = "\n".join(out)
    if opt.get("allsc"):
        out = []
        for l in txt.split("\n"):
            t = l.strip()
            if t.startswith("buffer_load_dwordx4") and " sc1" not in t and "s[8:11]" not in t:
                l = (l[:-4] + f" {opt['allsc']} lds") if t.endswith(" lds") else l + f" {opt['allsc']}"
            out.append(l)
        txt = "\n".join(out)
    if opt.get("gdrop"):
        out = []; on = False
        for l in txt.split("\n"):
            if "@@G_MAIN_BEGIN" in l: on = True
            if "@@G_MAIN_END" in l: on = False
            t = l.strip()
            if on and "mfma" in opt["gdrop"] and t.startswith("v_mfma"): continue
            if on and "lds" in opt["gdrop"] and (t.startswith("ds_read_b64_tr") or t.startswith("ds_read_b128")): continue
            if on and "dma" in opt["gdrop"] and t.startswith("buffer_load_dwordx4"): continue
            out.append(l)
        txt = "\n".join(out)
    return txt, kdesc(name, 256, 102)

def gen_a(a, S0_, st, opt, NSH):
    QS = {5: 0, 7: 1, 16: 2, 19: 3, 28: 6, 31: 7} if opt.get("qst") else {}
    S_ = (lambda i, cyc=False: S0_(i, cyc) if (not opt.get("qst") or i in (4, 5, 8, 9, 10, 11)) else None)
    X = 16; X1 = 56; U = 96; SUM, SQ = 12, 14; TAG = 8; WQA = 7
    WQO = 216
    srd(a, 12, P_WQ, 640 * 1280)
    wq_offsets(a, WQO)
    a("s_lshl_b32 s24, s5, 2")
    a("s_add_u32 s24, s24, s3")
    a("s_mul_i32 s25, s5, 160")
    a("s_mul_i32 s26, s3, 40960")
    a("s_add_u32 s25, s25, s26")
    a("s_mul_i32 s26, s3, 5120")
    a(f"s_add_u32 s26, s26, {L_R1}")
    def wq_one(g4, i, tag):
        def f():
            a(f"s_add_u32 m0, s26, {SLOT(g4)*5120 + (4096 if i == 4 else 0)}")
            a(f"s_add_u32 s27, s25, {g4*40960}")
            ins = f"buffer_load_dwordx4 v{WQO+i}, s[12:15], s27 offen" + (f" offset:{i*1024}" if i < 4 else "") + " lds"
            if tag: a.vmem(ins, tag)
            else:
                l = a.newlabel("g4"); a("s_cmp_lg_u32 s3, 0"); a(f"s_cbranch_scc1 {l}"); a(ins); a.label(l)
        return f
    srd(a, 16, P_WG, 640 * 3072)
    srd(a, 20, P_WU, 640 * 3072)
    late = [wq_one(4, i, None) for i in range(5)] + [wq_one(0, i, "p1") for i in range(5)]
    if not opt.get("nowarm"):
        warm_lane(a, 226, TA, 1280, 640 // NSH // 4, 160, 2)
        warm_lane(a, 227, TA, 3072, max(opt["w0"] // NSH // 4, 1), 384, 3)
        share(a, 32, NSH)
        a(f"s_mul_i32 s33, s32, {opt['w0'] // NSH // 4 * 3072}")
        a(f"s_mul_i32 s32, s32, {640 // NSH // 4 * 1280}")
        a("s_mul_i32 s34, s5, 160"); a("s_add_u32 s32, s32, s34")
        a("s_mul_i32 s34, s5, 384"); a("s_add_u32 s33, s33, s34")
        late = [lambda: a.vmem(f"buffer_load_dword v{DUMMY}, v226, s[12:15], s32 offen", "warm")] + late
        if opt["w0"]: late += [lambda: a.vmem(f"buffer_load_dword v{DUMMY}, v227, s[16:19], s33 offen", "warm"),
                 lambda: a.vmem(f"buffer_load_dword v{DUMMY}, v227, s[20:23], s33 offen", "warm")]
    XA0, XA1, FWQ, NEED, FG, F8 = 221, 222, 223, 9, 224, 225
    a(f"v_and_b32 v{TA}, 7, v{LANE}")
    a(f"v_lshlrev_b32 v{F8}, 2, v{TA}")
    a(f"v_and_b32 v{FAD}, 12, v{F8}")
    a(f"v_add_u32 v{FG}, {L_FLAGG}, v{FAD}")
    a(f"v_lshrrev_b32 v{TB}, 5, v{LANE}")
    a(f"v_bfe_u32 v{WQA}, v{LANE}, 2, 2")
    a(f"v_lshl_add_u32 v{WQA}, v{TB}, 3, v{WQA}")
    a(f"v_mul_u32_u24 v{WQA}, 160, v{WQA}")
    a(f"v_mul_u32_u24 v{XA0}, 528, v{TB}")
    a(f"v_and_b32 v{TB}, 1, v{LANE}")
    a(f"v_lshlrev_b32 v{TB}, 4, v{TB}")
    a(f"v_bfe_u32 v{TA}, v{LANE}, 1, 1")
    a(f"v_lshl_add_u32 v{TB}, v{TA}, 3, v{TB}")
    a(f"v_and_b32 v{TA}, 16, v{LANE}")
    a(f"v_cmp_eq_u32 vcc, 0, v{TA}")
    a(f"v_mov_b32 v{TA}, 32")
    a("s_mul_i32 s30, s3, 40")
    a(f"s_add_u32 s30, s30, {L_R1}")
    a(f"v_cndmask_b32 v{TB}, v{TA}, v{TB}, vcc")
    a(f"v_add3_u32 v{WQA}, v{WQA}, v{TB}, s30")
    a(f"v_and_b32 v{TA}, 31, v{LANE}")
    a(f"v_lshl_add_u32 v{XA0}, v{TA}, 4, v{XA0}")
    a(f"v_add_u32 v{XA0}, {L_XN}, v{XA0}")
    a(f"v_add_u32 v{XA1}, {XNT}, v{XA0}")
    a("s_lshl_b32 s30, s3, 2")
    a(f"v_mov_b32 v{FWQ}, s30")
    WF = lambda k: 176 + 4 * k if k < 20 else 16 + 4 * (k - 20)
    def wq_read(k0, n):
        for k in range(k0, k0 + n):
            for hf in range(2):
                off = SLOT(k//2)*5120+(k%2)*2560+hf*640
                a.lds(f"ds_read_b64_tr_b16 {vr(WF(k)+2*hf,2)}, v{WQA if off < 40960 else 15} offset:{off % 40960}", ("wr", k))
    S_(1)
    a("s_add_u32 s42, s3, 4")
    ln_group(a, 42, 43, 42, 228, 229)
    def x1ld(i):
        def f():
            l = a.newlabel("x1"); a("s_cmp_eq_u32 s3, 3"); a(f"s_cbranch_scc1 {l}")
            a.vmem(f"buffer_load_dwordx4 {vr(X1+4*i,4)}, v228, s[8:11], s43 offen offset:{128*i}", ("x1", i)); a.label(l)
        return f
    def hk(i):
        if i == 0: S_(2)
        if i == 9: a.sprinkle([x1ld(j) for j in range(10)] + late, opt.get("lnev", 4))
    ln_stats(a, X, U, 10, SUM, SQ, lambda i: ("x", i), hk)
    dpp_sum(a, [SUM, SQ], ("quad_perm:[1,0,3,2]", "quad_perm:[2,3,0,1]", "row_half_mirror"))
    ln_finish(a, SUM, SQ)
    ln_write(a, X, U, SUM, SQ, 11)
    a.flush_pend()
    a.vmem(f"buffer_load_dword v{TAG}, v{ZERO}, s[88:91], 0 offen sc1", "tag")
    a("s_cmp_eq_u32 s3, 3")
    a("s_cbranch_scc1 L_a_nop1")
    ln_stats(a, X1, U, 10, SUM, SQ, lambda i: ("x1", i))
    dpp_sum(a, [SUM, SQ], ("quad_perm:[1,0,3,2]", "quad_perm:[2,3,0,1]", "row_half_mirror"))
    ln_finish(a, SUM, SQ)
    ln_write(a, X1, U, SUM, SQ, 229)
    a.label("L_a_nop1")
    a("s_waitcnt vmcnt(0)"); a.vm = []
    set_flag(a, TA, FWQ, 3)
    a(f"v_mov_b32 v152, v{XA0}"); a(f"v_mov_b32 v153, v{XA1}"); a(f"v_mov_b32 v154, v{FWQ}")
    XA0, XA1, FWQ = 152, 153, 154
    S_(3)
    poll_lds(a, TB, FAD, 3, "fl")
    wq_read(0, 10)
    set_flag(a, TA, FWQ, 4)
    a(f"v_mov_b32 v14, v{FG}")
    a(f"v_add_u32 v15, 40960, v{WQA}")
    QACC = [120, 136]; QF = 96; QD = 3
    a(f"s_setprio {opt['prioA']}")
    srd(a, 16, P_WS, KV_BYTES, WS_KV)
    srd(a, 20, P_WS, O_BYTES, WS_O)
    srd(a, 56, P_WS, FL_BYTES, WS_FL)
    poll_lds(a, TB, FG, 1, "fl")
    S_(4)
    a("s_lshl_b32 s36, s4, 1")
    a("s_mul_i32 s36, s36, 40960")
    a("s_lshr_b32 s37, s24, 3")
    a("s_mul_i32 s37, s37, 10240")
    a("s_add_u32 s36, s36, s37")
    a("s_and_b32 s37, s24, 7")
    a("s_lshl_b32 s38, s37, 10")
    a("s_add_u32 s38, s38, s36")
    a("s_lshr_b32 s39, s37, 1")
    a("s_lshl_b32 s39, s39, 9")
    a("s_and_b32 s37, s37, 1")
    a("s_lshl_b32 s37, s37, 3")
    a("s_add_u32 s39, s39, s37")
    a("s_add_u32 s39, s39, s36")
    a("s_add_u32 s39, s39, 8192")
    a("s_add_u32 s40, s38, 40960")
    a("s_add_u32 s41, s39, 40960")
    def qreads(ks):
        b = QF + (ks % QD) * 8
        a.lds(f"ds_read_b128 {vr(b,4)}, v{XA0} offset:{ks*1056}", ("qa", ks))
        a.lds(f"ds_read_b128 {vr(b+4,4)}, v{XA1} offset:{ks*1056}", ("qa", ks))
    BK2, BV, MX, FG2 = 9, 10, 11, 12
    RA = [13, 14, 15]
    QA = [16 + 4 * i for i in range(8)]; QB = [48 + 2 * i for i in range(8)]
    O = [156 + 12 * i for i in range(8)]
    S = [64, 80]; P = [96, 104]
    K1f = [112, 116, 120]; K2f = [124, 126, 128]; Vf = [[130, 134], [138, 142], [146, 150]]
    BVL = MX
    def kld(buf, so, tag):
        return [lambda: a.vmem(f"buffer_load_dwordx4 {vr(K1f[buf],4)}, v{L16}, s[16:19], {so} offen sc1", tag),
                lambda: a.vmem(f"buffer_load_dwordx2 {vr(K2f[buf],2)}, v{BK2}, s[16:19], {so} offen offset:1024 sc1", tag)]
    def vld(buf, so, tag):
        return [lambda: a.vmem(f"buffer_load_dwordx4 {vr(Vf[buf][0],4)}, v{BVL}, s[16:19], {so} offen offset:1536 sc1", tag),
                lambda: a.vmem(f"buffer_load_dwordx4 {vr(Vf[buf][1],4)}, v{BVL}, s[16:19], {so} offen offset:2304 sc1", tag)]
    def adv():
        return [lambda: (a(f"s_add_u32 s28, s28, {KVSLOT}"), a(f"s_sub_u32 s27, s28, {KV_BYTES}")),
                lambda: (a(f"s_cmp_ge_u32 s28, {KV_BYTES}"), a("s_cselect_b32 s28, s27, s28"))]
    def kv_first():
        for f in kld(0, "s28", ("k", 0)) + vld(0, "s28", ("v", 0)) + adv() + kld(1, "s28", ("k", 1)) + vld(1, "s28", ("v", 1)) + adv(): f()
    NEED = 13
    a("s_bfe_u32 s28, s2, 0x40003")
    a(f"s_mul_i32 s28, s28, {KVSLOT}")
    a("s_mul_i32 s33, s3, 3072")
    a("s_add_u32 s28, s28, s33")
    a("s_lshl_b32 s43, s3, 6")
    a("s_mov_b32 s35, 0")
    a(f"v_lshlrev_b32 v{BK2}, 3, v{LANE}")
    a(f"v_and_b32 v{TA}, 31, v{LANE}")
    a(f"v_min_u32 v{TA}, 21, v{TA}")
    a(f"v_lshlrev_b32 v{TA}, 4, v{TA}")
    a(f"v_lshrrev_b32 v{TB}, 5, v{LANE}")
    a(f"v_mul_u32_u24 v{TB}, 384, v{TB}")
    a(f"v_add_u32 v{MX}, v{TA}, v{TB}")
    a(f"v_lshrrev_b32 v{TA}, 2, v{LANE}")
    a(f"v_lshlrev_b32 v{TA}, 8, v{TA}")
    a(f"v_and_b32 v{TB}, 3, v{LANE}")
    a(f"v_lshl_add_u32 v{NEED}, v{TB}, 4, v{TA}")
    P3 = opt.get('p3r', 18)
    P2R = opt.get('p2r', 8)
    RD = {P2R + j: (10 + 3 * j, 3 if j < 6 else 2) for j in range(7)}
    RD.update({P3 + j: (30 + 2 * j, 2) for j in range(5)})
    for ks in range(QD - 1): qreads(ks)
    CHK = opt.get("kvchk", ()); CLD = opt.get("kvld", (32,))
    for ks in range(40):
        if ks in QS and QS[ks]: S0_(QS[ks])
        if ks + QD - 1 < 40: qreads(ks + QD - 1)
        if ks == 24:
            tag_check(a, TAG)
        P3R = opt.get('p3r', 18)
        if ks in (P2R - 1, P3R - 1): a.lds(f"ds_read_b32 v{TB}, v14", "fl")
        if ks == P2R: poll_lds(a, TB, 14, 3, "fl", issue=False)
        if ks == P3R: poll_lds(a, TB, 14, 4, "fl", issue=False)
        if ks in RD: wq_read(*RD[ks])
        if ks == opt.get("p3r", 18) + 4: set_flag(a, TA, FWQ, 8)
        if ks == 30: a.lds(f"ds_read_b32 v{TB}, v{FAD}", "fl")
        if ks == 32: poll_lds(a, TB, FAD, 8, "fl", issue=False)
        if ks in CLD:
            a(f"buffer_load_dword v{TAG}, v{NEED}, s[56:59], s43 offen sc1")
        if ks in CHK:
            l = a.newlabel("kvc"); r = a.newlabel("kvr")
            a("s_waitcnt vmcnt(0)")
            a(f"v_cmp_ne_u32 vcc, s62, v{TAG}")
            a("s_cmp_eq_u32 s35, 0")
            a("s_cselect_b64 vcc, vcc, -1")
            a("s_cmp_eq_u64 vcc, 0")
            a(f"s_cbranch_scc0 {r}")
            sv = list(a.vm); kv_first(); a.vm = sv
            a("s_mov_b32 s35, 1")
            a.label(r)
        a.wait(lg=[("qa", ks), ("wr", ks)])
        b = QF + (ks % QD) * 8
        a(f"v_mfma_f32_32x32x16_bf16 {vr(QACC[0],16)}, {vr(WF(ks),4)}, {vr(b,4)}, {vr(QACC[0],16) if ks else 0}")
        if ks >= 20:
            for i in range(5): a(f"v_mov_b32 v{O[0]+5*(ks-20)+i}, 0")
        a(f"v_mfma_f32_32x32x16_bf16 {vr(QACC[1],16)}, {vr(WF(ks),4)}, {vr(b+4,4)}, {vr(QACC[1],16) if ks else 0}")
    S_(5)
    a(f"v_mov_b32 v{FWA}, s30")
    if opt.get("aoff"):
        set_flag(a, TA, FWA, 12); st.flush(a, P_WS, 6, 20); a("s_endpgm")
    a(f"v_lshlrev_b32 v{BK2}, 3, v{LANE}") if False else None
    def owner(i2, sd):
        a(f"s_add_u32 s{sd}, s3, {1+i2}"); a(f"s_and_b32 s{sd}, s{sd}, 3")
    a(f"v_mov_b32 v{BV}, v{NEED}")
    a(f"v_cmp_gt_u32 vcc, 32, v{LANE}")
    a(f"v_mov_b32 v{TA}, 0x{f32hex(QSCALE):08x}")
    a(f"s_mov_b32 s31, 0x{f32hex(QSCALE):08x}")
    a(f"s_mul_i32 s29, s3, {WSLOT}")
    a(f"v_cndmask_b32 v155, 0, v{TA}, vcc")
    a("s_mov_b64 s[60:61], vcc")
    a(f"s_add_u32 s29, s29, {L_R1 + QXO}")
    a(f"v_add_u32 v{FG2}, s29, v{L16}")
    a(f"v_add_u32 v{TB}, s29, v{BK2}")
    for i2 in range(3):
        owner(i2, 32); a(f"s_mul_i32 s32, s32, {WSLOT}"); a(f"s_add_u32 s32, s32, {L_R1 + QXO}")
        a(f"v_add_u32 v{RA[i2]}, s32, v{L16}")
    for t in range(2):
        for i in range(8): a(f"v_mul_f32 v{QACC[t]+i}, s31, v{QACC[t]+i}")
        for i in range(8, 12): a(f"v_mul_f32 v{QACC[t]+i}, v155, v{QACC[t]+i}")
        for i in range(4): a(f"v_cvt_pk_bf16_f32 v{QA[6+t]+i}, v{QACC[t]+2*i}, v{QACC[t]+2*i+1}")
        for i in range(2): a(f"v_cvt_pk_bf16_f32 v{QB[6+t]+i}, v{QACC[t]+8+2*i}, v{QACC[t]+9+2*i}")
        a.lds(f"ds_write_b128 v{FG2}, {vr(QA[6+t],4)} offset:{t*1536}", "qw")
        a.lds(f"ds_write_b64 v{TB}, {vr(QB[6+t],2)} offset:{t*1536+1024}", "qw")
    set_flag(a, TA, FWA, 9)
    a("s_cmp_eq_u32 s35, 1")
    a("s_cbranch_scc1 L_a_kvld")
    a("s_waitcnt vmcnt(0)")
    a(f"v_cmp_ne_u32 vcc, s62, v{TAG}")
    a("s_cmp_eq_u64 vcc, 0")
    a("s_cbranch_scc0 L_a_kvld")
    kv_first()
    a("s_mov_b32 s35, 1")
    a.label("L_a_kvld")
    a.vm = []
    poll_lds(a, TA, FAD, 9, "fl")
    for i2 in range(3):
        for t in range(2):
            a.lds(f"ds_read_b128 {vr(QA[2*i2+t],4)}, v{RA[i2]} offset:{t*1536}", "qr")
        a(f"v_sub_u32 v{TA}, v{RA[i2]}, v{BK2}")
        for t in range(2):
            a.lds(f"ds_read_b64 {vr(QB[2*i2+t],2)}, v{TA} offset:{t*1536+1024}", "qr")
    set_flag(a, TA, FWA, 10)
    a("s_cmp_eq_u32 s35, 1")
    a("s_cbranch_scc1 L_a_kvgo")
    poll_global(a, TAG, 1, BV, 56, "s43", "s62", sleep=4)
    kv_first()
    a.label("L_a_kvgo")
    a.vm = [("k", 0)] * 2 + [("v", 0)] * 2 + [("k", 1)] * 2 + [("v", 1)] * 2
    S_(6)
    srd(a, 92, P_WD, 1536 * 1280); srd(a, 96, P_WO, 640 * 1280)
    warm_lane(a, 154, TA, 1280, 512 // NSH // 4, 320, 3)
    share(a, 32, NSH)
    a("s_and_b32 s37, s5, 3"); a("s_mul_i32 s37, s37, 320")
    a(f"s_mul_i32 s33, s32, {320 // NSH // 4 * 1280}"); a("s_add_u32 s33, s33, s37")
    a(f"s_mul_i32 s35, s32, {512 // NSH // 4 * 1280}"); a("s_add_u32 s35, s35, s37")
    srd(a, 12, P_WS, H_BYTES, WS_H)
    a("s_mul_i32 s25, s4, 196608"); a("s_mul_i32 s26, s5, 12288"); a("s_add_u32 s25, s25, s26")
    a("s_mul_i32 s26, s3, 3072"); a("s_add_u32 s25, s25, s26"); a("s_add_u32 s26, s25, 98304")
    def cold_blk(it, lines):
        def f():
            l = a.newlabel("cw"); r = a.newlabel("cr")
            a(f"s_cmp_eq_u32 s34, {it}"); a(f"s_cbranch_scc1 {l}"); a.label(r)
            a.cold += [f"{l}:"] + ["    " + x for x in lines] + [f"    s_branch {r}"]
        return f
    sr_ = K1f[2]
    SENT = [f"v_mov_b32 v{sr_+i}, -1" for i in range(4)] + [f"buffer_store_dwordx4 {vr(sr_,4)}, v{L16}, s[20:23], s{38+2*t} offen sc1" for t in range(2)] + \
           ["s_mov_b64 exec, s[60:61]"] + [f"buffer_store_dwordx2 {vr(sr_,2)}, v{L16}, s[20:23], s{39+2*t} offen sc1" for t in range(2)] + ["s_mov_b64 exec, -1"]
    if opt.get("hsent"): SENT += [f"buffer_store_dwordx4 {vr(sr_,4)}, v{L16}, s[12:15], s{25+b} offen offset:{t*1024} sc1" for b in range(2) for t in range(3)]
    SFLG = ["s_waitcnt vmcnt(8)", "s_mov_b64 exec, 1", f"v_mov_b32 v{TA}, 12", f"ds_write_b32 v{FWA}, v{TA}", "s_mov_b64 exec, -1"]
    def cold_warm(it, which):
        def f():
            l = a.newlabel("cw"); r = a.newlabel("cr")
            a(f"s_cmp_eq_u32 s34, {it}"); a(f"s_cbranch_scc1 {l}"); a.label(r)
            if which == "d": a.cold += [f"{l}:", "    buffer_load_dword v155, v154, s[92:95], s35 offen", f"    s_add_u32 s35, s35, {512*1280}", f"    s_branch {r}"]
            else: a.cold += [f"{l}:", "    buffer_load_dword v155, v154, s[96:99], s33 offen", f"    s_add_u32 s33, s33, {320*1280}", f"    s_branch {r}"]
        return f
    for i in range(8):
        a(f"v_mov_b32 v{P[1]+i}, 0"); a(f"v_mov_b32 v{Vf[2][0]+i}, 0")
    a(f"s_mov_b32 s42, 0x{f32hex(2.0**100):08x}")
    a(f"v_lshlrev_b32 v{TB}, 2, v{LANE}")
    for i2 in range(3):
        owner(i2, 32); a("s_lshl_b32 s32, s32, 9"); a(f"s_add_u32 s32, s32, {L_MX}")
        a(f"v_add_u32 v{RA[i2]}, s32, v{TB}")
    a("s_lshl_b32 s32, s3, 9"); a(f"s_add_u32 s32, s32, {L_MX}")
    a(f"v_add_u32 v{FG2}, s32, v{TB}")
    def rowmax(t, dst, init):
        s = S[t]
        if init:
            a(f"v_max3_f32 v{dst}, v{s}, v{s+1}, v{s+2}")
            for i in range(3, 15, 2): a(f"v_max3_f32 v{dst}, v{dst}, v{s+i}, v{s+i+1}")
            a(f"v_max_f32 v{dst}, v{dst}, v{s+15}")
        else:
            for i in range(0, 16, 2): a(f"v_max3_f32 v{dst}, v{dst}, v{s+i}, v{s+i+1}")
    def embed(t, m):
        a(f"v_mov_b32 v{TB}, v{m}")
        a("s_nop 1")
        a(f"v_permlane32_swap_b32 v{m}, v{TB}")
        a("s_nop 1")
        a(f"v_max_f32 v{m}, v{m}, v{TB}")
        a(f"v_sub_f32 v{m}, 0, v{m}")
        a(f"v_cvt_pk_bf16_f32 v{TB}, v{m}, v{m}")
        a(f"v_lshlrev_b32 v{TB}, 16, v{TB}")
        a(f"v_sub_f32 v{TB}, v{m}, v{TB}")
        a(f"v_cvt_pk_bf16_f32 v{TB}, v{m}, v{TB}")
        a(f"v_cndmask_b32 v{QB[6+t]}, v{TB}, v{QB[6+t]}, s[60:61]")
    a.wait(vm=("k", 0))
    for t in range(2):
        a(f"v_mfma_f32_32x32x16_bf16 {vr(S[t],16)}, {vr(K1f[0],4)}, {vr(QA[6+t],4)}, 0")
        a(f"v_mfma_f32_32x32x8_bf16 {vr(S[t],16)}, {vr(K2f[0],2)}, {vr(QB[6+t],2)}, {vr(S[t],16)}")
    a("s_nop 7"); a("s_nop 1")
    for t in range(2):
        rowmax(t, TA, True); embed(t, TA)
        a.lds(f"ds_write_b32 v{FG2}, v{QB[6+t]} offset:{t*256}", "mw")
    a.wait(lg="mw")
    set_flag(a, FV, FWA, 11)
    poll_lds(a, FV, FAD, 11, "fl")
    for i2 in range(3):
        for t in range(2):
            a.lds(f"ds_read_b32 v{QB[2*i2+t]}, v{RA[i2]} offset:{t*256}", ("mr", 2 * i2 + t))
    for i2 in range(3):
        owner(i2, 32); a("s_mul_i32 s32, s32, 18432"); a(f"s_add_u32 s32, s32, {L_RED + i2*6144}")
        a(f"v_add_u32 v{RA[i2]}, s32, v{L16}")
    a(f"v_add_u32 v{FG2}, {L_FLAGG}, v{FAD}")
    a("s_mul_i32 s32, s3, 18432")
    a(f"s_add_u32 s32, s32, {L_RED}")
    a(f"v_add_u32 v{BV}, s32, v{L16}")
    a(f"v_mfma_f32_32x32x16_bf16 {vr(S[0],16)}, {vr(K1f[0],4)}, {vr(QA[0],4)}, 0")
    a.wait(lg="all")
    a(f"v_mfma_f32_32x32x8_bf16 {vr(S[0],16)}, {vr(K2f[0],2)}, {vr(QB[0],2)}, {vr(S[0],16)}")
    a("s_mov_b32 s34, 0")
    a("s_nop 7"); a("s_nop 1")
    a.vm = [("v", 0)] * 2 + [("k", 1)] * 2 + [("v", 1)] * 2
    S_(7); S_(10, True)
    pat = opt.get("pat", "MeeeMeeeMeeeM|eeeeeeecccccccc")
    def tile(b, last):
        for j in range(8):
            if opt.get("ts") and not last and (b == 0 or (b == 1 and j == 0)):
                ix = j if b == 0 else 8
                a(f"s_memtime s[{64+2*ix}:{65+2*ix}]")
            fill = []
            if not last:
                b2 = (b + 2) % 3
                if j in (1, 2): fill = [kld(b2, "s28", ("k", b2))[j - 1]]
                if j in (3, 4): fill = [vld(b2, "s28", ("v", b2))[j - 3]]
                if j == 5: fill = adv()
                if j == 6:
                    fill = [] if opt.get("nowarm") else [cold_warm(0, "d")] + ([cold_warm(1, "o")] if b else [])
                    if b == 0: fill += [cold_blk(1, SFLG)]
                if j == 0 and b == 0: fill = [cold_blk(0, SENT)]
            else:
                if j == 0: fill = [lambda: a.lds(f"ds_read_b32 v{FV}, v{FG2}", "fl")]
                if j == 1: fill = [lambda: poll_lds(a, FV, FG2, 5, "fl", issue=False)]
                if 2 <= j <= 7:
                    jj = j - 2
                    fill = [lambda: None] * 3 + [(lambda r=r: a.lds(f"ds_write_b128 v{RA[jj//2]}, {vr(O[jj]+4*r,4)} offset:{(jj%2)*3072+r*1024}", "ow")) for r in range(3)]
            if j == 7 and not last: a.wait(vm=("k", (b + 1) % 3))
            if j == 1: a.wait(vm=("v", b))
            kb = b if j < 7 else (b + 1) % 3
            vb = b if j > 0 else (b - 1) % 3
            aa = j % 2; o = 1 - aa
            s_, p_ = S[aa], P[aa]
            jn, jp = (j + 1) % 8, (j - 1) % 8
            M = [f"v_mfma_f32_32x32x16_bf16 {vr(S[o],16)}, {vr(K1f[kb],4)}, {vr(QA[jn],4)}, 0",
                 f"v_mfma_f32_32x32x8_bf16 {vr(S[o],16)}, {vr(K2f[kb],2)}, {vr(QB[jn],2)}, {vr(S[o],16)}",
                 f"v_mfma_f32_32x32x16_bf16 {vr(O[jp],16)}, {vr(Vf[vb][0],4)}, {vr(P[o],4)}, {vr(O[jp],16)}",
                 f"v_mfma_f32_32x32x16_bf16 {vr(O[jp],16)}, {vr(Vf[vb][1],4)}, {vr(P[o]+4,4)}, {vr(O[jp],16)}"]
            ne = nc = nm = 0
            for ch in (opt['pat2'] if opt.get('pat2') and j % opt.get('p2every', 4) == 0 else pat):
                if ch == "M":
                    if not (last and j == 7 and nm < 2): a(M[nm])
                    nm += 1
                elif ch == "e": a(f"v_exp_f32 v{s_+ne}, v{s_+ne}"); ne += 1
                elif ch == "c": a(f"v_cvt_pk_bf16_f32 v{p_+nc}, v{s_+2*nc}, v{s_+2*nc+1}"); nc += 1
                elif ch == "|": a.sprinkle(fill, opt.get("fevery", 1), "v_")
                elif ch == "<": a("s_setprio 3")
                elif ch == ">": a("s_setprio 0")
            a.flush_pend()
    top_vm = list(a.vm)
    a.raw(".p2align 6")
    a.label("L_a_loop")
    tile(0, False); tile(1, False); tile(2, False)
    if opt.get("its"):
        for it, ix in ((0, 1), (1, 2), (2, 3), (3, 4), (4, 5)):
            l = a.newlabel("it"); a(f"s_cmp_lg_u32 s34, {it}"); a(f"s_cbranch_scc1 {l}"); S0_(ix, True); a(f"s_sub_u32 s{44+ix}, s{44+ix}, s54"); a(f"s_mul_i32 s{44+ix}, s{44+ix}, 100"); a(f"s_add_u32 s{44+ix}, s{44+ix}, s44"); a.label(l)
    a("s_add_u32 s34, s34, 1")
    a("s_cmp_lt_u32 s34, 5")
    a("s_cbranch_scc1 L_a_loop")
    assert a.vm == top_vm, (a.vm, top_vm)
    tile(0, True)
    a("s_nop 0")
    a(f"v_mfma_f32_32x32x16_bf16 {vr(O[7],16)}, {vr(Vf[0][0],4)}, {vr(P[1],4)}, {vr(O[7],16)}")
    a(f"v_mfma_f32_32x32x16_bf16 {vr(O[7],16)}, {vr(Vf[0][1],4)}, {vr(P[1]+4,4)}, {vr(O[7],16)}")
    a.wait(lg="ow")
    set_flag(a, FV, FWA, 13)
    if st:
        S_(8); S_(11, True); a("s_sub_u32 s54, s55, s54"); a("s_mov_b32 s55, 0")
        if opt.get("ts"):
            for i in range(1, 8):
                a(f"s_sub_u32 s{44+i}, s{64+2*i}, s{62+2*i}"); a(f"s_mul_i32 s{44+i}, s{44+i}, 100"); a(f"s_add_u32 s{44+i}, s{44+i}, s44")
    poll_lds(a, FV, FAD, 13, "fl")
    RR = 16
    RR = O[0]
    if opt.get("tst"): S0_(1)
    for src in range(3):
        for t in range(2):
            for r in range(3):
                a.lds(f"ds_read_b128 {vr(RR+24*src+12*t+4*r,4)}, v{BV} offset:{src*6144+t*3072+r*1024}", ("or", src))
    for src in range(3):
        a.wait(lg=("or", src))
        for i in range(0, 24, 2):
            a(f"v_pk_add_f32 {vr(O[6]+i,2)}, {vr(O[6]+i,2)}, {vr(RR+24*src+i,2)}")
    a(f"v_add_f32_e64 v{TA}, |v{O[6]}|, |v{O[6]+1}|")
    for i in range(2, 24): a(f"v_add_f32_e64 v{TA}, v{TA}, |v{O[6]+i}|")
    a(f"v_cmp_ngt_f32 vcc, s42, v{TA}")
    a("s_cmp_eq_u64 vcc, 0")
    a("s_cbranch_scc0 L_a_fallback")
    a.label("L_a_norm")
    if opt.get("tst"): S0_(2)
    a(f"v_mov_b32 v{FG2}, {BIG}")
    a(f"v_cndmask_b32 v{FG2}, v{FG2}, v{L16}, s[60:61]")
    for t in range(2):
        oo = O[6 + t]
        a(f"v_mov_b32 v{TA}, v{oo+8}")
        a(f"v_mov_b32 v{TB}, v{oo+8}")
        a("s_nop 1")
        a(f"v_permlane32_swap_b32 v{TA}, v{TB}")
        a("s_nop 1")
        a(f"v_rcp_f32 v{TB}, v{TB}")
        a("s_nop 0")
        for i in range(12): a(f"v_mul_f32 v{oo+i}, v{oo+i}, v{TB}")
        for i in range(6): a(f"v_cvt_pk_bf16_f32 v{S[t]+i}, v{oo+2*i}, v{oo+2*i+1}")
        a(f"buffer_store_dwordx4 {vr(S[t],4)}, v{L16}, s[20:23], s{38+2*t} offen sc1")
        a(f"buffer_store_dwordx2 {vr(S[t]+4,2)}, v{FG2}, s[20:23], s{39+2*t} offen sc1")
    if opt.get("tst"): S0_(3)
    if st:
        S_(9); st.flush(a, P_WS, 6, 20)
    a("s_endpgm")
    a.label("L_a_fallback")
    a("s_waitcnt vmcnt(0) lgkmcnt(0)")
    M = [RA[0], RA[1]]
    FO = [156, 172]
    for t in range(2):
        a(f"v_mov_b32 v{M[t]}, 0xff800000")
        a(f"v_cndmask_b32 v{QB[6+t]}, v{ZERO}, v{QB[6+t]}, s[60:61]")
    a("s_mov_b32 s43, 0")
    a.label("L_a_fb1")
    for f in kld(0, "s43", None): f()
    a("s_waitcnt vmcnt(0)")
    for t in range(2):
        a(f"v_mfma_f32_32x32x16_bf16 {vr(S[t],16)}, {vr(K1f[0],4)}, {vr(QA[6+t],4)}, 0")
        a(f"v_mfma_f32_32x32x8_bf16 {vr(S[t],16)}, {vr(K2f[0],2)}, {vr(QB[6+t],2)}, {vr(S[t],16)}")
    a("s_nop 7"); a("s_nop 7")
    for t in range(2): rowmax(t, M[t], False)
    a("s_add_u32 s43, s43, 3072")
    a(f"s_cmp_lt_u32 s43, {KV_BYTES}")
    a("s_cbranch_scc1 L_a_fb1")
    NEG = [188, 204]
    for t in range(2):
        a(f"v_mov_b32 v{TB}, v{M[t]}")
        a("s_nop 1")
        a(f"v_permlane32_swap_b32 v{M[t]}, v{TB}")
        a("s_nop 1")
        a(f"v_max_f32 v{M[t]}, v{M[t]}, v{TB}")
        for i in range(16):
            a(f"v_sub_f32 v{NEG[t]+i}, 0, v{M[t]}"); a(f"v_mov_b32 v{FO[t]+i}, 0")
    a("s_mov_b32 s43, 0")
    a.label("L_a_fb2")
    for f in kld(0, "s43", None) + vld(0, "s43", None): f()
    a("s_waitcnt vmcnt(0)")
    for t in range(2):
        a(f"v_mfma_f32_32x32x16_bf16 {vr(S[t],16)}, {vr(K1f[0],4)}, {vr(QA[6+t],4)}, {vr(NEG[t],16)}")
        a(f"v_mfma_f32_32x32x8_bf16 {vr(S[t],16)}, {vr(K2f[0],2)}, {vr(QB[6+t],2)}, {vr(S[t],16)}")
    a("s_nop 7"); a("s_nop 7")
    for t in range(2):
        for r in range(16): a(f"v_exp_f32 v{S[t]+r}, v{S[t]+r}")
        a("s_nop 0")
        for i in range(8): a(f"v_cvt_pk_bf16_f32 v{P[t]+i}, v{S[t]+2*i}, v{S[t]+2*i+1}")
        a("s_nop 1")
        a(f"v_mfma_f32_32x32x16_bf16 {vr(FO[t],16)}, {vr(Vf[0][0],4)}, {vr(P[t],4)}, {vr(FO[t],16)}")
        a(f"v_mfma_f32_32x32x16_bf16 {vr(FO[t],16)}, {vr(Vf[0][1],4)}, {vr(P[t]+4,4)}, {vr(FO[t],16)}")
    a("s_add_u32 s43, s43, 3072")
    a(f"s_cmp_lt_u32 s43, {KV_BYTES}")
    a("s_cbranch_scc1 L_a_fb2")
    a("s_nop 7"); a("s_nop 7")
    for t in range(2):
        for i in range(12): a(f"v_mov_b32 v{O[6+t]+i}, v{FO[t]+i}")
    a("s_branch L_a_norm")

def gen_g(a, S0_, st, opt, NSH):
    E_ = (lambda i: S0_(i)) if opt.get("early") else (lambda i: None)
    S_ = (lambda i, cyc=False: S0_(i, cyc) if (not opt.get("early") or i < 6 or i == 9) else None)
    E_(6)
    TAG = 11
    X = 16; U = 32; SUM, SQ = 12, 14
    a(f"s_setprio {opt.get('gfp', 3)}")
    a(f"v_lshrrev_b32 v{TA}, 5, v{LANE}")
    a(f"v_mul_u32_u24 v{TA}, 1280, v{TA}")
    a(f"v_and_b32 v{TB}, 31, v{LANE}")
    a(f"v_lshl_add_u32 v56, v{TB}, 4, v{TA}")
    a(f"v_mov_b32 v9, {BIG}")
    a(f"v_cmp_gt_u32 vcc, 16, v{TB}")
    a("s_lshl_b32 s28, s4, 3")
    a("s_add_u32 s28, s28, s5")
    a("v_cndmask_b32 v57, v9, v56, vcc")
    a("s_lshl_b32 s7, s28, 2")
    a("s_add_u32 s7, s7, s3")
    a("s_mul_i32 s7, s7, 2560")
    a("s_mov_b64 s[60:61], vcc")
    a.vmem(f"buffer_load_dwordx4 {vr(X,4)}, v56, s[8:11], s7 offen", ("x", 0))
    a.vmem(f"buffer_load_dwordx4 {vr(X+4,4)}, v56, s[8:11], s7 offen offset:512", ("x", 1))
    a.vmem(f"buffer_load_dwordx4 {vr(X+8,4)}, v57, s[8:11], s7 offen offset:1024", ("x", 2))
    a("s_barrier")
    a("s_cmp_ge_u32 s3, 2")
    a(f"s_cselect_b32 s12, s{P_WV}, s{P_WK}")
    a(f"s_cselect_b32 s13, s{P_WV+1}, s{P_WK+1}")
    a("s_mov_b32 s14, 25600"); a("s_mov_b32 s15, 0x00020000")
    a(f"s_cselect_b32 s24, {L_WV-L_WK}, 0")
    a(f"s_add_u32 s24, s24, {L_WK}")
    a("s_and_b32 s25, s3, 1")
    a("s_lshl_b32 s25, s25, 10")
    a("s_add_u32 s24, s24, s25")
    for j in range(13):
        a(f"s_add_u32 m0, s24, {j*2048}")
        a("s_nop 0")
        a.vmem(f"buffer_load_dwordx4 v{L16}, s[12:15], s25 offen lds", "wkv")
        a("s_add_u32 s25, s25, 2048")
    X2 = 216; U2 = 64
    a(f"v_and_b32 v{TB}, 31, v{LANE}")
    a(f"v_and_b32 v{TA}, 3, v{LANE}")
    a(f"v_lshlrev_b32 v{FAD}, 2, v{TA}")
    a(f"v_add_u32 v{FAD}, {L_FLAGG}, v{FAD}")
    a("s_lshl_b32 s30, s3, 2")
    a(f"s_add_u32 s30, s30, {L_FLAGG}")
    a(f"v_mov_b32 v{FWA}, s30")
    GQ, WA, XA, J, XW = 58, 59, 60, 61, 62
    a(f"v_lshrrev_b32 v{GQ}, 4, v{LANE}")
    a(f"v_bfe_u32 v{WA}, v{LANE}, 2, 2")
    a(f"v_lshl_add_u32 v{WA}, v{GQ}, 3, v{WA}")
    a(f"v_mul_u32_u24 v{WA}, 40, v{WA}")
    a(f"v_lshlrev_b32 v{TA}, 3, v{TA}")
    a("s_cmp_ge_u32 s3, 2")
    a("s_cselect_b32 s24, 0, -1")
    a("s_cselect_b32 s25, 32, 0")
    a("s_bitcmp1_b32 s3, 0")
    a(f"s_cselect_b32 s26, {L_WV-L_WK}, 0")
    a(f"s_add_u32 s26, s26, {L_WK}")
    a("s_add_u32 s25, s25, s26")
    a(f"v_and_b32 v{TA}, s24, v{TA}")
    a(f"v_add3_u32 v{WA}, v{WA}, v{TA}, s25")
    a("s_lshr_b32 s26, s5, 2")
    a(f"s_mul_i32 s26, s26, {XNT}")
    a("s_and_b32 s27, s5, 3")
    a("s_lshl_b32 s27, s27, 7")
    a("s_add_u32 s26, s26, s27")
    a(f"s_add_u32 s26, s26, {L_XN}")
    a(f"v_and_b32 v{TA}, 7, v{LANE}")
    a(f"v_mul_u32_u24 v{XA}, 528, v{GQ}")
    a(f"v_lshl_add_u32 v{XA}, v{TA}, 4, v{XA}")
    a(f"v_add_u32 v{XA}, s26, v{XA}")
    a("s_lshl_b32 s27, s3, 5")
    a("s_add_u32 s27, s27, s26")
    a(f"v_mul_u32_u24 v{XW}, 528, v{TB}")
    a(f"v_lshrrev_b32 v{TA}, 5, v{LANE}")
    a(f"v_lshl_add_u32 v{XW}, v{TA}, 4, v{XW}")
    a(f"v_add_u32 v{XW}, s27, v{XW}")
    srd(a, 24, P_WS, KV_BYTES, WS_KV)
    srd(a, 56, P_WS, FL_BYTES, WS_FL)
    srd(a, 16, P_WG, 640 * 3072)
    srd(a, 20, P_WU, 640 * 3072)
    a("s_lshr_b32 s29, s28, 2")
    a("s_mul_i32 s29, s29, 3072")
    a("s_bfe_u32 s30, s28, 0x10001")
    a("s_and_b32 s31, s28, 1")
    a(f"v_and_b32 v{J}, 15, v{LANE}")
    a("s_bitcmp1_b32 s3, 0")
    a("s_cbranch_scc1 L_g_va")
    a("s_lshl_b32 s32, s30, 4"); a("s_lshl_b32 s33, s31, 2"); a("s_add_u32 s32, s32, s33")
    a(f"v_lshrrev_b32 v30, 2, v{J}")
    a("v_lshlrev_b32 v30, 3, v30")
    a(f"v_and_b32 v28, 3, v{J}")
    a("v_add3_u32 v30, v30, v28, s32")
    a(f"v_lshrrev_b32 v28, 1, v{GQ}")
    a("v_lshlrev_b32 v28, 9, v28")
    a("v_lshl_add_u32 v28, v30, 4, v28")
    a(f"v_and_b32 v31, 1, v{GQ}")
    a("v_lshl_add_u32 v28, v31, 3, v28")
    a("v_lshlrev_b32 v31, 3, v30")
    a(f"v_lshl_add_u32 v31, v{GQ}, 8, v31")
    a("v_add_u32 v31, 1024, v31")
    a(f"v_cmp_gt_u32 vcc, 2, v{GQ}")
    a("v_mov_b32 v29, 0x3f803f80")
    a("v_mov_b32 v57, 0")
    a("v_cndmask_b32 v31, v9, v31, vcc")
    a(f"v_cmp_eq_u32 s[40:41], 1, v{GQ}")
    a("s_cmp_ge_u32 s3, 2")
    a("s_cselect_b64 vcc, -1, 0")
    a("s_cselect_b64 s[40:41], s[40:41], 0")
    a("v_cndmask_b32 v28, v28, v31, vcc")
    a(f"v_cmp_gt_u32 vcc, 8, v{J}")
    a("s_nop 1")
    a("v_cndmask_b32 v28, v9, v28, vcc")
    a("s_branch L_g_vb")
    a.label("L_g_va")
    a("s_mul_i32 s32, s30, 768"); a("s_mul_i32 s33, s31, 384"); a("s_add_u32 s32, s32, s33"); a("s_add_u32 s32, s32, 1536")
    a(f"v_and_b32 v30, 3, v{J}")
    a(f"v_bfe_u32 v28, v{J}, 2, 1")
    a("v_lshl_add_u32 v30, v28, 3, v30")
    a(f"v_bfe_u32 v28, v{J}, 3, 1")
    a("v_lshl_add_u32 v30, v28, 2, v30")
    a(f"v_add_u32 v28, 16, v{J}")
    a("s_cmp_ge_u32 s3, 2")
    a("s_cselect_b64 vcc, -1, 0")
    a("s_cselect_b32 s33, 6, 16")
    a("s_cselect_b32 s34, 4, 99")
    a("s_cselect_b32 s35, 5, 99")
    a("v_cndmask_b32 v30, v30, v28, vcc")
    a("v_lshlrev_b32 v30, 4, v30")
    a(f"v_lshl_add_u32 v30, v{GQ}, 3, v30")
    a("v_add_u32 v30, s32, v30")
    a(f"v_cmp_gt_u32 vcc, s33, v{J}")
    a("v_mov_b32 v29, 0x3f803f80")
    a("s_nop 0")
    a("v_cndmask_b32 v30, v9, v30, vcc")
    a(f"v_cmp_gt_u32 vcc, 2, v{GQ}")
    a("s_nop 1")
    a("v_cndmask_b32 v28, v9, v30, vcc")
    a(f"v_cmp_eq_u32 s[40:41], s35, v{J}")
    a(f"v_cmp_eq_u32 vcc, s34, v{J}")
    a("s_nop 1")
    a(f"v_cndmask_b32 v29, v29, v{ZERO}, s[40:41]")
    a("s_or_b64 s[40:41], vcc, s[40:41]")
    a("v_mov_b32 v57, v29")
    a.label("L_g_vb")
    wq_offsets(a, 144)
    srd(a, 92, P_WQ, 640 * 1280)
    a("s_mul_i32 s42, s5, 160")
    a("s_mul_i32 s43, s3, 40960")
    a("s_add_u32 s42, s42, s43")
    a("s_mul_i32 s43, s3, 5120")
    a(f"s_add_u32 s43, s43, {L_R1}")
    S_(1)
    def hook(i):
        if i == 0:
            S_(2)
            a.vmem(f"buffer_load_dword v{TAG}, v{ZERO}, s[88:91], 0 offen sc1", "tag")
    ln_stats(a, X, U, 3, SUM, SQ, lambda i: ("x", i), hook)
    dpp_sum(a, [SUM, SQ], ("quad_perm:[1,0,3,2]", "quad_perm:[2,3,0,1]", "row_half_mirror", "row_mirror"))
    a(f"v_mov_b32 v{SUM+1}, v{SUM}"); a(f"v_mov_b32 v{SQ+1}, v{SQ}")
    a("s_nop 1")
    a(f"v_permlane16_swap_b32 v{SUM}, v{SUM+1}")
    a(f"v_permlane16_swap_b32 v{SQ}, v{SQ+1}")
    a("s_nop 1")
    a(f"v_add_f32 v{SUM}, v{SUM}, v{SUM+1}")
    a(f"v_add_f32 v{SQ}, v{SQ}, v{SQ+1}")
    ln_finish(a, SUM, SQ)
    for i in range(3):
        for d in range(4):
            pp = vr(U + 8 * i + 2 * d, 2)
            a(f"v_pk_fma_f32 {pp}, {pp}, {vr(SQ,2)}, {vr(SUM,2)}")
        for d in range(4):
            a(f"v_cvt_pk_bf16_f32 v{X+4*i+d}, v{U+8*i+2*d}, v{U+8*i+2*d+1}")
        if i == 2: a("s_mov_b64 exec, s[60:61]")
        a.lds(f"ds_write_b128 v{XW}, {vr(X+4*i,4)} offset:{i*16896}", "xw")
        if i == 2: a("s_mov_b64 exec, -1")
    a.wait(vm="wkv")
    set_flag(a, FV, FWA, 1)
    poll_lds(a, FV, FAD, 1, "fl")
    S_(3)
    KA = 16; WKF = 150; XF_ = 64
    for s_ in range(20):
        for hf in range(2): a.lds(f"ds_read_b64_tr_b16 {vr(WKF+4*s_+2*hf,2)}, v{WA} offset:{s_*1280+hf*160}", "wk")
    set_flag(a, FV, FWA, 2)
    for s_ in range(20): a.lds(f"ds_read_b128 {vr(XF_+4*s_,4)}, v{XA} offset:{s_*2112}", ("g", s_))
    def gwq(g4):
        for i in range(5):
            if i in (0, 4):
                a(f"s_add_u32 m0, s43, {SLOT(g4)*5120 + i*1024}"); a(f"s_add_u32 s60, s42, {g4*40960}")
            a(f"buffer_load_dwordx4 v{144+i}, s[92:95], s60 offen" + (f" offset:{i*1024}" if i < 4 else "") + " lds")
    a("s_bitcmp1_b32 s3, 0")
    a("s_cbranch_scc1 L_g_v")
    lg0 = list(a.lg)
    for role in ("k", "v"):
        if role == "v": a.label("L_g_v")
        a.lg = list(lg0)
        for s_ in range(20):
            a.wait(lg=("g", s_))
            cin = vr(KA, 4) if s_ else "0"
            if role == "k": a(f"v_mfma_f32_16x16x32_bf16 {vr(KA,4)}, {vr(WKF+4*s_,4)}, {vr(XF_+4*s_,4)}, {cin}")
            else: a(f"v_mfma_f32_16x16x32_bf16 {vr(KA,4)}, {vr(XF_+4*s_,4)}, {vr(WKF+4*s_,4)}, {cin}")
        if role == "k": a("s_branch L_g_kvst")
    a.label("L_g_kvst")
    a("s_nop 7")
    a(f"v_cvt_pk_bf16_f32 v24, v{KA}, v{KA+1}")
    a(f"v_cvt_pk_bf16_f32 v25, v{KA+2}, v{KA+3}")
    a("v_cndmask_b32 v24, v24, v29, s[40:41]")
    a("v_cndmask_b32 v25, v25, v57, s[40:41]")
    a("buffer_store_dwordx2 v[24:25], v28, s[24:27], s29 offen sc1")
    S_(4)
    poll_lds(a, FV, FAD, 2, "fl")
    a("s_cmp_ge_u32 s3, 2")
    a("s_cbranch_scc1 L_g_no13")
    gwq(13)
    a.label("L_g_no13")
    gwq(5); gwq(9)
    a("s_waitcnt vmcnt(10)")
    a.vm = []
    tag_check(a, TAG)
    a(f"v_mov_b32 v{TA}, s62")
    a("s_lshl_b32 s36, s28, 4")
    a("s_mov_b64 exec, 1")
    a(f"v_mov_b32 v{FV}, 1")
    a(f"ds_add_rtn_u32 v{FV}, v{ZERO}, v{FV} offset:{L_CNTKV}")
    a("s_waitcnt lgkmcnt(0)"); a.lg = []
    a(f"v_cmp_eq_u32 vcc, 3, v{FV}")
    a("s_and_b64 exec, exec, vcc")
    a("s_cbranch_execz L_g_nokvflag")
    a(f"buffer_store_dword v{TA}, v{ZERO}, s[56:59], s36 offen sc1")
    a.label("L_g_nokvflag")
    a("s_mov_b64 exec, -1")
    S_(5)
    a(f"v_subrev_u32 v{TB}, {L_FLAGG}, v{FAD}")
    a("s_waitcnt vmcnt(1)")
    a("s_cbranch_vccnz L_g_p2ok")
    a("s_waitcnt vmcnt(0)")
    a.label("L_g_p2ok")
    set_flag(a, FV, FWA, 3)
    poll_lds(a, FV, TB, 4, "fl")
    a("s_cmp_lg_u32 s3, 0")
    a("s_cbranch_scc1 L_g_no19")
    gwq(19)
    a.label("L_g_no19")
    gwq(15)
    GP3 = True
    WO = [12, 13, 14]; WT, XA0, XA1 = 15, 9, 242
    for i in range(3):
        a(f"v_add_u32 v{WO[i]}, {64*i}, v{LANE}")
        a(f"v_mul_u32_u24 v{TA}, 171, v{WO[i]}")
        a(f"v_lshrrev_b32 v{TA}, 10, v{TA}")
        a(f"v_mul_u32_u24 v{TB}, 6, v{TA}")
        a(f"v_sub_u32 v{TB}, v{WO[i]}, v{TB}")
        a(f"v_mul_u32_u24 v{TA}, 3072, v{TA}")
        a(f"v_lshl_add_u32 v{WO[i]}, v{TB}, 4, v{TA}")
        if i: a(f"v_subrev_u32 v{WO[i]}, {1024*i}, v{WO[i]}")
    a("s_mul_i32 s32, s5, 384")
    a("s_mul_i32 s33, s3, 96")
    a("s_add_u32 s32, s32, s33")
    a(f"s_mul_i32 s33, s3, {WSLOT}")
    a(f"s_add_u32 s33, s33, {L_R1}")
    a("s_waitcnt lgkmcnt(0)"); a.lg = []
    wcount = {}
    def w_parts(u):
        sl = WSO[WMAP(u)]
        def mk(m, i):
            def f():
                if i == 0:
                    a(f"s_add_u32 m0, s33, {sl + m*3200}"); a("s_nop 0")
                a.vmem(f"buffer_load_dwordx4 v{WO[i]}, s[{16+4*m}:{19+4*m}], s32 offen offset:{i*1024} lds", ("w", u))
                if m == 1 and i == 2: a("s_add_u32 s32, s32, 98304")
                wcount[u] = wcount.get(u, 0) + 1
            return f
        return [mk(m, i) for m in range(2) for i in range(3)]
    def gwarm():
        warm(a, [16, 20], 3072, 640 // NSH // 4, 384, ("s5", 384), NSH, TA, 60, 61, 3)
    if opt.get("wwarm") == "b": gwarm()
    a("s_waitcnt vmcnt(0)"); a.vm = []
    set_flag(a, FV, FWA, 4)
    if opt.get("wwarm") == "c": gwarm()
    AFL = 11
    a(f"v_subrev_u32 v{AFL}, {L_FLAGG}, v{FAD}")
    a(f"v_lshrrev_b32 v{TB}, 5, v{LANE}")
    a(f"v_bfe_u32 v{WT}, v{LANE}, 2, 2")
    a(f"v_lshl_add_u32 v{WT}, v{TB}, 3, v{WT}")
    a(f"v_mul_u32_u24 v{229}, 320, v{WT}")
    a(f"v_mul_u32_u24 v{WT}, 96, v{WT}")
    a(f"v_mul_u32_u24 v{XA0}, 528, v{TB}")
    a(f"v_mul_u32_u24 v{230}, 40, v{TB}")
    a(f"v_and_b32 v{TB}, 1, v{LANE}")
    a(f"v_lshl_add_u32 v{WT}, v{TB}, 4, v{WT}")
    a(f"v_bfe_u32 v{TB}, v{LANE}, 1, 1")
    a(f"v_lshl_add_u32 v{WT}, v{TB}, 3, v{WT}")
    a(f"v_bfe_u32 v{TB}, v{LANE}, 4, 1")
    a(f"v_mul_u32_u24 v{TA}, 3200, v{TB}")
    a(f"v_add3_u32 v{WT}, v{WT}, v{TA}, s33")
    DO = 232; DO2 = 237; XR = 242; DT, PA, OA, DT2 = 252, 253, 254, 255
    a(f"v_and_b32 v{TA}, 3, v{LANE}")
    a(f"v_lshl_add_u32 v{TA}, v{TB}, 2, v{TA}")
    a("s_lshl_b32 s29, s3, 1")
    a(f"v_add_u32 v{TA}, s29, v{TA}")
    a(f"v_and_b32 v{TA}, 7, v{TA}")
    a(f"v_mul_u32_u24 v{TA}, 40, v{TA}")
    a("s_mov_b32 s29, s33")
    a(f"v_add3_u32 v{DT}, v229, v{TA}, s29")
    a(f"v_and_b32 v{TA}, 7, v{LANE}")
    a(f"v_lshlrev_b32 v{PA}, 4, v{TA}")
    a(f"v_and_b32 v{TA}, 31, v{LANE}")
    a(f"v_lshl_add_u32 v{XA0}, v{TA}, 4, v{XA0}")
    a(f"v_add_u32 v{XA0}, {L_XN}, v{XA0}")
    a(f"v_add_u32 v{XA1}, {XNT}, v{XA0}")
    a(f"v_mul_u32_u24 v{TA}, 1280, v{TA}")
    a(f"v_add_u32 v{OA}, v230, v{TA}")
    for i in range(5):
        a(f"v_add_u32 v{TA}, {64*i}, v{LANE}")
        a(f"v_mul_u32_u24 v{TB}, 205, v{TA}")
        a(f"v_lshrrev_b32 v{TB}, 12, v{TB}")
        a(f"v_mul_u32_u24 v{DO+i}, 20, v{TB}")
        a(f"v_sub_u32 v{TA}, v{TA}, v{DO+i}")
        a(f"v_lshlrev_b32 v{TA}, 4, v{TA}")
        if 0 < i < 4: a(f"v_subrev_u32 v{TA}, {1024*i}, v{TA}")
        a(f"v_mul_u32_u24 v{DO+i}, 1280, v{TB}")
        a(f"v_add_u32 v{DO+i}, v{DO+i}, v{TA}")
        a(f"v_lshrrev_b32 v{TB}, 2, v{TB}")
        a(f"v_add_u32 v{TB}, 1, v{TB}")
        a(f"v_mul_u32_u24 v{TB}, 20480, v{TB}")
        a(f"v_add_u32 v{DO2+i}, v{DO+i}, v{TB}")
    srd(a, 24, P_WS, H_BYTES, WS_H)
    srd(a, 12, P_WS, O_BYTES, WS_O)
    srd(a, 92, P_WD, 1536 * 1280)
    srd(a, 96, P_WO, 640 * 1280)
    a("s_mul_i32 s26, s5, 12288") if False else None
    a("s_lshl_b32 s36, s4, 1")
    a("s_mul_i32 s36, s36, 98304")
    a("s_mul_i32 s37, s5, 12288")
    a("s_mul_i32 s7, s3, 3072")
    a("s_add_u32 s7, s7, s37")
    a("s_add_u32 s36, s36, s7")
    a("s_add_u32 s37, s36, 98304")
    a("s_and_b32 s38, s5, 3")
    poll_lds(a, FV, AFL, opt.get("wstart", 8), "fl")
    a(f"s_setprio {opt['prioG']}")
    S_(6)
    a.raw("; @@G_MAIN_BEGIN")
    ACC = [[16 + 16 * (3 * b + t) for t in range(3)] for b in range(2)]
    FR = 112
    def f1parts(k):
        b = FR + (k % 2) * 20
        off = WSO[WMAP(k // 2)] + (k % 2) * 1536
        def B(i): return lambda: a.lds(f"ds_read_b128 {vr(b+4*i,4)}, v{XA1 if i else XA0} offset:{k*1056}", ("fb", k, i))
        def A_(t, hf):
            def f():
                if t == 0 and hf == 0:
                    while wcount.get(k // 2, 0) < 6: pend.pop(0)()
                    a.wait(vm=("w", k // 2))
                a.lds(f"ds_read_b64_tr_b16 {vr(b+8+4*t+2*hf,2)}, v{WT} offset:{off+t*32+hf*384}", ("fa", k, t))
            return f
        return [B(0), A_(0, 0), A_(0, 1), A_(1, 0), A_(1, 1), A_(2, 0), A_(2, 1), B(1)]
    a("s_mul_i32 s38, s38, 320")
    a("s_mul_i32 s39, s7, 20")
    a("s_add_u32 s39, s39, s38")
    a("s_mul_i32 s40, s3, 204800")
    a("s_add_u32 s40, s40, s38")
    a("s_mov_b32 s41, s40")
    def adv_d(so, k):
        if k % 3 == 2:
            a(f"s_add_u32 {so}, {so}, 204800"); a(f"s_sub_u32 s60, {so}, 1966080"); a(f"s_cmp_ge_u32 {so}, 1966080"); a(f"s_cselect_b32 {so}, s60, {so}")
        else: a(f"s_add_u32 {so}, {so}, 20480")
    def d_parts(k):
        sl = DS(k)
        if k < 24: sd, so, vo = "s[92:95]", "s39", DO
        elif k < 32: sd, so, vo = "s[96:99]", "s40", DO
        else: sd, so, vo = "s[96:99]", "s41", DO2
        def mk(i):
            def f():
                if i in (0, 4):
                    a(f"s_add_u32 m0, s29, {sl + (4096 if i == 4 else 0)}"); a("s_nop 0")
                a.vmem(f"buffer_load_dwordx4 v{vo+i}, {sd}, {so} offen" + (f" offset:{i*1024}" if i < 4 else "") + " lds", ("d", k))
                if i == 4:
                    if k < 24 and k % 3 == 2:
                        a("s_add_u32 s39, s39, 204800")
                        a("s_sub_u32 s60, s39, 1966080")
                        a("s_cmp_ge_u32 s39, 1966080")
                        a("s_cselect_b32 s39, s60, s39")
                    else:
                        a(f"s_add_u32 {so}, {so}, {20480 if k < 24 else (25600 if k < 32 else 102400)}")
            return f
        return [mk(i) for i in range(5)]
    def d_dma(k):
        for f in d_parts(k): f()
    a("s_lshl_b32 s30, s4, 9")
    a("s_lshl_b32 s31, s3, 7")
    a("s_add_u32 s30, s30, s31")
    a("s_lshl_b32 s42, s5, 4")
    a("s_add_u32 s42, s42, s30")
    a(f"s_add_u32 s42, s42, {FL_H}")
    a(f"s_add_u32 s30, s30, {FL_H}")
    SFR = 152
    a(f"v_mov_b32 v153, s62")
    def hflag(w):
        if w: a.wait(vm="hst")
        a("s_mov_b64 exec, 1")
        a.vmem(f"buffer_store_dword v153, v{ZERO}, s[56:59], s42 offen sc1", "hfl")
        a("s_mov_b64 exec, -1")
    PF = 152; NPF = opt.get("npf", 0)
    def pf_parts(k):
        def mk(i):
            def f():
                a.vmem(f"buffer_load_dwordx4 {vr(PF+20*(k-3)+4*i,4)}, v{DO+i}, s[92:95], s34 offen" + (f" offset:{i*1024}" if i < 4 else ""), ("pf", k))
                if i == 4: adv_d("s34", k)
            return f
        return [mk(i) for i in range(5)]
    def pf_write(k):
        def mk(i):
            def f():
                if i == 0: a.wait(vm=("pf", k))
                a.lds(f"ds_write_b128 v{DT2}, {vr(PF+20*(k-3)+4*i,4)} offset:{DS(k)+i*1024}", ("pw", k))
                if i == 4 and k == 2 + NPF: a("s_mov_b32 s39, s34")
            return f
        a.done.add(("d", k))
        return [mk(i) for i in range(5)]
    a(f"v_add_u32 v{DT2}, s29, v{L16}")
    a("s_add_u32 s34, s39, 40960"); adv_d("s34", 2)
    PFL = [f for k in range(3, 3 + NPF) for f in pf_parts(k)]
    pend = []
    for f in w_parts(0): f()
    if opt.get("wstart", 8) >= 6:
        for f in w_parts(1): f()
    else: pend += [lambda: poll_lds(a, FV, AFL, 6, "fl")] + w_parts(1)
    for f in f1parts(0): f()
    for k in range(40):
        b = FR + (k % 2) * 20
        rd_ = f1parts(k + 1) if k + 1 < 40 else []
        if k == 1: pend += [lambda: poll_lds(a, FV, AFL, 10, "fl")] + w_parts(2)
        if k % 2 == 0 and k >= 2 and k // 2 + 2 < 20: pend += w_parts(k // 2 + 2)
        if k % 2 == 1 and k >= opt.get("pfk", 25) and PFL: pend += PFL[:3]; PFL = PFL[3:]
        if k == 36: pend += d_parts(0)
        if k == 38: pend += d_parts(1)
        if opt.get("hsent"):
            if k == 24: pend += [lambda: poll_lds(a, FV, AFL, 12, "fl"), lambda: hflag(False)]
            if k == 34: pend += [lambda: a.vmem(f"buffer_load_dword v{SFR}, v{PA}, s[56:59], s30 offen sc1", "sfr")]
        elif k == 37: pend += [lambda: poll_lds(a, FV, AFL, 12, "fl")]
        if opt.get("f1st") and k in (1, 10, 20, 30): S0_({1: 1, 10: 2, 20: 3, 30: 4}[k])
        cut = [0, 2, 4, 5, 6, 7, 8]
        i = 0
        for bb in range(2):
            for t in range(3):
                a.wait(lg=[("fb", k, bb), ("fa", k, t)])
                a(f"v_mfma_f32_32x32x16_bf16 {vr(ACC[bb][t],16)}, {vr(b+8+4*t,4)}, {vr(b+4*bb,4)}, {vr(ACC[bb][t],16) if k else 0}")
                for f in rd_[cut[i]:cut[i+1]]: f()
                if (i >= 2 or len(pend) > 6) and pend: pend.pop(0)()
                i += 1
    while pend: pend.pop(0)()
    assert not PFL
    d_dma(2)
    set_flag(a, FV, FWA, 5)
    S_(7)
    a("s_cmp_ge_u32 s5, 4")
    a("s_cselect_b64 vcc, -1, 0")
    DA = [16 + 16 * t for t in range(5)]; BF = 136
    if opt.get('gp', 2) >= 1: a('s_setprio 3')
    for b in range(2):
        for t in range(3):
            c = ACC[b][t]
            for r in range(0, 8, 2): a(f"v_pk_mul_f32 {vr(c+r,2)}, {vr(c+r,2)}, {vr(c+8+r,2)}")
            for i in range(4): a(f"v_cvt_pk_bf16_f32 v{c+8+i}, v{c+2*i}, v{c+2*i+1}")
            if opt.get('gp') != 3: a.vmem(f"buffer_store_dwordx4 {vr(c+8,4)}, v{L16}, s[24:27], s{36+b} offen offset:{t*1024} sc1", "hst")
    for t in range(3):
        for i in range(4):
            a(f"v_cndmask_b32 v{BF+4*t+i}, v{ACC[0][t]+8+i}, v{ACC[1][t]+8+i}, vcc")
        a.done.add(("b", t))
    a(f"v_mov_b32 v{TB}, s62")
    if opt.get('gp') == 3:
        a('s_setprio 0')
        for b in range(2):
            for t in range(3):
                a.vmem(f"buffer_store_dwordx4 {vr(ACC[b][t]+8,4)}, v{L16}, s[24:27], s{36+b} offen offset:{t*1024} sc1", "hst")
    a("s_lshl_b32 s36, s4, 1")
    a("s_lshr_b32 s37, s5, 2")
    a("s_add_u32 s36, s36, s37")
    a("s_mul_i32 s43, s36, 40960")
    a("s_add_u32 s43, s43, s38")
    a("s_mul_i32 s37, s3, 80")
    a("s_add_u32 s43, s43, s37")
    a("s_mul_i32 s37, s36, 98304")
    a("s_mul_i32 s36, s36, 40960")
    a("s_mul_i32 s61, s3, 10240")
    a("s_add_u32 s36, s36, s61")
    HS = [64, 65, 66, 67, 68, 69, 70]
    for j in range(1, 8):
        a("s_add_u32 s7, s7, 12288")
        a("s_sub_u32 s61, s7, 98304")
        a("s_cmp_ge_u32 s7, 98304")
        a("s_cselect_b32 s7, s61, s7")
        a(f"s_add_u32 s{HS[j-1]}, s7, s37")
    def h_ld(k): return f"buffer_load_dwordx4 {vr(BF+4*k,4)}, v{L16}, s[24:27], s{HS[k//3-1]} offen offset:{(k%3)*1024} sc1"
    if opt.get("hsent"):
        a.wait(vm="sfr")
        a(f"v_cmp_ne_u32 vcc, s62, v{SFR}")
        a("s_cmp_eq_u64 vcc, 0")
        a("s_cbranch_scc1 L_g_sok")
        sv = list(a.vm); poll_global(a, FV, 1, PA, 56, "s30", "s62"); a.vm = sv
        a.label("L_g_sok")
    if opt.get('gp', 2) == 1: a(f"s_setprio {opt['prioG']}")
    hl = [lambda: a.vmem(f"buffer_load_dwordx4 {vr(XR,4)}, v{OA}, s[8:11], s43 offen", "xr"),
           lambda: a.vmem(f"buffer_load_dwordx4 {vr(XR+4,4)}, v{OA}, s[8:11], s43 offen offset:16", "xr"),
           lambda: a.vmem(f"buffer_load_dwordx2 {vr(XR+8,2)}, v{OA}, s[8:11], s43 offen offset:32", "xr")]
    def valid(regs, reload, nleft, sleep, lowspin=False):
        chk = a.newlabel("ck"); rt = a.newlabel("rt"); go = a.newlabel("go")
        a("s_mov_b32 s63, 8192")
        a.label(chk)
        a(f"v_max3_u32 v{TA}, v{regs[0]}, v{regs[1]}, v{regs[2]}")
        r = regs[3:]
        while len(r) >= 2: a(f"v_max3_u32 v{TA}, v{TA}, v{r[0]}, v{r[1]}"); r = r[2:]
        if r: a(f"v_max_u32 v{TA}, v{TA}, v{r[0]}")
        a(f"v_cmp_eq_u32 vcc, -1, v{TA}")
        a("s_cmp_eq_u64 vcc, 0")
        a(f"s_cbranch_scc0 {rt}")
        a.label(go)
        a.cold += [f"{rt}:", "    s_sub_u32 s63, s63, 1", f"    s_cbranch_scc1 {go}"] + (["    s_setprio 0"] if lowspin else []) + [f"    s_sleep {sleep}"] + ["    " + l for l in reload] + [f"    s_waitcnt vmcnt({nleft})"] + (["    s_setprio 3"] if lowspin else []) + [f"    s_branch {chk}"]
    FS = lambda k: (96 + (k % 2) * 20) if k < 24 else [96, 116, 176, 196][k % 4]
    pend_dma = []
    def dparts(k):
        b = FS(k)
        def R(t, hf):
            def f():
                if t == 0 and hf == 0: a.wait(vm=("d", k))
                a.lds(f"ds_read_b64_tr_b16 {vr(b+4*t+2*hf,2)}, v{DT} offset:{DS(k)+t*8+hf*1280}", ("dr", k, t))
            return f
        return [R(t, hf) for t in range(5) for hf in range(2)]
    def dreads(k):
        for f in dparts(k): f()
    def mf(k, t):
        a.wait(vm=("b", k), lg=("dr", k, t))
        a(f"v_mfma_f32_32x32x16_bf16 {vr(DA[t],16)}, {vr(FS(k)+4*t,4)}, {vr(BF+4*(k%24),4)}, {vr(DA[t],16) if k else 0}")
    dreads(0)
    a(f"s_setprio {opt['prioG']}")
    for k in range(24):
        if opt.get("hsent"):
            if k == 1: hl = [(lambda j=j: a.vmem(h_ld(j), ("b", j))) for j in range(3, 24)] + hl
            if k >= 3 and k % 3 == 0:
                if k == 3 and opt.get("hst"): S_(10)
                a.wait(vm=("b", k + 2))
                a("s_setprio 3")
                valid(list(range(BF + 4 * k, BF + 4 * k + 12)), [h_ld(j) for j in range(k, min(k + 9, 24))], min(k + 9, 24) - k - 3, 6, True)
                a(f"s_setprio {opt['prioG']}")
                if k == 3 and opt.get("hst"): S_(11)
        elif k == 3:
            if opt.get("hst"): S_(10)
            if opt.get("hpre", 1):
                a.wait(vm="sfr")
                a(f"v_cmp_ne_u32 vcc, s62, v{SFR}")
                a("s_cmp_eq_u64 vcc, 0")
                a("s_cbranch_scc1 L_g_hok")
                sv = list(a.vm); poll_global(a, FV, 1, PA, 56, "s30", "s62", sleep=opt.get("hsl", 3)); a.vm = sv
                a.label("L_g_hok")
            else: poll_global(a, FV, 1, PA, 56, "s30", "s62")
            if opt.get("hst"): S_(11)
            if NPF: a.wait(lg=("pw", 5))
            for j in range(3, 9): a.vmem(h_ld(j), ("b", j))
            hl += [(lambda j=j: a.vmem(h_ld(j), ("b", j))) for j in range(9, 24)]
        rd_ = dparts(k + 1)
        dm_ = pf_write(k + DN) if k < NPF else d_parts(k + DN)
        if k == 4 and NPF: a.wait(lg=("pw", 2 + NPF))
        if k == opt.get("hfk", 1) and not opt.get("hsent"):
            dm_ = dm_ + [lambda: (a.wait(vm="hst"), a("s_mov_b64 exec, 1"), a.vmem(f"buffer_store_dword v{TB}, v{ZERO}, s[56:59], s42 offen sc1", "hfl"), a("s_mov_b64 exec, -1"))]
        if k == 2 and opt.get("hpre", 1): dm_ = [lambda: a.vmem(f"buffer_load_dword v{SFR}, v{PA}, s[56:59], s30 offen sc1", "sfr")] + dm_
        cut = [0, 3, 6, 8, 10, 10]; dcut = [0, 0, 1, 2, 4, len(dm_)]
        for t in range(5):
            mf(k, t)
            for f in rd_[cut[t]:cut[t+1]]: f()
            if t == 1: a.wait(lg=("dr", k, 4))
            for f in dm_[dcut[t]:dcut[t+1]]: f()
            nh = 2 if (opt.get("hsent") and k < 3) else 1
            for f in hl[:nh]: f()
            hl = hl[nh:]
    assert not hl
    a.flush_pend()
    for k in (25, 26): dreads(k)
    a.wait(lg=("dr", 24, 4)); d_dma(27)
    a.wait(lg=("dr", 25, 4)); d_dma(28)
    a.wait(lg=("dr", 26, 4)); d_dma(29)
    dreads(27)
    a.wait(lg=("dr", 27, 4)); d_dma(30)
    a.raw("; @@G_MAIN_END")
    S_(8)
    if opt.get("aoff"):
        S_(9); st.flush(a, P_WS, 6, 20); a("s_endpgm")
    a("s_setprio 3")
    a("s_add_u32 s30, s36, 4096"); a("s_add_u32 s31, s36, 8192")
    def o_ld(i): return f"buffer_load_dwordx4 {vr(BF+4*i,4)}, v{L16}, s[12:15], {['s36','s30','s31'][i//4]} offen offset:{(i%4)*1024} sc1"
    for i in range(10): a.vmem(o_ld(i), ("b", 24 + i))
    for k in range(24, 34):
        i = k - 24; bq = BF + 4 * i
        a.wait(vm=("b", k))
        valid([bq, bq + 1, bq + 2, bq + 3], [o_ld(j) for j in range(i, 10)], 9 - i, opt.get("osleep", 2))
        if k == 24 and not opt.get("hst"): S_(10)
        rd_ = dparts(k + 3) if 28 <= k + 3 < 34 else []
        for t in range(5):
            mf(k, t)
            for f in rd_[2*t:2*t+2]: f()
        if k in (26, 27, 28):
            a.wait(lg=("dr", k + 2, 4)); d_dma(k + 2 + DN)
    if not opt.get("hst"): S_(11)
    srd(a, 16, P_OUT, 2048 * 1280)
    OSC = opt.get('osc', '')
    a(f"v_add_u32 v{TA}, s29, v{L16}")
    RS = 96
    a.wait(vm="xr")
    for i in range(10):
        a(f"v_lshlrev_b32 v{RS+2*i}, 16, v{XR+i}")
        a(f"v_and_b32 v{RS+2*i+1}, 0xffff0000, v{XR+i}")
    for gq in range(1, 4):
        for t in range(5):
            a.lds(f"ds_write_b128 v{TA}, {vr(DA[t]+4*gq,4)} offset:{WSO[gq-1]+t*1024}", "rw")
    set_flag(a, FV, FWA, 6)
    if opt.get("tst"): S0_(1)
    for gq in range(1, 4):
        a(f"s_sub_u32 s30, s3, {gq}"); a("s_and_b32 s30, s30, 3"); a(f"s_mul_i32 s30, s30, {WSLOT}"); a(f"s_add_u32 s30, s30, {L_R1 + WSO[gq-1]}")
        a(f"v_add_u32 v{116+gq}, s30, v{L16}")
    for t in range(5):
        for i in range(2): a(f"v_pk_add_f32 {vr(RS+4*t+2*i,2)}, {vr(RS+4*t+2*i,2)}, {vr(DA[t]+2*i,2)}")
    poll_lds(a, FV, FAD, 6, "fl")
    if opt.get("tst"): S0_(2)
    for w in range(1, 4):
        for t in range(5):
            a.lds(f"ds_read_b128 {vr(16+20*w+4*t,4)}, v{116+w} offset:{t*1024}", ("rr", w))
    for w in range(1, 4):
        a.wait(lg=("rr", w))
        for i in range(10):
            a(f"v_pk_add_f32 {vr(RS+2*i,2)}, {vr(RS+2*i,2)}, {vr(16+20*w+2*i,2)}")
    for i in range(10):
        a(f"v_cvt_pk_bf16_f32 v{120+i}, v{RS+2*i}, v{RS+2*i+1}")
    if opt.get("tst"): S0_(3)
    a(f"buffer_store_dwordx4 {vr(120,4)}, v{OA}, s[16:19], s43 offen {OSC}")
    a(f"buffer_store_dwordx4 {vr(124,4)}, v{OA}, s[16:19], s43 offen offset:16 {OSC}")
    a(f"buffer_store_dwordx2 {vr(128,2)}, v{OA}, s[16:19], s43 offen offset:32 {OSC}")
    if st:
        a("s_waitcnt vmcnt(0)"); S_(9); st.flush(a, P_WS, 6, 20)
```

```python
from asmlib import *
import math, struct
def f32hex(x): return struct.unpack("<I", struct.pack("<f", x))[0]
WS_KV = 0x280000;  KV_BYTES = 64 * 3072
WS_FL = 0x2B0000;  FL_BYTES = 0x10000
WS_H  = 0x300000;  H_BYTES = 64 * 96 * 1024
WS_O  = 0x000000;  O_BYTES = 64 * 40 * 1024
FL_KV = 0; FL_H = 0x4000; FL_O = 0x8000
BIG = 0x40000000
L_FLAGA = 0; L_FLAGG = 16; L_CNTKV = 32; L_TAG = 36; L_KVOK = 40
L_XN = 256; XNT = 80 * 528
L_R1 = L_XN + 2 * XNT
KVSLOT = 12288
L_KV = 163840 - 4 * KVSLOT
L_WK = 110592; L_WV = L_WK + 26624
WSLOT = 6272
WSO = [0, 51200, 25600]
WMAP = lambda u: u % 3
DSLOT = 5120; DN = 3
L_RED = 256; L_MX = 161024
DS = lambda k: WSO[(k + 2) % 3]
QXO = 25600
LDS_TOTAL = 163840
QSCALE = (20 ** -0.5) * math.log2(math.e)
P_X, P_WQ, P_WK, P_WV, P_WO, P_BX, P_WG, P_WU, P_WD, P_OUT, P_DBG, P_WS = [64 + 2 * i for i in range(12)]
SPIN = 0x40000
LANE, L16, TA, TB, ZERO = 1, 2, 3, 4, 5
FAD, FWA, FV = 6, 7, 8
DUMMY = 10

def srd(a, d, p, nbytes, add=0):
    if add:
        a(f"s_add_u32 s{d}, s{p}, {add}"); a(f"s_addc_u32 s{d+1}, s{p+1}, 0")
    else:
        a(f"s_mov_b32 s{d}, s{p}"); a(f"s_mov_b32 s{d+1}, s{p+1}")
    a(f"s_mov_b32 s{d+2}, {nbytes}"); a(f"s_mov_b32 s{d+3}, 0x00020000")

def poll_lds(a, vF, vFaddr, need, tag, issue=True):
    ok = a.newlabel("pok"); lp = a.newlabel("plp"); sl = a.newlabel("psl")
    if issue: a.lds(f"ds_read_b32 v{vF}, v{vFaddr}", tag)
    a.wait(lg=tag)
    a(f"v_cmp_gt_u32 vcc, {need}, v{vF}")
    a("s_cmp_eq_u64 vcc, 0")
    a(f"s_cbranch_scc0 {sl}")
    a.label(ok)
    a.cold += [f"{sl}:", f"    s_mov_b32 s63, {SPIN}", f"{lp}:", "    s_sleep 1", f"    ds_read_b32 v{vF}, v{vFaddr}", "    s_waitcnt lgkmcnt(0)",
               "    s_sub_u32 s63, s63, 1", f"    s_cbranch_scc1 {ok}", f"    v_cmp_gt_u32 vcc, {need}, v{vF}", "    s_cmp_eq_u64 vcc, 0",
               f"    s_cbranch_scc0 {lp}", f"    s_branch {ok}"]

def set_flag(a, vtmp, vaddr, val, off=0):
    a("s_mov_b64 exec, 1")
    a(f"v_mov_b32 v{vtmp}, {val}")
    a.lds(f"ds_write_b32 v{vaddr}, v{vtmp}" + (f" offset:{off}" if off else ""), "fw")
    a("s_mov_b64 exec, -1")

def poll_global(a, vdst, n, vaddr, srdn, soffs, stag, sleep=6):
    ok = a.newlabel("gok"); lp = a.newlabel("glp")
    a(f"s_mov_b32 s63, {SPIN // 16}")
    a.label(lp)
    for i in range(n):
        a(f"buffer_load_dword v{vdst+i}, v{vaddr}, s[{srdn}:{srdn+3}], {soffs} offen offset:{i*1024} sc1")
    a("s_waitcnt vmcnt(0)")
    for i in range(n): a(f"v_xor_b32 v{vdst+i}, {stag}, v{vdst+i}")
    for i in range(1, n): a(f"v_or_b32 v{vdst}, v{vdst}, v{vdst+i}")
    a(f"v_cmp_ne_u32 vcc, 0, v{vdst}")
    a("s_cmp_eq_u64 vcc, 0")
    a(f"s_cbranch_scc1 {ok}")
    a(f"s_sleep {sleep}")
    a("s_sub_u32 s63, s63, 1")
    a(f"s_cbranch_scc0 {lp}")
    a.label(ok)
    a.vm = []

def get_tag(a, vT):
    ok = a.newlabel("tok"); lp = a.newlabel("tlp")
    a(f"s_mov_b32 s63, {SPIN}")
    a.label(lp)
    a(f"ds_read_b32 v{vT}, v{ZERO} offset:{L_TAG}")
    a("s_waitcnt lgkmcnt(0)")
    a(f"v_readfirstlane_b32 s62, v{vT}")
    a("s_cmp_lg_u32 s62, 0")
    a(f"s_cbranch_scc1 {ok}")
    a("s_sleep 1")
    a("s_sub_u32 s63, s63, 1")
    a(f"s_cbranch_scc0 {lp}")
    a.label(ok)
    a.lg = []

def warm(a, srdn, stride, rows_per_wave, width, col_expr, NSH, vt, st0, st1, lpr):
    a(f"s_and_b32 s{st0}, s4, {NSH-1}")
    a(f"s_lshl_b32 s{st0}, s{st0}, 2")
    a(f"s_add_u32 s{st0}, s{st0}, s3")
    a(f"s_mul_i32 s{st0}, s{st0}, {rows_per_wave*stride}")
    a(f"s_mul_i32 s{st1}, {col_expr[0]}, {col_expr[1]}")
    a(f"s_add_u32 s{st0}, s{st0}, s{st1}")
    rpi = 64 // lpr
    a(f"v_mul_u32_u24 v{vt+1}, {(512 + lpr - 1) // lpr}, v{LANE}")
    a(f"v_lshrrev_b32 v{vt+1}, 9, v{vt+1}")
    a(f"v_mul_u32_u24 v{vt}, {lpr}, v{vt+1}")
    a(f"v_sub_u32 v{vt}, v{LANE}, v{vt}")
    a(f"v_lshlrev_b32 v{vt}, 7, v{vt}")
    a(f"v_min_u32 v{vt}, {width-4}, v{vt}")
    a(f"v_min_u32 v{vt+1}, {min(rpi, rows_per_wave)-1}, v{vt+1}")
    a(f"v_mul_u32_u24 v{vt+1}, {stride}, v{vt+1}")
    a(f"v_add_u32 v{vt}, v{vt}, v{vt+1}")
    n = (rows_per_wave + rpi - 1) // rpi
    for i in range(n):
        for sd in srdn:
            a.vmem(f"buffer_load_dword v{DUMMY}, v{vt}, s[{sd}:{sd+3}], s{st0} offen", "warm")
        if i + 1 < n:
            step = rpi if (i + 2) * rpi <= rows_per_wave else rows_per_wave - rpi - rpi * i
            a(f"s_add_u32 s{st0}, s{st0}, {step*stride}")

def warm_lane(a, dst, tmp, stride, rows, width, lpr):
    a(f"v_mul_u32_u24 v{tmp}, {(512 + lpr - 1) // lpr}, v{LANE}")
    a(f"v_lshrrev_b32 v{tmp}, 9, v{tmp}")
    a(f"v_mul_u32_u24 v{dst}, {lpr}, v{tmp}")
    a(f"v_sub_u32 v{dst}, v{LANE}, v{dst}")
    a(f"v_lshlrev_b32 v{dst}, 7, v{dst}")
    a(f"v_min_u32 v{dst}, {width-4}, v{dst}")
    a(f"v_min_u32 v{tmp}, {rows-1}, v{tmp}")
    a(f"v_mul_u32_u24 v{tmp}, {stride}, v{tmp}")
    a(f"v_add_u32 v{dst}, v{dst}, v{tmp}")

def share(a, sd, NSH):
    a(f"s_and_b32 s{sd}, s4, {NSH-1}")
    a(f"s_lshl_b32 s{sd}, s{sd}, 2")
    a(f"s_add_u32 s{sd}, s{sd}, s3")

def tag_check(a, vT):
    ok = a.newlabel("tok"); lp = a.newlabel("tlp")
    a(f"s_mov_b32 s63, {SPIN // 16}")
    a.label(lp)
    a(f"v_readfirstlane_b32 s62, v{vT}")
    a("s_cmp_lg_u32 s62, 0")
    a(f"s_cbranch_scc1 {ok}")
    a("s_sleep 4")
    a(f"buffer_load_dword v{vT}, v{ZERO}, s[88:91], 0 offen sc1")
    a("s_waitcnt vmcnt(0)")
    a("s_sub_u32 s63, s63, 1")
    a(f"s_cbranch_scc0 {lp}")
    a.label(ok)

def ln_finish(a, SUM, SQ):
    a(f"v_mul_f32 v{SUM}, 0x{f32hex(1.0/640):08x}, v{SUM}")
    a(f"v_mul_f32 v{SQ}, 0x{f32hex(1.0/640):08x}, v{SQ}")
    a(f"v_fma_f32 v{SQ}, -v{SUM}, v{SUM}, v{SQ}")
    a(f"v_max_f32 v{SQ}, 0, v{SQ}")
    a(f"v_add_f32 v{SQ}, 0x{f32hex(1e-5):08x}, v{SQ}")
    a(f"v_rsq_f32 v{SQ}, v{SQ}")
    a("s_nop 0")
    a(f"v_mul_f32 v{SUM}, v{SUM}, v{SQ}")
    a(f"v_mov_b32 v{SQ+1}, v{SQ}")
    a(f"v_sub_f32 v{SUM}, 0, v{SUM}")
    a(f"v_mov_b32 v{SUM+1}, v{SUM}")

def ln_stats(a, X, U, n, SUM, SQ, tagf, hook=None):
    for i in range(n):
        a.wait(vm=tagf(i))
        if hook: hook(i)
        for d in range(4):
            a(f"v_lshlrev_b32 v{U+8*i+2*d}, 16, v{X+4*i+d}")
            a(f"v_and_b32 v{U+8*i+2*d+1}, 0xffff0000, v{X+4*i+d}")
        for d in range(4):
            p = vr(U + 8 * i + 2 * d, 2)
            if i == 0 and d == 0:
                a(f"v_pk_mul_f32 {vr(SQ,2)}, {p}, {p}")
                a(f"v_pk_add_f32 {vr(SUM,2)}, {p}, {vr(U+2,2)}")
            else:
                if not (i == 0 and d == 1): a(f"v_pk_add_f32 {vr(SUM,2)}, {vr(SUM,2)}, {p}")
                a(f"v_pk_fma_f32 {vr(SQ,2)}, {p}, {p}, {vr(SQ,2)}")
    a(f"v_add_f32 v{SUM}, v{SUM}, v{SUM+1}")
    a(f"v_add_f32 v{SQ}, v{SQ}, v{SQ+1}")
    a("s_nop 0")

def dpp_sum(a, regs, ctls):
    for ctl in ctls:
        for r in regs: a(f"v_add_f32_dpp v{r}, v{r}, v{r} {ctl} row_mask:0xf bank_mask:0xf")
        a("s_nop 0")

def ln_group(a, idx_expr_sgpr, sgl, sld, vgl, vld):
    a(f"s_cmp_ge_u32 s{idx_expr_sgpr}, s5")
    a(f"s_addc_u32 s{sld}, s{idx_expr_sgpr}, 0")
    a(f"s_lshl_b32 s{sgl}, s4, 3")
    a(f"s_add_u32 s{sgl}, s{sgl}, s{sld}")
    a(f"s_mul_i32 s{sgl}, s{sgl}, 10240")
    a(f"v_lshrrev_b32 v{TB}, 3, v{LANE}")
    a(f"v_mul_u32_u24 v{vgl}, 1280, v{TB}")
    a(f"v_and_b32 v{TA}, 7, v{LANE}")
    a(f"v_lshl_add_u32 v{vgl}, v{TA}, 4, v{vgl}")
    a(f"v_mul_u32_u24 v{vld}, 528, v{TA}")
    a(f"v_lshl_add_u32 v{vld}, v{TB}, 4, v{vld}")
    a(f"s_and_b32 s63, s{sld}, 3")
    a("s_lshl_b32 s63, s63, 7")
    a(f"s_lshr_b32 s{sld}, s{sld}, 2")
    a(f"s_mul_i32 s{sld}, s{sld}, {XNT}")
    a(f"s_add_u32 s{sld}, s{sld}, s63")
    a(f"s_add_u32 s{sld}, s{sld}, {L_XN}")
    a(f"v_add_u32 v{vld}, s{sld}, v{vld}")

def ln_write(a, X, U, SUM, SQ, vld):
    for i in range(10):
        for d in range(4):
            pp = vr(U + 8 * i + 2 * d, 2)
            a(f"v_pk_fma_f32 {pp}, {pp}, {vr(SQ,2)}, {vr(SUM,2)}")
        for d in range(4):
            a(f"v_cvt_pk_bf16_f32 v{X+4*i+d}, v{U+8*i+2*d}, v{U+8*i+2*d+1}")
        a.lds(f"ds_write_b128 v{vld}, {vr(X+4*i,4)} offset:{i*4224}", "xw")

def wq_offsets(a, WQO):
    for i in range(5):
        a(f"v_add_u32 v{TA}, {64*i}, v{LANE}")
        a(f"v_mul_u32_u24 v{TB}, 205, v{TA}")
        a(f"v_lshrrev_b32 v{TB}, 11, v{TB}")
        a(f"v_mul_u32_u24 v{WQO+i}, 10, v{TB}")
        a(f"v_sub_u32 v{TA}, v{TA}, v{WQO+i}")
        a(f"v_lshlrev_b32 v{TA}, 4, v{TA}")
        if 0 < i < 4: a(f"v_subrev_u32 v{TA}, {1024*i}, v{TA}")
        a(f"v_mul_u32_u24 v{WQO+i}, 1280, v{TB}")
        a(f"v_add_u32 v{WQO+i}, v{WQO+i}, v{TA}")
SLOT = lambda g: g % 15
L_WQF = 44

def gen(name, st=None, opt=None):
    opt = dict(dict(prioA=2, prioG=0, pattern=4, endstamp=False, xmap="16x2", axf=1, alnp=3, gfp=1, w0=0, wwarm="c", gp=1, pat="MeeeMeeceececeMeeccM|eeeceecc", hst=0), **(opt or {}))
    a = Asm()
    S_ = (lambda i, cyc=False: st(a, i, cyc)) if st else (lambda i, cyc=False: None)
    a.raw(f".globl {name}\n.p2align 8\n.type {name},@function")
    a.label(name)
    a("s_cmp_ge_u32 s2, 256")
    a("s_cbranch_scc1 L_end")
    if st: st.init(a); S_(0)
    a("s_load_dwordx16 s[64:79], s[0:1], 0")
    a("s_load_dwordx8 s[80:87], s[0:1], 64")
    a("v_lshrrev_b32 v3, 6, v0")
    a(f"v_and_b32 v{LANE}, 63, v0")
    a("v_readfirstlane_b32 s6, v3")
    a(f"v_lshlrev_b32 v{L16}, 4, v{LANE}")
    a(f"v_mov_b32 v{ZERO}, 0")
    if opt["xmap"] == "8x4":
        a("s_bfe_u32 s4, s2, 0x20001"); a("s_lshl_b32 s4, s4, 3"); a("s_lshr_b32 s7, s2, 5"); a("s_add_u32 s4, s4, s7")
        a("s_and_b32 s5, s2, 1"); a("s_lshl_b32 s5, s5, 2"); a("s_bfe_u32 s7, s2, 0x20003"); a("s_add_u32 s5, s5, s7")
        NSH = 8; NSD = 8
    elif opt["xmap"] == "4x8":
        a("s_and_b32 s4, s2, 7"); a("s_lshl_b32 s4, s4, 2"); a("s_lshr_b32 s7, s2, 6"); a("s_add_u32 s4, s4, s7")
        a("s_bfe_u32 s5, s2, 0x30003")
        NSH = 4; NSD = 4
    elif opt["xmap"] == "16x2":
        a("s_bfe_u32 s4, s2, 0x10002"); a("s_lshl_b32 s4, s4, 4"); a("s_lshr_b32 s7, s2, 4"); a("s_add_u32 s4, s4, s7")
        a("s_and_b32 s5, s2, 3"); a("s_lshl_b32 s5, s5, 1"); a("s_bfe_u32 s7, s2, 0x10003"); a("s_add_u32 s5, s5, s7")
        NSH = 16; NSD = 16
    a("s_and_b32 s3, s6, 3")
    a(f"v_lshlrev_b32 v{FWA}, 2, v{LANE}")
    a("s_cmp_lg_u32 s6, 0")
    a("s_cbranch_scc1 L_nozero")
    a(f"ds_write_b32 v{FWA}, v{ZERO}")
    a.label("L_nozero")
    a("s_waitcnt lgkmcnt(0)")
    srd(a, 8, P_X, 2048 * 1280)
    srd(a, 88, P_DBG, 256)
    a("s_cmp_ge_u32 s6, 4")
    a("s_cbranch_scc1 L_g_role")
    ln_group(a, 3, 7, 24, 10, 11)
    a("s_or_b32 s25, s2, s6")
    a("s_cmp_lg_u32 s25, 0")
    a("s_cbranch_scc1 L_notagpub")
    a("s_memrealtime s[60:61]")
    a("s_waitcnt lgkmcnt(0)")
    a("s_or_b32 s60, s60, 1")
    a("v_mov_b32 v8, s60")
    a("s_mov_b64 exec, 1")
    a(f"buffer_store_dword v8, v{ZERO}, s[88:91], 0 offen sc1")
    a("s_mov_b64 exec, -1")
    a.label("L_notagpub")
    if not opt.get("axf"): a("s_barrier")
    for i in range(10):
        a.vmem(f"buffer_load_dwordx4 {vr(16+4*i,4)}, v10, s[8:11], s7 offen offset:{128*i}", ("x", i))
    if opt.get("axf"): a("s_barrier")
    if opt.get("alnp"): a(f"s_setprio {opt['alnp']}")
    if opt.get("tlb"):
        a(f"v_lshlrev_b32 v9, {opt.get('tlbsh', 21)}, v{LANE}")
        for i, (p, n) in enumerate(((P_WS, 0x900000), (P_OUT, 2048 * 1280), (P_WD, 1536 * 1280), (P_WO, 640 * 1280), (P_WG, 640 * 3072), (P_WU, 640 * 3072))):
            srd(a, 92, p, n) if i % 2 == 0 else srd(a, 96, p, n)
            a.vmem(f"buffer_load_dword v8, v9, s[{92 + 4*(i%2)}:{95 + 4*(i%2)}], 0 offen", "tlb")
    if opt.get("ipf"):
        a("s_getpc_b64 s[60:61]")
        a.label("L_pc")
        a("s_lshr_b32 s25, s2, 3")
        a("s_lshl_b32 s25, s25, 2")
        a("s_add_u32 s25, s25, s3")
        a("s_lshl_b32 s25, s25, 9")
        a(f"v_and_b32 v8, 3, v{LANE}")
        a("v_lshlrev_b32 v8, 7, v8")
        a("v_add_u32 v8, s25, v8")
        a("v_min_u32 v8, L_end-L_pc, v8")
        a("v_mov_b32 v13, s61")
        a("v_add_co_u32 v12, vcc, s60, v8")
        a("s_nop 1")
        a("v_addc_co_u32 v13, vcc, 0, v13, vcc")
        a.vmem("global_load_dword v8, v[12:13], off", "ipf")
    vm_a = list(a.vm)
    a("s_branch L_a_role")
    a.label("L_g_role")
    a.vm = []; a.lg = []
    gen_g(a, S_, st, opt, NSH)
    a("s_endpgm")
    a.emit_cold()
    a.label("L_a_role")
    a.vm = vm_a; a.lg = []
    gen_a(a, S_, st, opt, NSH)
    a.emit_cold()
    a.label("L_end")
    a("s_endpgm")
    txt = a.text()
    if opt.get("gwrap"):
        out = []; on = False; low = False
        for l in txt.split("\n"):
            if "@@G_MAIN_BEGIN" in l: on = True; out.append(l); out.append("    s_setprio 3"); continue
            if "@@G_MAIN_END" in l:
                on = False
                if low: out.append("    s_setprio 3"); low = False
            t = l.strip()
            if on:
                if t.startswith("s_setprio"): continue
                if t.startswith("v_mfma"):
                    if not low:
                        out.append(f"    s_setprio {opt.get('glow', 0)}"); low = True
                        if opt.get("gnop") is not None: out.append(f"    s_nop {opt['gnop']}")
                elif low and t and not t.startswith(";"):
                    out.append(f"    s_setprio {opt.get('ghigh', 3)}"); low = False
            out.append(l)
        txt = "\n".join(out)
    if opt.get("selsc"):
        out = []
        for l in txt.split("\n"):
            t = l.strip()
            for srd_, fl in opt["selsc"].items():
                if t.startswith("buffer_load_dwordx4") and t.endswith(" lds") and srd_ in t and " sc1" not in t:
                    l = l[:-4] + f" {fl} lds"
            out.append(l)
        txt = "\n".join(out)
    if opt.get("allsc"):
        out = []
        for l in txt.split("\n"):
            t = l.strip()
            if t.startswith("buffer_load_dwordx4") and " sc1" not in t and "s[8:11]" not in t:
                l = (l[:-4] + f" {opt['allsc']} lds") if t.endswith(" lds") else l + f" {opt['allsc']}"
            out.append(l)
        txt = "\n".join(out)
    if opt.get("gdrop"):
        out = []; on = False
        for l in txt.split("\n"):
            if "@@G_MAIN_BEGIN" in l: on = True
            if "@@G_MAIN_END" in l: on = False
            t = l.strip()
            if on and "mfma" in opt["gdrop"] and t.startswith("v_mfma"): continue
            if on and "lds" in opt["gdrop"] and (t.startswith("ds_read_b64_tr") or t.startswith("ds_read_b128")): continue
            if on and "dma" in opt["gdrop"] and t.startswith("buffer_load_dwordx4"): continue
            out.append(l)
        txt = "\n".join(out)
    return txt, kdesc(name, 256, 102)

def gen_a(a, S0_, st, opt, NSH):
    QS = {5: 0, 7: 1, 16: 2, 19: 3, 28: 6, 31: 7} if opt.get("qst") else {}
    S_ = (lambda i, cyc=False: S0_(i, cyc) if (not opt.get("qst") or i in (4, 5, 8, 9, 10, 11)) else None)
    X = 16; X1 = 56; U = 96; SUM, SQ = 12, 14; TAG = 8; WQA = 7
    WQO = 216
    srd(a, 12, P_WQ, 640 * 1280)
    wq_offsets(a, WQO)
    a("s_lshl_b32 s24, s5, 2")
    a("s_add_u32 s24, s24, s3")
    a("s_mul_i32 s25, s5, 160")
    a("s_mul_i32 s26, s3, 40960")
    a("s_add_u32 s25, s25, s26")
    a("s_mul_i32 s26, s3, 5120")
    a(f"s_add_u32 s26, s26, {L_R1}")
    def wq_one(g4, i, tag):
        def f():
            a(f"s_add_u32 m0, s26, {SLOT(g4)*5120 + (4096 if i == 4 else 0)}")
            a(f"s_add_u32 s27, s25, {g4*40960}")
            ins = f"buffer_load_dwordx4 v{WQO+i}, s[12:15], s27 offen" + (f" offset:{i*1024}" if i < 4 else "") + " lds"
            if tag: a.vmem(ins, tag)
            else:
                l = a.newlabel("g4"); a("s_cmp_lg_u32 s3, 0"); a(f"s_cbranch_scc1 {l}"); a(ins); a.label(l)
        return f
    srd(a, 16, P_WG, 640 * 3072)
    srd(a, 20, P_WU, 640 * 3072)
    late = [wq_one(4, i, None) for i in range(5)] + [wq_one(0, i, "p1") for i in range(5)]
    if not opt.get("nowarm"):
        warm_lane(a, 226, TA, 1280, 640 // NSH // 4, 160, 2)
        warm_lane(a, 227, TA, 3072, max(opt["w0"] // NSH // 4, 1), 384, 3)
        share(a, 32, NSH)
        a(f"s_mul_i32 s33, s32, {opt['w0'] // NSH // 4 * 3072}")
        a(f"s_mul_i32 s32, s32, {640 // NSH // 4 * 1280}")
        a("s_mul_i32 s34, s5, 160"); a("s_add_u32 s32, s32, s34")
        a("s_mul_i32 s34, s5, 384"); a("s_add_u32 s33, s33, s34")
        late = [lambda: a.vmem(f"buffer_load_dword v{DUMMY}, v226, s[12:15], s32 offen", "warm")] + late
        if opt["w0"]: late += [lambda: a.vmem(f"buffer_load_dword v{DUMMY}, v227, s[16:19], s33 offen", "warm"),
                 lambda: a.vmem(f"buffer_load_dword v{DUMMY}, v227, s[20:23], s33 offen", "warm")]
    XA0, XA1, FWQ, NEED, FG, F8 = 221, 222, 223, 9, 224, 225
    a(f"v_and_b32 v{TA}, 7, v{LANE}")
    a(f"v_lshlrev_b32 v{F8}, 2, v{TA}")
    a(f"v_and_b32 v{FAD}, 12, v{F8}")
    a(f"v_add_u32 v{FG}, {L_FLAGG}, v{FAD}")
    a(f"v_lshrrev_b32 v{TB}, 5, v{LANE}")
    a(f"v_bfe_u32 v{WQA}, v{LANE}, 2, 2")
    a(f"v_lshl_add_u32 v{WQA}, v{TB}, 3, v{WQA}")
    a(f"v_mul_u32_u24 v{WQA}, 160, v{WQA}")
    a(f"v_mul_u32_u24 v{XA0}, 528, v{TB}")
    a(f"v_and_b32 v{TB}, 1, v{LANE}")
    a(f"v_lshlrev_b32 v{TB}, 4, v{TB}")
    a(f"v_bfe_u32 v{TA}, v{LANE}, 1, 1")
    a(f"v_lshl_add_u32 v{TB}, v{TA}, 3, v{TB}")
    a(f"v_and_b32 v{TA}, 16, v{LANE}")
    a(f"v_cmp_eq_u32 vcc, 0, v{TA}")
    a(f"v_mov_b32 v{TA}, 32")
    a("s_mul_i32 s30, s3, 40")
    a(f"s_add_u32 s30, s30, {L_R1}")
    a(f"v_cndmask_b32 v{TB}, v{TA}, v{TB}, vcc")
    a(f"v_add3_u32 v{WQA}, v{WQA}, v{TB}, s30")
    a(f"v_and_b32 v{TA}, 31, v{LANE}")
    a(f"v_lshl_add_u32 v{XA0}, v{TA}, 4, v{XA0}")
    a(f"v_add_u32 v{XA0}, {L_XN}, v{XA0}")
    a(f"v_add_u32 v{XA1}, {XNT}, v{XA0}")
    a("s_lshl_b32 s30, s3, 2")
    a(f"v_mov_b32 v{FWQ}, s30")
    WF = lambda k: 176 + 4 * k if k < 20 else 16 + 4 * (k - 20)
    def wq_read(k0, n):
        for k in range(k0, k0 + n):
            for hf in range(2):
                off = SLOT(k//2)*5120+(k%2)*2560+hf*640
                a.lds(f"ds_read_b64_tr_b16 {vr(WF(k)+2*hf,2)}, v{WQA if off < 40960 else 15} offset:{off % 40960}", ("wr", k))
    S_(1)
    a("s_add_u32 s42, s3, 4")
    ln_group(a, 42, 43, 42, 228, 229)
    def x1ld(i):
        def f():
            l = a.newlabel("x1"); a("s_cmp_eq_u32 s3, 3"); a(f"s_cbranch_scc1 {l}")
            a.vmem(f"buffer_load_dwordx4 {vr(X1+4*i,4)}, v228, s[8:11], s43 offen offset:{128*i}", ("x1", i)); a.label(l)
        return f
    def hk(i):
        if i == 0: S_(2)
        if i == 9: a.sprinkle([x1ld(j) for j in range(10)] + late, opt.get("lnev", 4))
    ln_stats(a, X, U, 10, SUM, SQ, lambda i: ("x", i), hk)
    dpp_sum(a, [SUM, SQ], ("quad_perm:[1,0,3,2]", "quad_perm:[2,3,0,1]", "row_half_mirror"))
    ln_finish(a, SUM, SQ)
    ln_write(a, X, U, SUM, SQ, 11)
    a.flush_pend()
    a.vmem(f"buffer_load_dword v{TAG}, v{ZERO}, s[88:91], 0 offen sc1", "tag")
    a("s_cmp_eq_u32 s3, 3")
    a("s_cbranch_scc1 L_a_nop1")
    ln_stats(a, X1, U, 10, SUM, SQ, lambda i: ("x1", i))
    dpp_sum(a, [SUM, SQ], ("quad_perm:[1,0,3,2]", "quad_perm:[2,3,0,1]", "row_half_mirror"))
    ln_finish(a, SUM, SQ)
    ln_write(a, X1, U, SUM, SQ, 229)
    a.label("L_a_nop1")
    a("s_waitcnt vmcnt(0)"); a.vm = []
    set_flag(a, TA, FWQ, 3)
    a(f"v_mov_b32 v152, v{XA0}"); a(f"v_mov_b32 v153, v{XA1}"); a(f"v_mov_b32 v154, v{FWQ}")
    XA0, XA1, FWQ = 152, 153, 154
    S_(3)
    poll_lds(a, TB, FAD, 3, "fl")
    wq_read(0, 10)
    set_flag(a, TA, FWQ, 4)
    a(f"v_mov_b32 v14, v{FG}")
    a(f"v_add_u32 v15, 40960, v{WQA}")
    QACC = [120, 136]; QF = 96; QD = 3
    a(f"s_setprio {opt['prioA']}")
    srd(a, 16, P_WS, KV_BYTES, WS_KV)
    srd(a, 20, P_WS, O_BYTES, WS_O)
    srd(a, 56, P_WS, FL_BYTES, WS_FL)
    poll_lds(a, TB, FG, 1, "fl")
    S_(4)
    a("s_lshl_b32 s36, s4, 1")
    a("s_mul_i32 s36, s36, 40960")
    a("s_lshr_b32 s37, s24, 3")
    a("s_mul_i32 s37, s37, 10240")
    a("s_add_u32 s36, s36, s37")
    a("s_and_b32 s37, s24, 7")
    a("s_lshl_b32 s38, s37, 10")
    a("s_add_u32 s38, s38, s36")
    a("s_lshr_b32 s39, s37, 1")
    a("s_lshl_b32 s39, s39, 9")
    a("s_and_b32 s37, s37, 1")
    a("s_lshl_b32 s37, s37, 3")
    a("s_add_u32 s39, s39, s37")
    a("s_add_u32 s39, s39, s36")
    a("s_add_u32 s39, s39, 8192")
    a("s_add_u32 s40, s38, 40960")
    a("s_add_u32 s41, s39, 40960")
    def qreads(ks):
        b = QF + (ks % QD) * 8
        a.lds(f"ds_read_b128 {vr(b,4)}, v{XA0} offset:{ks*1056}", ("qa", ks))
        a.lds(f"ds_read_b128 {vr(b+4,4)}, v{XA1} offset:{ks*1056}", ("qa", ks))
    BK2, BV, MX, FG2 = 9, 10, 11, 12
    RA = [13, 14, 15]
    QA = [16 + 4 * i for i in range(8)]; QB = [48 + 2 * i for i in range(8)]
    O = [156 + 12 * i for i in range(8)]
    S = [64, 80]; P = [96, 104]
    K1f = [112, 116, 120]; K2f = [124, 126, 128]; Vf = [[130, 134], [138, 142], [146, 150]]
    BVL = MX
    def kld(buf, so, tag):
        return [lambda: a.vmem(f"buffer_load_dwordx4 {vr(K1f[buf],4)}, v{L16}, s[16:19], {so} offen sc1", tag),
                lambda: a.vmem(f"buffer_load_dwordx2 {vr(K2f[buf],2)}, v{BK2}, s[16:19], {so} offen offset:1024 sc1", tag)]
    def vld(buf, so, tag):
        return [lambda: a.vmem(f"buffer_load_dwordx4 {vr(Vf[buf][0],4)}, v{BVL}, s[16:19], {so} offen offset:1536 sc1", tag),
                lambda: a.vmem(f"buffer_load_dwordx4 {vr(Vf[buf][1],4)}, v{BVL}, s[16:19], {so} offen offset:2304 sc1", tag)]
    def adv():
        return [lambda: (a(f"s_add_u32 s28, s28, {KVSLOT}"), a(f"s_sub_u32 s27, s28, {KV_BYTES}")),
                lambda: (a(f"s_cmp_ge_u32 s28, {KV_BYTES}"), a("s_cselect_b32 s28, s27, s28"))]
    def kv_first():
        for f in kld(0, "s28", ("k", 0)) + vld(0, "s28", ("v", 0)) + adv() + kld(1, "s28", ("k", 1)) + vld(1, "s28", ("v", 1)) + adv(): f()
    NEED = 13
    a("s_bfe_u32 s28, s2, 0x40003")
    a(f"s_mul_i32 s28, s28, {KVSLOT}")
    a("s_mul_i32 s33, s3, 3072")
    a("s_add_u32 s28, s28, s33")
    a("s_lshl_b32 s43, s3, 6")
    a("s_mov_b32 s35, 0")
    a(f"v_lshlrev_b32 v{BK2}, 3, v{LANE}")
    a(f"v_and_b32 v{TA}, 31, v{LANE}")
    a(f"v_min_u32 v{TA}, 21, v{TA}")
    a(f"v_lshlrev_b32 v{TA}, 4, v{TA}")
    a(f"v_lshrrev_b32 v{TB}, 5, v{LANE}")
    a(f"v_mul_u32_u24 v{TB}, 384, v{TB}")
    a(f"v_add_u32 v{MX}, v{TA}, v{TB}")
    a(f"v_lshrrev_b32 v{TA}, 2, v{LANE}")
    a(f"v_lshlrev_b32 v{TA}, 8, v{TA}")
    a(f"v_and_b32 v{TB}, 3, v{LANE}")
    a(f"v_lshl_add_u32 v{NEED}, v{TB}, 4, v{TA}")
    P3 = opt.get('p3r', 18)
    P2R = opt.get('p2r', 8)
    RD = {P2R + j: (10 + 3 * j, 3 if j < 6 else 2) for j in range(7)}
    RD.update({P3 + j: (30 + 2 * j, 2) for j in range(5)})
    for ks in range(QD - 1): qreads(ks)
    CHK = opt.get("kvchk", ()); CLD = opt.get("kvld", (32,))
    for ks in range(40):
        if ks in QS and QS[ks]: S0_(QS[ks])
        if ks + QD - 1 < 40: qreads(ks + QD - 1)
        if ks == 24:
            tag_check(a, TAG)
        P3R = opt.get('p3r', 18)
        if ks in (P2R - 1, P3R - 1): a.lds(f"ds_read_b32 v{TB}, v14", "fl")
        if ks == P2R: poll_lds(a, TB, 14, 3, "fl", issue=False)
        if ks == P3R: poll_lds(a, TB, 14, 4, "fl", issue=False)
        if ks in RD: wq_read(*RD[ks])
        if ks == opt.get("p3r", 18) + 4: set_flag(a, TA, FWQ, 8)
        if ks == 30: a.lds(f"ds_read_b32 v{TB}, v{FAD}", "fl")
        if ks == 32: poll_lds(a, TB, FAD, 8, "fl", issue=False)
        if ks in CLD:
            a(f"buffer_load_dword v{TAG}, v{NEED}, s[56:59], s43 offen sc1")
        if ks in CHK:
            l = a.newlabel("kvc"); r = a.newlabel("kvr")
            a("s_waitcnt vmcnt(0)")
            a(f"v_cmp_ne_u32 vcc, s62, v{TAG}")
            a("s_cmp_eq_u32 s35, 0")
            a("s_cselect_b64 vcc, vcc, -1")
            a("s_cmp_eq_u64 vcc, 0")
            a(f"s_cbranch_scc0 {r}")
            sv = list(a.vm); kv_first(); a.vm = sv
            a("s_mov_b32 s35, 1")
            a.label(r)
        a.wait(lg=[("qa", ks), ("wr", ks)])
        b = QF + (ks % QD) * 8
        a(f"v_mfma_f32_32x32x16_bf16 {vr(QACC[0],16)}, {vr(WF(ks),4)}, {vr(b,4)}, {vr(QACC[0],16) if ks else 0}")
        if ks >= 20:
            for i in range(5): a(f"v_mov_b32 v{O[0]+5*(ks-20)+i}, 0")
        a(f"v_mfma_f32_32x32x16_bf16 {vr(QACC[1],16)}, {vr(WF(ks),4)}, {vr(b+4,4)}, {vr(QACC[1],16) if ks else 0}")
    S_(5)
    a(f"v_mov_b32 v{FWA}, s30")
    if opt.get("aoff"):
        set_flag(a, TA, FWA, 12); st.flush(a, P_WS, 6, 20); a("s_endpgm")
    a(f"v_lshlrev_b32 v{BK2}, 3, v{LANE}") if False else None
    def owner(i2, sd):
        a(f"s_add_u32 s{sd}, s3, {1+i2}"); a(f"s_and_b32 s{sd}, s{sd}, 3")
    a(f"v_mov_b32 v{BV}, v{NEED}")
    a(f"v_cmp_gt_u32 vcc, 32, v{LANE}")
    a(f"v_mov_b32 v{TA}, 0x{f32hex(QSCALE):08x}")
    a(f"s_mov_b32 s31, 0x{f32hex(QSCALE):08x}")
    a(f"s_mul_i32 s29, s3, {WSLOT}")
    a(f"v_cndmask_b32 v155, 0, v{TA}, vcc")
    a("s_mov_b64 s[60:61], vcc")
    a(f"s_add_u32 s29, s29, {L_R1 + QXO}")
    a(f"v_add_u32 v{FG2}, s29, v{L16}")
    a(f"v_add_u32 v{TB}, s29, v{BK2}")
    for i2 in range(3):
        owner(i2, 32); a(f"s_mul_i32 s32, s32, {WSLOT}"); a(f"s_add_u32 s32, s32, {L_R1 + QXO}")
        a(f"v_add_u32 v{RA[i2]}, s32, v{L16}")
    for t in range(2):
        for i in range(8): a(f"v_mul_f32 v{QACC[t]+i}, s31, v{QACC[t]+i}")
        for i in range(8, 12): a(f"v_mul_f32 v{QACC[t]+i}, v155, v{QACC[t]+i}")
        for i in range(4): a(f"v_cvt_pk_bf16_f32 v{QA[6+t]+i}, v{QACC[t]+2*i}, v{QACC[t]+2*i+1}")
        for i in range(2): a(f"v_cvt_pk_bf16_f32 v{QB[6+t]+i}, v{QACC[t]+8+2*i}, v{QACC[t]+9+2*i}")
        a.lds(f"ds_write_b128 v{FG2}, {vr(QA[6+t],4)} offset:{t*1536}", "qw")
        a.lds(f"ds_write_b64 v{TB}, {vr(QB[6+t],2)} offset:{t*1536+1024}", "qw")
    set_flag(a, TA, FWA, 9)
    a("s_cmp_eq_u32 s35, 1")
    a("s_cbranch_scc1 L_a_kvld")
    a("s_waitcnt vmcnt(0)")
    a(f"v_cmp_ne_u32 vcc, s62, v{TAG}")
    a("s_cmp_eq_u64 vcc, 0")
    a("s_cbranch_scc0 L_a_kvld")
    kv_first()
    a("s_mov_b32 s35, 1")
    a.label("L_a_kvld")
    a.vm = []
    poll_lds(a, TA, FAD, 9, "fl")
    for i2 in range(3):
        for t in range(2):
            a.lds(f"ds_read_b128 {vr(QA[2*i2+t],4)}, v{RA[i2]} offset:{t*1536}", "qr")
        a(f"v_sub_u32 v{TA}, v{RA[i2]}, v{BK2}")
        for t in range(2):
            a.lds(f"ds_read_b64 {vr(QB[2*i2+t],2)}, v{TA} offset:{t*1536+1024}", "qr")
    set_flag(a, TA, FWA, 10)
    a("s_cmp_eq_u32 s35, 1")
    a("s_cbranch_scc1 L_a_kvgo")
    poll_global(a, TAG, 1, BV, 56, "s43", "s62", sleep=4)
    kv_first()
    a.label("L_a_kvgo")
    a.vm = [("k", 0)] * 2 + [("v", 0)] * 2 + [("k", 1)] * 2 + [("v", 1)] * 2
    S_(6)
    srd(a, 92, P_WD, 1536 * 1280); srd(a, 96, P_WO, 640 * 1280)
    warm_lane(a, 154, TA, 1280, 512 // NSH // 4, 320, 3)
    share(a, 32, NSH)
    a("s_and_b32 s37, s5, 3"); a("s_mul_i32 s37, s37, 320")
    a(f"s_mul_i32 s33, s32, {320 // NSH // 4 * 1280}"); a("s_add_u32 s33, s33, s37")
    a(f"s_mul_i32 s35, s32, {512 // NSH // 4 * 1280}"); a("s_add_u32 s35, s35, s37")
    srd(a, 12, P_WS, H_BYTES, WS_H)
    a("s_mul_i32 s25, s4, 196608"); a("s_mul_i32 s26, s5, 12288"); a("s_add_u32 s25, s25, s26")
    a("s_mul_i32 s26, s3, 3072"); a("s_add_u32 s25, s25, s26"); a("s_add_u32 s26, s25, 98304")
    def cold_blk(it, lines):
        def f():
            l = a.newlabel("cw"); r = a.newlabel("cr")
            a(f"s_cmp_eq_u32 s34, {it}"); a(f"s_cbranch_scc1 {l}"); a.label(r)
            a.cold += [f"{l}:"] + ["    " + x for x in lines] + [f"    s_branch {r}"]
        return f
    sr_ = K1f[2]
    SENT = [f"v_mov_b32 v{sr_+i}, -1" for i in range(4)] + [f"buffer_store_dwordx4 {vr(sr_,4)}, v{L16}, s[20:23], s{38+2*t} offen sc1" for t in range(2)] + \
           ["s_mov_b64 exec, s[60:61]"] + [f"buffer_store_dwordx2 {vr(sr_,2)}, v{L16}, s[20:23], s{39+2*t} offen sc1" for t in range(2)] + ["s_mov_b64 exec, -1"]
    if opt.get("hsent"): SENT += [f"buffer_store_dwordx4 {vr(sr_,4)}, v{L16}, s[12:15], s{25+b} offen offset:{t*1024} sc1" for b in range(2) for t in range(3)]
    SFLG = ["s_waitcnt vmcnt(8)", "s_mov_b64 exec, 1", f"v_mov_b32 v{TA}, 12", f"ds_write_b32 v{FWA}, v{TA}", "s_mov_b64 exec, -1"]
    def cold_warm(it, which):
        def f():
            l = a.newlabel("cw"); r = a.newlabel("cr")
            a(f"s_cmp_eq_u32 s34, {it}"); a(f"s_cbranch_scc1 {l}"); a.label(r)
            if which == "d": a.cold += [f"{l}:", "    buffer_load_dword v155, v154, s[92:95], s35 offen", f"    s_add_u32 s35, s35, {512*1280}", f"    s_branch {r}"]
            else: a.cold += [f"{l}:", "    buffer_load_dword v155, v154, s[96:99], s33 offen", f"    s_add_u32 s33, s33, {320*1280}", f"    s_branch {r}"]
        return f
    for i in range(8):
        a(f"v_mov_b32 v{P[1]+i}, 0"); a(f"v_mov_b32 v{Vf[2][0]+i}, 0")
    a(f"s_mov_b32 s42, 0x{f32hex(2.0**100):08x}")
    a(f"v_lshlrev_b32 v{TB}, 2, v{LANE}")
    for i2 in range(3):
        owner(i2, 32); a("s_lshl_b32 s32, s32, 9"); a(f"s_add_u32 s32, s32, {L_MX}")
        a(f"v_add_u32 v{RA[i2]}, s32, v{TB}")
    a("s_lshl_b32 s32, s3, 9"); a(f"s_add_u32 s32, s32, {L_MX}")
    a(f"v_add_u32 v{FG2}, s32, v{TB}")
    def rowmax(t, dst, init):
        s = S[t]
        if init:
            a(f"v_max3_f32 v{dst}, v{s}, v{s+1}, v{s+2}")
            for i in range(3, 15, 2): a(f"v_max3_f32 v{dst}, v{dst}, v{s+i}, v{s+i+1}")
            a(f"v_max_f32 v{dst}, v{dst}, v{s+15}")
        else:
            for i in range(0, 16, 2): a(f"v_max3_f32 v{dst}, v{dst}, v{s+i}, v{s+i+1}")
    def embed(t, m):
        a(f"v_mov_b32 v{TB}, v{m}")
        a("s_nop 1")
        a(f"v_permlane32_swap_b32 v{m}, v{TB}")
        a("s_nop 1")
        a(f"v_max_f32 v{m}, v{m}, v{TB}")
        a(f"v_sub_f32 v{m}, 0, v{m}")
        a(f"v_cvt_pk_bf16_f32 v{TB}, v{m}, v{m}")
        a(f"v_lshlrev_b32 v{TB}, 16, v{TB}")
        a(f"v_sub_f32 v{TB}, v{m}, v{TB}")
        a(f"v_cvt_pk_bf16_f32 v{TB}, v{m}, v{TB}")
        a(f"v_cndmask_b32 v{QB[6+t]}, v{TB}, v{QB[6+t]}, s[60:61]")
    a.wait(vm=("k", 0))
    for t in range(2):
        a(f"v_mfma_f32_32x32x16_bf16 {vr(S[t],16)}, {vr(K1f[0],4)}, {vr(QA[6+t],4)}, 0")
        a(f"v_mfma_f32_32x32x8_bf16 {vr(S[t],16)}, {vr(K2f[0],2)}, {vr(QB[6+t],2)}, {vr(S[t],16)}")
    a("s_nop 7"); a("s_nop 1")
    for t in range(2):
        rowmax(t, TA, True); embed(t, TA)
        a.lds(f"ds_write_b32 v{FG2}, v{QB[6+t]} offset:{t*256}", "mw")
    a.wait(lg="mw")
    set_flag(a, FV, FWA, 11)
    poll_lds(a, FV, FAD, 11, "fl")
    for i2 in range(3):
        for t in range(2):
            a.lds(f"ds_read_b32 v{QB[2*i2+t]}, v{RA[i2]} offset:{t*256}", ("mr", 2 * i2 + t))
    for i2 in range(3):
        owner(i2, 32); a("s_mul_i32 s32, s32, 18432"); a(f"s_add_u32 s32, s32, {L_RED + i2*6144}")
        a(f"v_add_u32 v{RA[i2]}, s32, v{L16}")
    a(f"v_add_u32 v{FG2}, {L_FLAGG}, v{FAD}")
    a("s_mul_i32 s32, s3, 18432")
    a(f"s_add_u32 s32, s32, {L_RED}")
    a(f"v_add_u32 v{BV}, s32, v{L16}")
    a(f"v_mfma_f32_32x32x16_bf16 {vr(S[0],16)}, {vr(K1f[0],4)}, {vr(QA[0],4)}, 0")
    a.wait(lg="all")
    a(f"v_mfma_f32_32x32x8_bf16 {vr(S[0],16)}, {vr(K2f[0],2)}, {vr(QB[0],2)}, {vr(S[0],16)}")
    a("s_mov_b32 s34, 0")
    a("s_nop 7"); a("s_nop 1")
    a.vm = [("v", 0)] * 2 + [("k", 1)] * 2 + [("v", 1)] * 2
    S_(7); S_(10, True)
    pat = opt.get("pat", "MeeeMeeeMeeeM|eeeeeeecccccccc")
    def tile(b, last):
        for j in range(8):
            if opt.get("ts") and not last and (b == 0 or (b == 1 and j == 0)):
                ix = j if b == 0 else 8
                a(f"s_memtime s[{64+2*ix}:{65+2*ix}]")
            fill = []
            if not last:
                b2 = (b + 2) % 3
                if j in (1, 2): fill = [kld(b2, "s28", ("k", b2))[j - 1]]
                if j in (3, 4): fill = [vld(b2, "s28", ("v", b2))[j - 3]]
                if j == 5: fill = adv()
                if j == 6:
                    fill = [] if opt.get("nowarm") else [cold_warm(0, "d")] + ([cold_warm(1, "o")] if b else [])
                    if b == 0: fill += [cold_blk(1, SFLG)]
                if j == 0 and b == 0: fill = [cold_blk(0, SENT)]
            else:
                if j == 0: fill = [lambda: a.lds(f"ds_read_b32 v{FV}, v{FG2}", "fl")]
                if j == 1: fill = [lambda: poll_lds(a, FV, FG2, 5, "fl", issue=False)]
                if 2 <= j <= 7:
                    jj = j - 2
                    fill = [lambda: None] * 3 + [(lambda r=r: a.lds(f"ds_write_b128 v{RA[jj//2]}, {vr(O[jj]+4*r,4)} offset:{(jj%2)*3072+r*1024}", "ow")) for r in range(3)]
            if j == 7 and not last: a.wait(vm=("k", (b + 1) % 3))
            if j == 1: a.wait(vm=("v", b))
            kb = b if j < 7 else (b + 1) % 3
            vb = b if j > 0 else (b - 1) % 3
            aa = j % 2; o = 1 - aa
            s_, p_ = S[aa], P[aa]
            jn, jp = (j + 1) % 8, (j - 1) % 8
            M = [f"v_mfma_f32_32x32x16_bf16 {vr(S[o],16)}, {vr(K1f[kb],4)}, {vr(QA[jn],4)}, 0",
                 f"v_mfma_f32_32x32x8_bf16 {vr(S[o],16)}, {vr(K2f[kb],2)}, {vr(QB[jn],2)}, {vr(S[o],16)}",
                 f"v_mfma_f32_32x32x16_bf16 {vr(O[jp],16)}, {vr(Vf[vb][0],4)}, {vr(P[o],4)}, {vr(O[jp],16)}",
                 f"v_mfma_f32_32x32x16_bf16 {vr(O[jp],16)}, {vr(Vf[vb][1],4)}, {vr(P[o]+4,4)}, {vr(O[jp],16)}"]
            ne = nc = nm = 0
            for ch in (opt['pat2'] if opt.get('pat2') and j % opt.get('p2every', 4) == 0 else pat):
                if ch == "M":
                    if not (last and j == 7 and nm < 2): a(M[nm])
                    nm += 1
                elif ch == "e": a(f"v_exp_f32 v{s_+ne}, v{s_+ne}"); ne += 1
                elif ch == "c": a(f"v_cvt_pk_bf16_f32 v{p_+nc}, v{s_+2*nc}, v{s_+2*nc+1}"); nc += 1
                elif ch == "|": a.sprinkle(fill, opt.get("fevery", 1), "v_")
                elif ch == "<": a("s_setprio 3")
                elif ch == ">": a("s_setprio 0")
            a.flush_pend()
    top_vm = list(a.vm)
    a.raw(".p2align 6")
    a.label("L_a_loop")
    tile(0, False); tile(1, False); tile(2, False)
    if opt.get("its"):
        for it, ix in ((0, 1), (1, 2), (2, 3), (3, 4), (4, 5)):
            l = a.newlabel("it"); a(f"s_cmp_lg_u32 s34, {it}"); a(f"s_cbranch_scc1 {l}"); S0_(ix, True); a(f"s_sub_u32 s{44+ix}, s{44+ix}, s54"); a(f"s_mul_i32 s{44+ix}, s{44+ix}, 100"); a(f"s_add_u32 s{44+ix}, s{44+ix}, s44"); a.label(l)
    a("s_add_u32 s34, s34, 1")
    a("s_cmp_lt_u32 s34, 5")
    a("s_cbranch_scc1 L_a_loop")
    assert a.vm == top_vm, (a.vm, top_vm)
    tile(0, True)
    a("s_nop 0")
    a(f"v_mfma_f32_32x32x16_bf16 {vr(O[7],16)}, {vr(Vf[0][0],4)}, {vr(P[1],4)}, {vr(O[7],16)}")
    a(f"v_mfma_f32_32x32x16_bf16 {vr(O[7],16)}, {vr(Vf[0][1],4)}, {vr(P[1]+4,4)}, {vr(O[7],16)}")
    a.wait(lg="ow")
    set_flag(a, FV, FWA, 13)
    if st:
        S_(8); S_(11, True); a("s_sub_u32 s54, s55, s54"); a("s_mov_b32 s55, 0")
        if opt.get("ts"):
            for i in range(1, 8):
                a(f"s_sub_u32 s{44+i}, s{64+2*i}, s{62+2*i}"); a(f"s_mul_i32 s{44+i}, s{44+i}, 100"); a(f"s_add_u32 s{44+i}, s{44+i}, s44")
    poll_lds(a, FV, FAD, 13, "fl")
    RR = 16
    RR = O[0]
    if opt.get("tst"): S0_(1)
    for src in range(3):
        for t in range(2):
            for r in range(3):
                a.lds(f"ds_read_b128 {vr(RR+24*src+12*t+4*r,4)}, v{BV} offset:{src*6144+t*3072+r*1024}", ("or", src))
    for src in range(3):
        a.wait(lg=("or", src))
        for i in range(0, 24, 2):
            a(f"v_pk_add_f32 {vr(O[6]+i,2)}, {vr(O[6]+i,2)}, {vr(RR+24*src+i,2)}")
    a(f"v_add_f32_e64 v{TA}, |v{O[6]}|, |v{O[6]+1}|")
    for i in range(2, 24): a(f"v_add_f32_e64 v{TA}, v{TA}, |v{O[6]+i}|")
    a(f"v_cmp_ngt_f32 vcc, s42, v{TA}")
    a("s_cmp_eq_u64 vcc, 0")
    a("s_cbranch_scc0 L_a_fallback")
    a.label("L_a_norm")
    if opt.get("tst"): S0_(2)
    a(f"v_mov_b32 v{FG2}, {BIG}")
    a(f"v_cndmask_b32 v{FG2}, v{FG2}, v{L16}, s[60:61]")
    for t in range(2):
        oo = O[6 + t]
        a(f"v_mov_b32 v{TA}, v{oo+8}")
        a(f"v_mov_b32 v{TB}, v{oo+8}")
        a("s_nop 1")
        a(f"v_permlane32_swap_b32 v{TA}, v{TB}")
        a("s_nop 1")
        a(f"v_rcp_f32 v{TB}, v{TB}")
        a("s_nop 0")
        for i in range(12): a(f"v_mul_f32 v{oo+i}, v{oo+i}, v{TB}")
        for i in range(6): a(f"v_cvt_pk_bf16_f32 v{S[t]+i}, v{oo+2*i}, v{oo+2*i+1}")
        a(f"buffer_store_dwordx4 {vr(S[t],4)}, v{L16}, s[20:23], s{38+2*t} offen sc1")
        a(f"buffer_store_dwordx2 {vr(S[t]+4,2)}, v{FG2}, s[20:23], s{39+2*t} offen sc1")
    if opt.get("tst"): S0_(3)
    if st:
        S_(9); st.flush(a, P_WS, 6, 20)
    a("s_endpgm")
    a.label("L_a_fallback")
    a("s_waitcnt vmcnt(0) lgkmcnt(0)")
    M = [RA[0], RA[1]]
    FO = [156, 172]
    for t in range(2):
        a(f"v_mov_b32 v{M[t]}, 0xff800000")
        a(f"v_cndmask_b32 v{QB[6+t]}, v{ZERO}, v{QB[6+t]}, s[60:61]")
    a("s_mov_b32 s43, 0")
    a.label("L_a_fb1")
    for f in kld(0, "s43", None): f()
    a("s_waitcnt vmcnt(0)")
    for t in range(2):
        a(f"v_mfma_f32_32x32x16_bf16 {vr(S[t],16)}, {vr(K1f[0],4)}, {vr(QA[6+t],4)}, 0")
        a(f"v_mfma_f32_32x32x8_bf16 {vr(S[t],16)}, {vr(K2f[0],2)}, {vr(QB[6+t],2)}, {vr(S[t],16)}")
    a("s_nop 7"); a("s_nop 7")
    for t in range(2): rowmax(t, M[t], False)
    a("s_add_u32 s43, s43, 3072")
    a(f"s_cmp_lt_u32 s43, {KV_BYTES}")
    a("s_cbranch_scc1 L_a_fb1")
    NEG = [188, 204]
    for t in range(2):
        a(f"v_mov_b32 v{TB}, v{M[t]}")
        a("s_nop 1")
        a(f"v_permlane32_swap_b32 v{M[t]}, v{TB}")
        a("s_nop 1")
        a(f"v_max_f32 v{M[t]}, v{M[t]}, v{TB}")
        for i in range(16):
            a(f"v_sub_f32 v{NEG[t]+i}, 0, v{M[t]}"); a(f"v_mov_b32 v{FO[t]+i}, 0")
    a("s_mov_b32 s43, 0")
    a.label("L_a_fb2")
    for f in kld(0, "s43", None) + vld(0, "s43", None): f()
    a("s_waitcnt vmcnt(0)")
    for t in range(2):
        a(f"v_mfma_f32_32x32x16_bf16 {vr(S[t],16)}, {vr(K1f[0],4)}, {vr(QA[6+t],4)}, {vr(NEG[t],16)}")
        a(f"v_mfma_f32_32x32x8_bf16 {vr(S[t],16)}, {vr(K2f[0],2)}, {vr(QB[6+t],2)}, {vr(S[t],16)}")
    a("s_nop 7"); a("s_nop 7")
    for t in range(2):
        for r in range(16): a(f"v_exp_f32 v{S[t]+r}, v{S[t]+r}")
        a("s_nop 0")
        for i in range(8): a(f"v_cvt_pk_bf16_f32 v{P[t]+i}, v{S[t]+2*i}, v{S[t]+2*i+1}")
        a("s_nop 1")
        a(f"v_mfma_f32_32x32x16_bf16 {vr(FO[t],16)}, {vr(Vf[0][0],4)}, {vr(P[t],4)}, {vr(FO[t],16)}")
        a(f"v_mfma_f32_32x32x16_bf16 {vr(FO[t],16)}, {vr(Vf[0][1],4)}, {vr(P[t]+4,4)}, {vr(FO[t],16)}")
    a("s_add_u32 s43, s43, 3072")
    a(f"s_cmp_lt_u32 s43, {KV_BYTES}")
    a("s_cbranch_scc1 L_a_fb2")
    a("s_nop 7"); a("s_nop 7")
    for t in range(2):
        for i in range(12): a(f"v_mov_b32 v{O[6+t]+i}, v{FO[t]+i}")
    a("s_branch L_a_norm")

def gen_g(a, S0_, st, opt, NSH):
    E_ = (lambda i: S0_(i)) if opt.get("early") else (lambda i: None)
    S_ = (lambda i, cyc=False: S0_(i, cyc) if (not opt.get("early") or i < 6 or i == 9) else None)
    E_(6)
    TAG = 11
    X = 16; U = 32; SUM, SQ = 12, 14
    a(f"s_setprio {opt.get('gfp', 3)}")
    a(f"v_lshrrev_b32 v{TA}, 5, v{LANE}")
    a(f"v_mul_u32_u24 v{TA}, 1280, v{TA}")
    a(f"v_and_b32 v{TB}, 31, v{LANE}")
    a(f"v_lshl_add_u32 v56, v{TB}, 4, v{TA}")
    a(f"v_mov_b32 v9, {BIG}")
    a(f"v_cmp_gt_u32 vcc, 16, v{TB}")
    a("s_lshl_b32 s28, s4, 3")
    a("s_add_u32 s28, s28, s5")
    a("v_cndmask_b32 v57, v9, v56, vcc")
    a("s_lshl_b32 s7, s28, 2")
    a("s_add_u32 s7, s7, s3")
    a("s_mul_i32 s7, s7, 2560")
    a("s_mov_b64 s[60:61], vcc")
    a.vmem(f"buffer_load_dwordx4 {vr(X,4)}, v56, s[8:11], s7 offen", ("x", 0))
    a.vmem(f"buffer_load_dwordx4 {vr(X+4,4)}, v56, s[8:11], s7 offen offset:512", ("x", 1))
    a.vmem(f"buffer_load_dwordx4 {vr(X+8,4)}, v57, s[8:11], s7 offen offset:1024", ("x", 2))
    a("s_barrier")
    a("s_cmp_ge_u32 s3, 2")
    a(f"s_cselect_b32 s12, s{P_WV}, s{P_WK}")
    a(f"s_cselect_b32 s13, s{P_WV+1}, s{P_WK+1}")
    a("s_mov_b32 s14, 25600"); a("s_mov_b32 s15, 0x00020000")
    a(f"s_cselect_b32 s24, {L_WV-L_WK}, 0")
    a(f"s_add_u32 s24, s24, {L_WK}")
    a("s_and_b32 s25, s3, 1")
    a("s_lshl_b32 s25, s25, 10")
    a("s_add_u32 s24, s24, s25")
    for j in range(13):
        a(f"s_add_u32 m0, s24, {j*2048}")
        a("s_nop 0")
        a.vmem(f"buffer_load_dwordx4 v{L16}, s[12:15], s25 offen lds", "wkv")
        a("s_add_u32 s25, s25, 2048")
    X2 = 216; U2 = 64
    a(f"v_and_b32 v{TB}, 31, v{LANE}")
    a(f"v_and_b32 v{TA}, 3, v{LANE}")
    a(f"v_lshlrev_b32 v{FAD}, 2, v{TA}")
    a(f"v_add_u32 v{FAD}, {L_FLAGG}, v{FAD}")
    a("s_lshl_b32 s30, s3, 2")
    a(f"s_add_u32 s30, s30, {L_FLAGG}")
    a(f"v_mov_b32 v{FWA}, s30")
    GQ, WA, XA, J, XW = 58, 59, 60, 61, 62
    a(f"v_lshrrev_b32 v{GQ}, 4, v{LANE}")
    a(f"v_bfe_u32 v{WA}, v{LANE}, 2, 2")
    a(f"v_lshl_add_u32 v{WA}, v{GQ}, 3, v{WA}")
    a(f"v_mul_u32_u24 v{WA}, 40, v{WA}")
    a(f"v_lshlrev_b32 v{TA}, 3, v{TA}")
    a("s_cmp_ge_u32 s3, 2")
    a("s_cselect_b32 s24, 0, -1")
    a("s_cselect_b32 s25, 32, 0")
    a("s_bitcmp1_b32 s3, 0")
    a(f"s_cselect_b32 s26, {L_WV-L_WK}, 0")
    a(f"s_add_u32 s26, s26, {L_WK}")
    a("s_add_u32 s25, s25, s26")
    a(f"v_and_b32 v{TA}, s24, v{TA}")
    a(f"v_add3_u32 v{WA}, v{WA}, v{TA}, s25")
    a("s_lshr_b32 s26, s5, 2")
    a(f"s_mul_i32 s26, s26, {XNT}")
    a("s_and_b32 s27, s5, 3")
    a("s_lshl_b32 s27, s27, 7")
    a("s_add_u32 s26, s26, s27")
    a(f"s_add_u32 s26, s26, {L_XN}")
    a(f"v_and_b32 v{TA}, 7, v{LANE}")
    a(f"v_mul_u32_u24 v{XA}, 528, v{GQ}")
    a(f"v_lshl_add_u32 v{XA}, v{TA}, 4, v{XA}")
    a(f"v_add_u32 v{XA}, s26, v{XA}")
    a("s_lshl_b32 s27, s3, 5")
    a("s_add_u32 s27, s27, s26")
    a(f"v_mul_u32_u24 v{XW}, 528, v{TB}")
    a(f"v_lshrrev_b32 v{TA}, 5, v{LANE}")
    a(f"v_lshl_add_u32 v{XW}, v{TA}, 4, v{XW}")
    a(f"v_add_u32 v{XW}, s27, v{XW}")
    srd(a, 24, P_WS, KV_BYTES, WS_KV)
    srd(a, 56, P_WS, FL_BYTES, WS_FL)
    srd(a, 16, P_WG, 640 * 3072)
    srd(a, 20, P_WU, 640 * 3072)
    a("s_lshr_b32 s29, s28, 2")
    a("s_mul_i32 s29, s29, 3072")
    a("s_bfe_u32 s30, s28, 0x10001")
    a("s_and_b32 s31, s28, 1")
    a(f"v_and_b32 v{J}, 15, v{LANE}")
    a("s_bitcmp1_b32 s3, 0")
    a("s_cbranch_scc1 L_g_va")
    a("s_lshl_b32 s32, s30, 4"); a("s_lshl_b32 s33, s31, 2"); a("s_add_u32 s32, s32, s33")
    a(f"v_lshrrev_b32 v30, 2, v{J}")
    a("v_lshlrev_b32 v30, 3, v30")
    a(f"v_and_b32 v28, 3, v{J}")
    a("v_add3_u32 v30, v30, v28, s32")
    a(f"v_lshrrev_b32 v28, 1, v{GQ}")
    a("v_lshlrev_b32 v28, 9, v28")
    a("v_lshl_add_u32 v28, v30, 4, v28")
    a(f"v_and_b32 v31, 1, v{GQ}")
    a("v_lshl_add_u32 v28, v31, 3, v28")
    a("v_lshlrev_b32 v31, 3, v30")
    a(f"v_lshl_add_u32 v31, v{GQ}, 8, v31")
    a("v_add_u32 v31, 1024, v31")
    a(f"v_cmp_gt_u32 vcc, 2, v{GQ}")
    a("v_mov_b32 v29, 0x3f803f80")
    a("v_mov_b32 v57, 0")
    a("v_cndmask_b32 v31, v9, v31, vcc")
    a(f"v_cmp_eq_u32 s[40:41], 1, v{GQ}")
    a("s_cmp_ge_u32 s3, 2")
    a("s_cselect_b64 vcc, -1, 0")
    a("s_cselect_b64 s[40:41], s[40:41], 0")
    a("v_cndmask_b32 v28, v28, v31, vcc")
    a(f"v_cmp_gt_u32 vcc, 8, v{J}")
    a("s_nop 1")
    a("v_cndmask_b32 v28, v9, v28, vcc")
    a("s_branch L_g_vb")
    a.label("L_g_va")
    a("s_mul_i32 s32, s30, 768"); a("s_mul_i32 s33, s31, 384"); a("s_add_u32 s32, s32, s33"); a("s_add_u32 s32, s32, 1536")
    a(f"v_and_b32 v30, 3, v{J}")
    a(f"v_bfe_u32 v28, v{J}, 2, 1")
    a("v_lshl_add_u32 v30, v28, 3, v30")
    a(f"v_bfe_u32 v28, v{J}, 3, 1")
    a("v_lshl_add_u32 v30, v28, 2, v30")
    a(f"v_add_u32 v28, 16, v{J}")
    a("s_cmp_ge_u32 s3, 2")
    a("s_cselect_b64 vcc, -1, 0")
    a("s_cselect_b32 s33, 6, 16")
    a("s_cselect_b32 s34, 4, 99")
    a("s_cselect_b32 s35, 5, 99")
    a("v_cndmask_b32 v30, v30, v28, vcc")
    a("v_lshlrev_b32 v30, 4, v30")
    a(f"v_lshl_add_u32 v30, v{GQ}, 3, v30")
    a("v_add_u32 v30, s32, v30")
    a(f"v_cmp_gt_u32 vcc, s33, v{J}")
    a("v_mov_b32 v29, 0x3f803f80")
    a("s_nop 0")
    a("v_cndmask_b32 v30, v9, v30, vcc")
    a(f"v_cmp_gt_u32 vcc, 2, v{GQ}")
    a("s_nop 1")
    a("v_cndmask_b32 v28, v9, v30, vcc")
    a(f"v_cmp_eq_u32 s[40:41], s35, v{J}")
    a(f"v_cmp_eq_u32 vcc, s34, v{J}")
    a("s_nop 1")
    a(f"v_cndmask_b32 v29, v29, v{ZERO}, s[40:41]")
    a("s_or_b64 s[40:41], vcc, s[40:41]")
    a("v_mov_b32 v57, v29")
    a.label("L_g_vb")
    wq_offsets(a, 144)
    srd(a, 92, P_WQ, 640 * 1280)
    a("s_mul_i32 s42, s5, 160")
    a("s_mul_i32 s43, s3, 40960")
    a("s_add_u32 s42, s42, s43")
    a("s_mul_i32 s43, s3, 5120")
    a(f"s_add_u32 s43, s43, {L_R1}")
    S_(1)
    def hook(i):
        if i == 0:
            S_(2)
            a.vmem(f"buffer_load_dword v{TAG}, v{ZERO}, s[88:91], 0 offen sc1", "tag")
    ln_stats(a, X, U, 3, SUM, SQ, lambda i: ("x", i), hook)
    dpp_sum(a, [SUM, SQ], ("quad_perm:[1,0,3,2]", "quad_perm:[2,3,0,1]", "row_half_mirror", "row_mirror"))
    a(f"v_mov_b32 v{SUM+1}, v{SUM}"); a(f"v_mov_b32 v{SQ+1}, v{SQ}")
    a("s_nop 1")
    a(f"v_permlane16_swap_b32 v{SUM}, v{SUM+1}")
    a(f"v_permlane16_swap_b32 v{SQ}, v{SQ+1}")
    a("s_nop 1")
    a(f"v_add_f32 v{SUM}, v{SUM}, v{SUM+1}")
    a(f"v_add_f32 v{SQ}, v{SQ}, v{SQ+1}")
    ln_finish(a, SUM, SQ)
    for i in range(3):
        for d in range(4):
            pp = vr(U + 8 * i + 2 * d, 2)
            a(f"v_pk_fma_f32 {pp}, {pp}, {vr(SQ,2)}, {vr(SUM,2)}")
        for d in range(4):
            a(f"v_cvt_pk_bf16_f32 v{X+4*i+d}, v{U+8*i+2*d}, v{U+8*i+2*d+1}")
        if i == 2: a("s_mov_b64 exec, s[60:61]")
        a.lds(f"ds_write_b128 v{XW}, {vr(X+4*i,4)} offset:{i*16896}", "xw")
        if i == 2: a("s_mov_b64 exec, -1")
    a.wait(vm="wkv")
    set_flag(a, FV, FWA, 1)
    poll_lds(a, FV, FAD, 1, "fl")
    S_(3)
    KA = 16; WKF = 150; XF_ = 64
    for s_ in range(20):
        for hf in range(2): a.lds(f"ds_read_b64_tr_b16 {vr(WKF+4*s_+2*hf,2)}, v{WA} offset:{s_*1280+hf*160}", "wk")
    set_flag(a, FV, FWA, 2)
    for s_ in range(20): a.lds(f"ds_read_b128 {vr(XF_+4*s_,4)}, v{XA} offset:{s_*2112}", ("g", s_))
    def gwq(g4):
        for i in range(5):
            if i in (0, 4):
                a(f"s_add_u32 m0, s43, {SLOT(g4)*5120 + i*1024}"); a(f"s_add_u32 s60, s42, {g4*40960}")
            a(f"buffer_load_dwordx4 v{144+i}, s[92:95], s60 offen" + (f" offset:{i*1024}" if i < 4 else "") + " lds")
    a("s_bitcmp1_b32 s3, 0")
    a("s_cbranch_scc1 L_g_v")
    lg0 = list(a.lg)
    for role in ("k", "v"):
        if role == "v": a.label("L_g_v")
        a.lg = list(lg0)
        for s_ in range(20):
            a.wait(lg=("g", s_))
            cin = vr(KA, 4) if s_ else "0"
            if role == "k": a(f"v_mfma_f32_16x16x32_bf16 {vr(KA,4)}, {vr(WKF+4*s_,4)}, {vr(XF_+4*s_,4)}, {cin}")
            else: a(f"v_mfma_f32_16x16x32_bf16 {vr(KA,4)}, {vr(XF_+4*s_,4)}, {vr(WKF+4*s_,4)}, {cin}")
        if role == "k": a("s_branch L_g_kvst")
    a.label("L_g_kvst")
    a("s_nop 7")
    a(f"v_cvt_pk_bf16_f32 v24, v{KA}, v{KA+1}")
    a(f"v_cvt_pk_bf16_f32 v25, v{KA+2}, v{KA+3}")
    a("v_cndmask_b32 v24, v24, v29, s[40:41]")
    a("v_cndmask_b32 v25, v25, v57, s[40:41]")
    a("buffer_store_dwordx2 v[24:25], v28, s[24:27], s29 offen sc1")
    S_(4)
    poll_lds(a, FV, FAD, 2, "fl")
    a("s_cmp_ge_u32 s3, 2")
    a("s_cbranch_scc1 L_g_no13")
    gwq(13)
    a.label("L_g_no13")
    gwq(5); gwq(9)
    a("s_waitcnt vmcnt(10)")
    a.vm = []
    tag_check(a, TAG)
    a(f"v_mov_b32 v{TA}, s62")
    a("s_lshl_b32 s36, s28, 4")
    a("s_mov_b64 exec, 1")
    a(f"v_mov_b32 v{FV}, 1")
    a(f"ds_add_rtn_u32 v{FV}, v{ZERO}, v{FV} offset:{L_CNTKV}")
    a("s_waitcnt lgkmcnt(0)"); a.lg = []
    a(f"v_cmp_eq_u32 vcc, 3, v{FV}")
    a("s_and_b64 exec, exec, vcc")
    a("s_cbranch_execz L_g_nokvflag")
    a(f"buffer_store_dword v{TA}, v{ZERO}, s[56:59], s36 offen sc1")
    a.label("L_g_nokvflag")
    a("s_mov_b64 exec, -1")
    S_(5)
    a(f"v_subrev_u32 v{TB}, {L_FLAGG}, v{FAD}")
    a("s_waitcnt vmcnt(1)")
    a("s_cbranch_vccnz L_g_p2ok")
    a("s_waitcnt vmcnt(0)")
    a.label("L_g_p2ok")
    set_flag(a, FV, FWA, 3)
    poll_lds(a, FV, TB, 4, "fl")
    a("s_cmp_lg_u32 s3, 0")
    a("s_cbranch_scc1 L_g_no19")
    gwq(19)
    a.label("L_g_no19")
    gwq(15)
    GP3 = True
    WO = [12, 13, 14]; WT, XA0, XA1 = 15, 9, 242
    for i in range(3):
        a(f"v_add_u32 v{WO[i]}, {64*i}, v{LANE}")
        a(f"v_mul_u32_u24 v{TA}, 171, v{WO[i]}")
        a(f"v_lshrrev_b32 v{TA}, 10, v{TA}")
        a(f"v_mul_u32_u24 v{TB}, 6, v{TA}")
        a(f"v_sub_u32 v{TB}, v{WO[i]}, v{TB}")
        a(f"v_mul_u32_u24 v{TA}, 3072, v{TA}")
        a(f"v_lshl_add_u32 v{WO[i]}, v{TB}, 4, v{TA}")
        if i: a(f"v_subrev_u32 v{WO[i]}, {1024*i}, v{WO[i]}")
    a("s_mul_i32 s32, s5, 384")
    a("s_mul_i32 s33, s3, 96")
    a("s_add_u32 s32, s32, s33")
    a(f"s_mul_i32 s33, s3, {WSLOT}")
    a(f"s_add_u32 s33, s33, {L_R1}")
    a("s_waitcnt lgkmcnt(0)"); a.lg = []
    wcount = {}
    def w_parts(u):
        sl = WSO[WMAP(u)]
        def mk(m, i):
            def f():
                if i == 0:
                    a(f"s_add_u32 m0, s33, {sl + m*3200}"); a("s_nop 0")
                a.vmem(f"buffer_load_dwordx4 v{WO[i]}, s[{16+4*m}:{19+4*m}], s32 offen offset:{i*1024} lds", ("w", u))
                if m == 1 and i == 2: a("s_add_u32 s32, s32, 98304")
                wcount[u] = wcount.get(u, 0) + 1
            return f
        return [mk(m, i) for m in range(2) for i in range(3)]
    def gwarm():
        warm(a, [16, 20], 3072, 640 // NSH // 4, 384, ("s5", 384), NSH, TA, 60, 61, 3)
    if opt.get("wwarm") == "b": gwarm()
    a("s_waitcnt vmcnt(0)"); a.vm = []
    set_flag(a, FV, FWA, 4)
    if opt.get("wwarm") == "c": gwarm()
    AFL = 11
    a(f"v_subrev_u32 v{AFL}, {L_FLAGG}, v{FAD}")
    a(f"v_lshrrev_b32 v{TB}, 5, v{LANE}")
    a(f"v_bfe_u32 v{WT}, v{LANE}, 2, 2")
    a(f"v_lshl_add_u32 v{WT}, v{TB}, 3, v{WT}")
    a(f"v_mul_u32_u24 v{229}, 320, v{WT}")
    a(f"v_mul_u32_u24 v{WT}, 96, v{WT}")
    a(f"v_mul_u32_u24 v{XA0}, 528, v{TB}")
    a(f"v_mul_u32_u24 v{230}, 40, v{TB}")
    a(f"v_and_b32 v{TB}, 1, v{LANE}")
    a(f"v_lshl_add_u32 v{WT}, v{TB}, 4, v{WT}")
    a(f"v_bfe_u32 v{TB}, v{LANE}, 1, 1")
    a(f"v_lshl_add_u32 v{WT}, v{TB}, 3, v{WT}")
    a(f"v_bfe_u32 v{TB}, v{LANE}, 4, 1")
    a(f"v_mul_u32_u24 v{TA}, 3200, v{TB}")
    a(f"v_add3_u32 v{WT}, v{WT}, v{TA}, s33")
    DO = 232; DO2 = 237; XR = 242; DT, PA, OA, DT2 = 252, 253, 254, 255
    a(f"v_and_b32 v{TA}, 3, v{LANE}")
    a(f"v_lshl_add_u32 v{TA}, v{TB}, 2, v{TA}")
    a("s_lshl_b32 s29, s3, 1")
    a(f"v_add_u32 v{TA}, s29, v{TA}")
    a(f"v_and_b32 v{TA}, 7, v{TA}")
    a(f"v_mul_u32_u24 v{TA}, 40, v{TA}")
    a("s_mov_b32 s29, s33")
    a(f"v_add3_u32 v{DT}, v229, v{TA}, s29")
    a(f"v_and_b32 v{TA}, 7, v{LANE}")
    a(f"v_lshlrev_b32 v{PA}, 4, v{TA}")
    a(f"v_and_b32 v{TA}, 31, v{LANE}")
    a(f"v_lshl_add_u32 v{XA0}, v{TA}, 4, v{XA0}")
    a(f"v_add_u32 v{XA0}, {L_XN}, v{XA0}")
    a(f"v_add_u32 v{XA1}, {XNT}, v{XA0}")
    a(f"v_mul_u32_u24 v{TA}, 1280, v{TA}")
    a(f"v_add_u32 v{OA}, v230, v{TA}")
    for i in range(5):
        a(f"v_add_u32 v{TA}, {64*i}, v{LANE}")
        a(f"v_mul_u32_u24 v{TB}, 205, v{TA}")
        a(f"v_lshrrev_b32 v{TB}, 12, v{TB}")
        a(f"v_mul_u32_u24 v{DO+i}, 20, v{TB}")
        a(f"v_sub_u32 v{TA}, v{TA}, v{DO+i}")
        a(f"v_lshlrev_b32 v{TA}, 4, v{TA}")
        if 0 < i < 4: a(f"v_subrev_u32 v{TA}, {1024*i}, v{TA}")
        a(f"v_mul_u32_u24 v{DO+i}, 1280, v{TB}")
        a(f"v_add_u32 v{DO+i}, v{DO+i}, v{TA}")
        a(f"v_lshrrev_b32 v{TB}, 2, v{TB}")
        a(f"v_add_u32 v{TB}, 1, v{TB}")
        a(f"v_mul_u32_u24 v{TB}, 20480, v{TB}")
        a(f"v_add_u32 v{DO2+i}, v{DO+i}, v{TB}")
    srd(a, 24, P_WS, H_BYTES, WS_H)
    srd(a, 12, P_WS, O_BYTES, WS_O)
    srd(a, 92, P_WD, 1536 * 1280)
    srd(a, 96, P_WO, 640 * 1280)
    a("s_mul_i32 s26, s5, 12288") if False else None
    a("s_lshl_b32 s36, s4, 1")
    a("s_mul_i32 s36, s36, 98304")
    a("s_mul_i32 s37, s5, 12288")
    a("s_mul_i32 s7, s3, 3072")
    a("s_add_u32 s7, s7, s37")
    a("s_add_u32 s36, s36, s7")
    a("s_add_u32 s37, s36, 98304")
    a("s_and_b32 s38, s5, 3")
    poll_lds(a, FV, AFL, opt.get("wstart", 8), "fl")
    a(f"s_setprio {opt['prioG']}")
    S_(6)
    a.raw("; @@G_MAIN_BEGIN")
    ACC = [[16 + 16 * (3 * b + t) for t in range(3)] for b in range(2)]
    FR = 112
    def f1parts(k):
        b = FR + (k % 2) * 20
        off = WSO[WMAP(k // 2)] + (k % 2) * 1536
        def B(i): return lambda: a.lds(f"ds_read_b128 {vr(b+4*i,4)}, v{XA1 if i else XA0} offset:{k*1056}", ("fb", k, i))
        def A_(t, hf):
            def f():
                if t == 0 and hf == 0:
                    while wcount.get(k // 2, 0) < 6: pend.pop(0)()
                    a.wait(vm=("w", k // 2))
                a.lds(f"ds_read_b64_tr_b16 {vr(b+8+4*t+2*hf,2)}, v{WT} offset:{off+t*32+hf*384}", ("fa", k, t))
            return f
        return [B(0), A_(0, 0), A_(0, 1), A_(1, 0), A_(1, 1), A_(2, 0), A_(2, 1), B(1)]
    a("s_mul_i32 s38, s38, 320")
    a("s_mul_i32 s39, s7, 20")
    a("s_add_u32 s39, s39, s38")
    a("s_mul_i32 s40, s3, 204800")
    a("s_add_u32 s40, s40, s38")
    a("s_mov_b32 s41, s40")
    def adv_d(so, k):
        if k % 3 == 2:
            a(f"s_add_u32 {so}, {so}, 204800"); a(f"s_sub_u32 s60, {so}, 1966080"); a(f"s_cmp_ge_u32 {so}, 1966080"); a(f"s_cselect_b32 {so}, s60, {so}")
        else: a(f"s_add_u32 {so}, {so}, 20480")
    def d_parts(k):
        sl = DS(k)
        if k < 24: sd, so, vo = "s[92:95]", "s39", DO
        elif k < 32: sd, so, vo = "s[96:99]", "s40", DO
        else: sd, so, vo = "s[96:99]", "s41", DO2
        def mk(i):
            def f():
                if i in (0, 4):
                    a(f"s_add_u32 m0, s29, {sl + (4096 if i == 4 else 0)}"); a("s_nop 0")
                a.vmem(f"buffer_load_dwordx4 v{vo+i}, {sd}, {so} offen" + (f" offset:{i*1024}" if i < 4 else "") + " lds", ("d", k))
                if i == 4:
                    if k < 24 and k % 3 == 2:
                        a("s_add_u32 s39, s39, 204800")
                        a("s_sub_u32 s60, s39, 1966080")
                        a("s_cmp_ge_u32 s39, 1966080")
                        a("s_cselect_b32 s39, s60, s39")
                    else:
                        a(f"s_add_u32 {so}, {so}, {20480 if k < 24 else (25600 if k < 32 else 102400)}")
            return f
        return [mk(i) for i in range(5)]
    def d_dma(k):
        for f in d_parts(k): f()
    a("s_lshl_b32 s30, s4, 9")
    a("s_lshl_b32 s31, s3, 7")
    a("s_add_u32 s30, s30, s31")
    a("s_lshl_b32 s42, s5, 4")
    a("s_add_u32 s42, s42, s30")
    a(f"s_add_u32 s42, s42, {FL_H}")
    a(f"s_add_u32 s30, s30, {FL_H}")
    SFR = 152
    a(f"v_mov_b32 v153, s62")
    def hflag(w):
        if w: a.wait(vm="hst")
        a("s_mov_b64 exec, 1")
        a.vmem(f"buffer_store_dword v153, v{ZERO}, s[56:59], s42 offen sc1", "hfl")
        a("s_mov_b64 exec, -1")
    PF = 152; NPF = opt.get("npf", 0)
    def pf_parts(k):
        def mk(i):
            def f():
                a.vmem(f"buffer_load_dwordx4 {vr(PF+20*(k-3)+4*i,4)}, v{DO+i}, s[92:95], s34 offen" + (f" offset:{i*1024}" if i < 4 else ""), ("pf", k))
                if i == 4: adv_d("s34", k)
            return f
        return [mk(i) for i in range(5)]
    def pf_write(k):
        def mk(i):
            def f():
                if i == 0: a.wait(vm=("pf", k))
                a.lds(f"ds_write_b128 v{DT2}, {vr(PF+20*(k-3)+4*i,4)} offset:{DS(k)+i*1024}", ("pw", k))
                if i == 4 and k == 2 + NPF: a("s_mov_b32 s39, s34")
            return f
        a.done.add(("d", k))
        return [mk(i) for i in range(5)]
    a(f"v_add_u32 v{DT2}, s29, v{L16}")
    a("s_add_u32 s34, s39, 40960"); adv_d("s34", 2)
    PFL = [f for k in range(3, 3 + NPF) for f in pf_parts(k)]
    pend = []
    for f in w_parts(0): f()
    if opt.get("wstart", 8) >= 6:
        for f in w_parts(1): f()
    else: pend += [lambda: poll_lds(a, FV, AFL, 6, "fl")] + w_parts(1)
    for f in f1parts(0): f()
    for k in range(40):
        b = FR + (k % 2) * 20
        rd_ = f1parts(k + 1) if k + 1 < 40 else []
        if k == 1: pend += [lambda: poll_lds(a, FV, AFL, 10, "fl")] + w_parts(2)
        if k % 2 == 0 and k >= 2 and k // 2 + 2 < 20: pend += w_parts(k // 2 + 2)
        if k % 2 == 1 and k >= opt.get("pfk", 25) and PFL: pend += PFL[:3]; PFL = PFL[3:]
        if k == 36: pend += d_parts(0)
        if k == 38: pend += d_parts(1)
        if opt.get("hsent"):
            if k == 24: pend += [lambda: poll_lds(a, FV, AFL, 12, "fl"), lambda: hflag(False)]
            if k == 34: pend += [lambda: a.vmem(f"buffer_load_dword v{SFR}, v{PA}, s[56:59], s30 offen sc1", "sfr")]
        elif k == 37: pend += [lambda: poll_lds(a, FV, AFL, 12, "fl")]
        if opt.get("f1st") and k in (1, 10, 20, 30): S0_({1: 1, 10: 2, 20: 3, 30: 4}[k])
        cut = [0, 2, 4, 5, 6, 7, 8]
        i = 0
        for bb in range(2):
            for t in range(3):
                a.wait(lg=[("fb", k, bb), ("fa", k, t)])
                a(f"v_mfma_f32_32x32x16_bf16 {vr(ACC[bb][t],16)}, {vr(b+8+4*t,4)}, {vr(b+4*bb,4)}, {vr(ACC[bb][t],16) if k else 0}")
                for f in rd_[cut[i]:cut[i+1]]: f()
                if (i >= 2 or len(pend) > 6) and pend: pend.pop(0)()
                i += 1
    while pend: pend.pop(0)()
    assert not PFL
    d_dma(2)
    set_flag(a, FV, FWA, 5)
    S_(7)
    a("s_cmp_ge_u32 s5, 4")
    a("s_cselect_b64 vcc, -1, 0")
    DA = [16 + 16 * t for t in range(5)]; BF = 136
    if opt.get('gp', 2) >= 1: a('s_setprio 3')
    for b in range(2):
        for t in range(3):
            c = ACC[b][t]
            for r in range(0, 8, 2): a(f"v_pk_mul_f32 {vr(c+r,2)}, {vr(c+r,2)}, {vr(c+8+r,2)}")
            for i in range(4): a(f"v_cvt_pk_bf16_f32 v{c+8+i}, v{c+2*i}, v{c+2*i+1}")
            if opt.get('gp') != 3: a.vmem(f"buffer_store_dwordx4 {vr(c+8,4)}, v{L16}, s[24:27], s{36+b} offen offset:{t*1024} sc1", "hst")
    for t in range(3):
        for i in range(4):
            a(f"v_cndmask_b32 v{BF+4*t+i}, v{ACC[0][t]+8+i}, v{ACC[1][t]+8+i}, vcc")
        a.done.add(("b", t))
    a(f"v_mov_b32 v{TB}, s62")
    if opt.get('gp') == 3:
        a('s_setprio 0')
        for b in range(2):
            for t in range(3):
                a.vmem(f"buffer_store_dwordx4 {vr(ACC[b][t]+8,4)}, v{L16}, s[24:27], s{36+b} offen offset:{t*1024} sc1", "hst")
    a("s_lshl_b32 s36, s4, 1")
    a("s_lshr_b32 s37, s5, 2")
    a("s_add_u32 s36, s36, s37")
    a("s_mul_i32 s43, s36, 40960")
    a("s_add_u32 s43, s43, s38")
    a("s_mul_i32 s37, s3, 80")
    a("s_add_u32 s43, s43, s37")
    a("s_mul_i32 s37, s36, 98304")
    a("s_mul_i32 s36, s36, 40960")
    a("s_mul_i32 s61, s3, 10240")
    a("s_add_u32 s36, s36, s61")
    HS = [64, 65, 66, 67, 68, 69, 70]
    for j in range(1, 8):
        a("s_add_u32 s7, s7, 12288")
        a("s_sub_u32 s61, s7, 98304")
        a("s_cmp_ge_u32 s7, 98304")
        a("s_cselect_b32 s7, s61, s7")
        a(f"s_add_u32 s{HS[j-1]}, s7, s37")
    def h_ld(k): return f"buffer_load_dwordx4 {vr(BF+4*k,4)}, v{L16}, s[24:27], s{HS[k//3-1]} offen offset:{(k%3)*1024} sc1"
    if opt.get("hsent"):
        a.wait(vm="sfr")
        a(f"v_cmp_ne_u32 vcc, s62, v{SFR}")
        a("s_cmp_eq_u64 vcc, 0")
        a("s_cbranch_scc1 L_g_sok")
        sv = list(a.vm); poll_global(a, FV, 1, PA, 56, "s30", "s62"); a.vm = sv
        a.label("L_g_sok")
    if opt.get('gp', 2) == 1: a(f"s_setprio {opt['prioG']}")
    hl = [lambda: a.vmem(f"buffer_load_dwordx4 {vr(XR,4)}, v{OA}, s[8:11], s43 offen", "xr"),
           lambda: a.vmem(f"buffer_load_dwordx4 {vr(XR+4,4)}, v{OA}, s[8:11], s43 offen offset:16", "xr"),
           lambda: a.vmem(f"buffer_load_dwordx2 {vr(XR+8,2)}, v{OA}, s[8:11], s43 offen offset:32", "xr")]
    def valid(regs, reload, nleft, sleep, lowspin=False):
        chk = a.newlabel("ck"); rt = a.newlabel("rt"); go = a.newlabel("go")
        a("s_mov_b32 s63, 8192")
        a.label(chk)
        a(f"v_max3_u32 v{TA}, v{regs[0]}, v{regs[1]}, v{regs[2]}")
        r = regs[3:]
        while len(r) >= 2: a(f"v_max3_u32 v{TA}, v{TA}, v{r[0]}, v{r[1]}"); r = r[2:]
        if r: a(f"v_max_u32 v{TA}, v{TA}, v{r[0]}")
        a(f"v_cmp_eq_u32 vcc, -1, v{TA}")
        a("s_cmp_eq_u64 vcc, 0")
        a(f"s_cbranch_scc0 {rt}")
        a.label(go)
        a.cold += [f"{rt}:", "    s_sub_u32 s63, s63, 1", f"    s_cbranch_scc1 {go}"] + (["    s_setprio 0"] if lowspin else []) + [f"    s_sleep {sleep}"] + ["    " + l for l in reload] + [f"    s_waitcnt vmcnt({nleft})"] + (["    s_setprio 3"] if lowspin else []) + [f"    s_branch {chk}"]
    FS = lambda k: (96 + (k % 2) * 20) if k < 24 else [96, 116, 176, 196][k % 4]
    pend_dma = []
    def dparts(k):
        b = FS(k)
        def R(t, hf):
            def f():
                if t == 0 and hf == 0: a.wait(vm=("d", k))
                a.lds(f"ds_read_b64_tr_b16 {vr(b+4*t+2*hf,2)}, v{DT} offset:{DS(k)+t*8+hf*1280}", ("dr", k, t))
            return f
        return [R(t, hf) for t in range(5) for hf in range(2)]
    def dreads(k):
        for f in dparts(k): f()
    def mf(k, t):
        a.wait(vm=("b", k), lg=("dr", k, t))
        a(f"v_mfma_f32_32x32x16_bf16 {vr(DA[t],16)}, {vr(FS(k)+4*t,4)}, {vr(BF+4*(k%24),4)}, {vr(DA[t],16) if k else 0}")
    dreads(0)
    a(f"s_setprio {opt['prioG']}")
    for k in range(24):
        if opt.get("hsent"):
            if k == 1: hl = [(lambda j=j: a.vmem(h_ld(j), ("b", j))) for j in range(3, 24)] + hl
            if k >= 3 and k % 3 == 0:
                if k == 3 and opt.get("hst"): S_(10)
                a.wait(vm=("b", k + 2))
                a("s_setprio 3")
                valid(list(range(BF + 4 * k, BF + 4 * k + 12)), [h_ld(j) for j in range(k, min(k + 9, 24))], min(k + 9, 24) - k - 3, 6, True)
                a(f"s_setprio {opt['prioG']}")
                if k == 3 and opt.get("hst"): S_(11)
        elif k == 3:
            if opt.get("hst"): S_(10)
            if opt.get("hpre", 1):
                a.wait(vm="sfr")
                a(f"v_cmp_ne_u32 vcc, s62, v{SFR}")
                a("s_cmp_eq_u64 vcc, 0")
                a("s_cbranch_scc1 L_g_hok")
                sv = list(a.vm); poll_global(a, FV, 1, PA, 56, "s30", "s62", sleep=opt.get("hsl", 3)); a.vm = sv
                a.label("L_g_hok")
            else: poll_global(a, FV, 1, PA, 56, "s30", "s62")
            if opt.get("hst"): S_(11)
            if NPF: a.wait(lg=("pw", 5))
            for j in range(3, 9): a.vmem(h_ld(j), ("b", j))
            hl += [(lambda j=j: a.vmem(h_ld(j), ("b", j))) for j in range(9, 24)]
        rd_ = dparts(k + 1)
        dm_ = pf_write(k + DN) if k < NPF else d_parts(k + DN)
        if k == 4 and NPF: a.wait(lg=("pw", 2 + NPF))
        if k == opt.get("hfk", 0) and not opt.get("hsent"):
            dm_ = dm_ + [lambda: (a.wait(vm="hst"), a("s_mov_b64 exec, 1"), a.vmem(f"buffer_store_dword v{TB}, v{ZERO}, s[56:59], s42 offen sc1", "hfl"), a("s_mov_b64 exec, -1"))]
        if k == 2 and opt.get("hpre", 1): dm_ = [lambda: a.vmem(f"buffer_load_dword v{SFR}, v{PA}, s[56:59], s30 offen sc1", "sfr")] + dm_
        cut = [0, 3, 6, 8, 10, 10]; dcut = [0, 0, 1, 2, 4, len(dm_)]
        for t in range(5):
            mf(k, t)
            for f in rd_[cut[t]:cut[t+1]]: f()
            if t == 1: a.wait(lg=("dr", k, 4))
            for f in dm_[dcut[t]:dcut[t+1]]: f()
            nh = 2 if (opt.get("hsent") and k < 3) else 1
            for f in hl[:nh]: f()
            hl = hl[nh:]
    assert not hl
    a.flush_pend()
    for k in (25, 26): dreads(k)
    a.wait(lg=("dr", 24, 4)); d_dma(27)
    a.wait(lg=("dr", 25, 4)); d_dma(28)
    a.wait(lg=("dr", 26, 4)); d_dma(29)
    dreads(27)
    a.wait(lg=("dr", 27, 4)); d_dma(30)
    a.raw("; @@G_MAIN_END")
    S_(8)
    if opt.get("aoff"):
        S_(9); st.flush(a, P_WS, 6, 20); a("s_endpgm")
    a("s_setprio 3")
    a("s_add_u32 s30, s36, 4096"); a("s_add_u32 s31, s36, 8192")
    def o_ld(i): return f"buffer_load_dwordx4 {vr(BF+4*i,4)}, v{L16}, s[12:15], {['s36','s30','s31'][i//4]} offen offset:{(i%4)*1024} sc1"
    for i in range(10): a.vmem(o_ld(i), ("b", 24 + i))
    for k in range(24, 34):
        i = k - 24; bq = BF + 4 * i
        a.wait(vm=("b", k))
        valid([bq, bq + 1, bq + 2, bq + 3], [o_ld(j) for j in range(i, 10)], 9 - i, opt.get("osleep", 2))
        if k == 24 and not opt.get("hst"): S_(10)
        rd_ = dparts(k + 3) if 28 <= k + 3 < 34 else []
        for t in range(5):
            mf(k, t)
            for f in rd_[2*t:2*t+2]: f()
        if k in (26, 27, 28):
            a.wait(lg=("dr", k + 2, 4)); d_dma(k + 2 + DN)
    if not opt.get("hst"): S_(11)
    srd(a, 16, P_OUT, 2048 * 1280)
    OSC = opt.get('osc', '')
    a(f"v_add_u32 v{TA}, s29, v{L16}")
    RS = 96
    a.wait(vm="xr")
    for i in range(10):
        a(f"v_lshlrev_b32 v{RS+2*i}, 16, v{XR+i}")
        a(f"v_and_b32 v{RS+2*i+1}, 0xffff0000, v{XR+i}")
    for gq in range(1, 4):
        for t in range(5):
            a.lds(f"ds_write_b128 v{TA}, {vr(DA[t]+4*gq,4)} offset:{WSO[gq-1]+t*1024}", "rw")
    set_flag(a, FV, FWA, 6)
    if opt.get("tst"): S0_(1)
    for gq in range(1, 4):
        a(f"s_sub_u32 s30, s3, {gq}"); a("s_and_b32 s30, s30, 3"); a(f"s_mul_i32 s30, s30, {WSLOT}"); a(f"s_add_u32 s30, s30, {L_R1 + WSO[gq-1]}")
        a(f"v_add_u32 v{116+gq}, s30, v{L16}")
    for t in range(5):
        for i in range(2): a(f"v_pk_add_f32 {vr(RS+4*t+2*i,2)}, {vr(RS+4*t+2*i,2)}, {vr(DA[t]+2*i,2)}")
    poll_lds(a, FV, FAD, 6, "fl")
    if opt.get("tst"): S0_(2)
    for w in range(1, 4):
        for t in range(5):
            a.lds(f"ds_read_b128 {vr(16+20*w+4*t,4)}, v{116+w} offset:{t*1024}", ("rr", w))
    for w in range(1, 4):
        a.wait(lg=("rr", w))
        for i in range(10):
            a(f"v_pk_add_f32 {vr(RS+2*i,2)}, {vr(RS+2*i,2)}, {vr(16+20*w+2*i,2)}")
    for i in range(10):
        a(f"v_cvt_pk_bf16_f32 v{120+i}, v{RS+2*i}, v{RS+2*i+1}")
    if opt.get("tst"): S0_(3)
    a(f"buffer_store_dwordx4 {vr(120,4)}, v{OA}, s[16:19], s43 offen {OSC}")
    a(f"buffer_store_dwordx4 {vr(124,4)}, v{OA}, s[16:19], s43 offen offset:16 {OSC}")
    a(f"buffer_store_dwordx2 {vr(128,2)}, v{OA}, s[16:19], s43 offen offset:32 {OSC}")
    if st:
        a("s_waitcnt vmcnt(0)"); S_(9); st.flush(a, P_WS, 6, 20)
```
